```python
import torch

def _softmax(x, axis=-1):
    return torch.softmax(x, dim=axis)
def _gelu(x):
    return torch.nn.functional.gelu(x, approximate="tanh")
def _silu(x):
    return torch.nn.functional.silu(x)
def _sigmoid(x):
    return torch.sigmoid(x)
def _layernorm(x, axis=-1, eps=1e-5):
    m = x.mean(dim=axis, keepdim=True)
    v = x.var(dim=axis, keepdim=True, unbiased=False)
    return (x - m) / torch.sqrt(v + eps)
def _scatter_add(tgt, idx, src, axis=0):
    return tgt.clone().index_add_(axis, idx, src)
def _segment_sum(src, seg, n):
    out = torch.zeros((n,) + src.shape[1:], dtype=src.dtype)
    return out.index_add_(0, seg, src)
def _pad(x, pw):
    flat = tuple(v for pair in reversed(pw) for v in pair)
    return torch.nn.functional.pad(x, flat)

kernel_name = 'recurrent_scan__gqa_block_cached__glu_gated_glu__decode'

def setup_inputs():

    _w = (lambda a: (lambda t: t.to(torch.bfloat16) if t.is_floating_point() else t)(torch.as_tensor(a)))
    def _A_setup():
        B, Sq, D = 1, 1, 512
        Hq, Hkv, Sk, Dh = 32, 8, 65536, 128
        assert Hq % Hkv == 0, (Hq, Hkv)
        return {
            "x": _w((lambda *s: torch.randn(*s, dtype=torch.bfloat16) * 0.05)(B, Sq, D)),
            "k_cache": _w((lambda *s: torch.randn(*s, dtype=torch.bfloat16) * 1.6)(B, Hkv, Sk, Dh)),
            "v_cache": _w((lambda *s: torch.randn(*s, dtype=torch.bfloat16) * 0.8)(B, Hkv, Sk, Dh)),
            "wq": _w((lambda *s: torch.randn(*s, dtype=torch.bfloat16) * 1.6)(D, Hq * Dh) * (D ** -0.5)),
            "wo": _w((lambda *s: torch.randn(*s, dtype=torch.bfloat16) * 0.8)(Hq * Dh, D) * ((Hq * Dh) ** -0.5)),
        }
    _A_in = _A_setup()

    def _B_setup():
        B, S, D, F = 1, 1, 512, 1792
        return {
            "x": _w((lambda *s: torch.randn(*s, dtype=torch.bfloat16) * 0.05)(B, S, D)),
            "w_gate": _w((lambda *s: torch.randn(*s, dtype=torch.bfloat16) * 0.8)(D, F)),
            "w_up": _w((lambda *s: torch.randn(*s, dtype=torch.bfloat16) * 0.2)(D, F)),
            "w_down": _w((lambda *s: torch.randn(*s, dtype=torch.bfloat16) * 0.2)(F, D)),
        }
    _B_in = _B_setup()

    return {
        "A_x": _A_in["x"],
        "A_k_cache": _A_in["k_cache"],
        "A_v_cache": _A_in["v_cache"],
        "A_wq": _A_in["wq"],
        "A_wo": _A_in["wo"],
        "B_x": _B_in["x"],
        "B_w_gate": _B_in["w_gate"],
        "B_w_up": _B_in["w_up"],
        "B_w_down": _B_in["w_down"],
    }

def reference(A_x, A_k_cache, A_v_cache, A_wq, A_wo, B_x, B_w_gate, B_w_up, B_w_down):
    def _A_ref(x, k_cache, v_cache, wq, wo):
        B, Sq, D = x.shape
        Hq, Dh = 32, 128
        Hkv = k_cache.shape[1]
        rep = Hq // Hkv
        q = (lambda x, *d: x.permute(*d))((x @ wq).reshape(B, Sq, Hq, Dh), 0, 2, 1, 3)
        k = (lambda x, n, axis: torch.repeat_interleave(x, n, dim=axis))(k_cache, rep, axis=1)
        v = (lambda x, n, axis: torch.repeat_interleave(x, n, dim=axis))(v_cache, rep, axis=1)
        scores = torch.einsum("bhqd,bhkd->bhqk", q, k) * (Dh ** -0.5)
        p = _softmax(scores, axis=-1)
        o = torch.einsum("bhqk,bhkd->bhqd", p, v)
        return (lambda x, *d: x.permute(*d))(o, 0, 2, 1, 3).reshape(B, Sq, Hq * Dh) @ wo

    def _B_ref(x, w_gate, w_up, w_down):
        g = torch.einsum("bsd,df->bsf", x, w_gate)
        u = torch.einsum("bsd,df->bsf", x, w_up)
        h = _sigmoid(g) * u
        return torch.einsum("bsf,fd->bsd", h, w_down)

    x = A_x
    xn = _layernorm(x, axis=-1)
    s = _A_ref(xn, A_k_cache, A_v_cache, A_wq, A_wo)
    g = _silu(_B_ref(xn, B_w_gate, B_w_up, B_w_down))
    return x + s * g
```

```python
import re

TRANS = ("v_exp_f32", "v_log_f32", "v_rcp_f32", "v_rsq_f32", "v_sqrt_f32", "v_sin_f32", "v_cos_f32")

def regs_of(tok):
    tok = tok.strip()
    tok = tok.lstrip("-")
    m = re.fullmatch(r"abs\((.*)\)", tok) or re.fullmatch(r"\|(.*)\|", tok)
    if m: tok = m.group(1)
    m = re.fullmatch(r"([vsa])(\d+)", tok)
    if m: return {(m.group(1), int(m.group(2)))}
    m = re.fullmatch(r"([vsa])\[(\d+):(\d+)\]", tok)
    if m: return {(m.group(1), i) for i in range(int(m.group(2)), int(m.group(3)) + 1)}
    if tok == "vcc": return {("s", "vcc_lo"), ("s", "vcc_hi")}
    if tok in ("vcc_lo", "vcc_hi", "m0"): return {("s", tok)}
    if tok == "exec": return {("s", "exec_lo"), ("s", "exec_hi")}
    return set()

class Ins:
    def __init__(self, text):
        self.text = text
        t = text.split(";")[0].strip()
        self.label = t.endswith(":")
        self.directive = t.startswith(".")
        self.op = ""
        self.defs = set(); self.uses = set()
        self.srcc = set(); self.srcab = set(); self.dppsrc = set(); self.stdata = set()
        self.kind = None
        if not t or self.label or self.directive: return
        parts = t.split(None, 1)
        self.op = op = parts[0]
        rest = parts[1] if len(parts) > 1 else ""
        ops = []
        depth = 0; cur = ""
        for ch in rest:
            if ch in "[(": depth += 1
            if ch in "])": depth -= 1
            if ch == "," and depth == 0: ops.append(cur.strip()); cur = ""
            else: cur += ch
        if cur.strip(): ops.append(cur.strip())
        mods = ""
        if ops:
            last = ops[-1].split(None, 1)
            ops[-1] = last[0]
            mods = last[1] if len(last) > 1 else ""
        self.ops = ops; self.mods = mods
        R = [regs_of(o) for o in ops]
        if op.startswith("v_mfma"):
            self.kind = "mfma"; self.defs = R[0]; self.srcab = R[1] | R[2]; self.srcc = R[3]; self.uses = self.srcab | self.srcc
            self.passes = 8 if "32x32" in op else 4
        elif op.startswith("v_"):
            self.kind = "valu"
            if op.startswith("v_cmp"):
                self.defs = R[0]; self.uses = set().union(*R[1:])
                if op.startswith("v_cmpx"): self.defs |= regs_of("exec")
            elif op.startswith("v_permlane") and "swap" in op:
                self.defs = R[0] | R[1]; self.uses = R[0] | R[1]
            elif op.startswith(("v_add_co", "v_sub_co", "v_addc_co", "v_subb_co")):
                self.defs = R[0] | R[1]; self.uses = set().union(*R[2:])
            else:
                self.defs = R[0]; self.uses = set().union(*R[1:]) if len(R) > 1 else set()
                if op.startswith(("v_fmac", "v_writelane", "v_dot2c")) or "_dpp" in op: self.uses |= R[0]
            if "_dpp" in op: self.dppsrc = set(self.uses)
        elif op.startswith(("buffer_", "global_")):
            self.kind = "vmem"
            if "load" in op and " lds" not in " " + mods:
                self.defs = R[0]; self.uses = set().union(*R[1:])
            elif "atomic" in op:
                self.uses = set().union(*R); self.defs = R[0] if "sc0" in mods else set()
            else:
                self.uses = set().union(*R) if R else set()
                if op.endswith(("x3", "x4")) and "store" in op:
                    self.stdata = R[0] if op.startswith("buffer_") else R[1]
        elif op.startswith("ds_"):
            self.kind = "ds"
            if op.startswith(("ds_read", "ds_bpermute", "ds_permute", "ds_swizzle")) or "_rtn" in op:
                self.defs = R[0]; self.uses = set().union(*R[1:])
            else:
                self.uses = set().union(*R)
        elif op.startswith("s_"):
            self.kind = "salu"
            if op.startswith(("s_cmp", "s_bitcmp", "s_cbranch", "s_branch", "s_waitcnt", "s_nop", "s_barrier", "s_endpgm", "s_sleep", "s_setprio")):
                self.uses = set().union(*R) if R else set()
            else:
                self.defs = R[0] if R else set(); self.uses = set().union(*R[1:]) if len(R) > 1 else set()
    def states(self):
        if self.kind is None: return 0
        if self.op == "s_nop": return int(self.ops[0], 0) + 1
        return 1

def need(p, c):
    n = 0
    vdef = {r for r in p.defs if r[0] in "va"}
    sdef = {r for r in p.defs if r[0] == "s"}
    if p.kind == "valu":
        if c.kind == "valu":
            if vdef & c.dppsrc: n = max(n, 2)
            if c.op.startswith("v_permlane") and vdef & c.uses: n = max(n, 2)
            if c.op.startswith(("v_readlane", "v_readfirstlane")) and vdef & c.uses: n = max(n, 1)
            if p.op.startswith(TRANS) and vdef & c.uses: n = max(n, 1)
            if sdef & c.uses: n = max(n, 4 if c.op.startswith(("v_readlane", "v_writelane")) else 2)
            if p.op.startswith("v_cmpx"): n = max(n, 5 if c.dppsrc else 4)
            if c.op.startswith("v_cndmask") and len(c.ops) == 3 and sdef & regs_of("vcc"): n = max(n, 2)
        if c.kind == "mfma" and vdef & c.uses: n = max(n, 2)
        if c.kind == "vmem" and sdef & c.uses: n = max(n, 5)
    if p.kind == "mfma":
        big = {4: 8, 8: 12}[p.passes]
        if c.kind == "mfma":
            if p.defs & c.srcab: n = max(n, big)
            if p.defs & c.srcc and not (p.defs == c.srcc and p.passes == c.passes): n = max(n, big - 2)
            if p.defs & c.defs and not (p.defs == c.defs): n = max(n, big)
        elif c.kind in ("valu", "vmem", "ds"):
            if p.defs & (c.uses | c.defs): n = max(n, big)
            if c.kind == "valu" and p.srcc & c.defs: n = max(n, {4: 3, 8: 7}[p.passes])
    if p.kind == "vmem" and p.stdata and p.stdata & c.defs: n = max(n, 2)
    if p.kind == "salu" and ("s", "m0") in p.defs and c.kind == "vmem" and " lds" in " " + c.mods: n = max(n, 1)
    return n

class Asm:
    def __init__(self): self.lines = []
    def __call__(self, text):
        for t in text.split("\n"):
            t = t.strip()
            if t: self.lines.append(t)
    def finish(self):
        out = []; hist = []
        npad = 0
        for t in self.lines:
            ins = Ins(t)
            if ins.kind is None:
                out.append(t if (ins.label or ins.directive or t.startswith(";")) else "  " + t); continue
            dist = 0; pad = 0
            for p in reversed(hist):
                if dist >= 13: break
                k = need(p, ins)
                if k > dist: pad = max(pad, k - dist)
                dist += p.states()
            if pad:
                nop = Ins(f"s_nop {pad-1}"); hist.append(nop); out.append(f"  s_nop {pad-1}"); npad += 1
            hist.append(ins); out.append("  " + t)
            if ins.op in ("s_branch", "s_endpgm"): hist = []
            hist = hist[-16:]
        return "\n".join(out) + "\n"
```

```python
import sys, struct
from asmlib import Asm
NAME = "recurrent_scan__gqa_block_cached__glu_gated_glu__decode"
def f2u(x): return struct.unpack("<I", struct.pack("<f", x))[0]

HEADER = open("cdna_kernels/%s.s.ref" % NAME).read().split("; Override launch")[0]

def gen(S=4, hmap="low", lds=98304, kvflags="nt", wflags="nt", wsbase=0, stamps=False, thr=8.0, codepf=True, tmo=1<<16):
    a = Asm()
    E_OFF, A1_OFF, Y_OFF, ML_OFF, S_OFF, P_OFF, ST_OFF = [wsbase + x for x in (0, 0x1000, 0x10000, 0x20000, 0x40000, 0x80000, 0x100000)]
    WS_BYTES = 0x20000000
    sX, sK, sV, sWQ, sWO, sG, sU, sDN, sOUT, sWS = 4, 6, 8, 10, 12, 16, 18, 20, 22, 26
    rK, rV, rW1, rWS, rDN = 28, 32, 36, 40, 44
    sW, sKVH, sJ, sOFF, sCB, sSTR, sT, sTMP, sTMP2, sCNT, sRET, sTLO, sTHI = 48, 49, 50, 51, 52, 53, 54, 55, 56, 57, 58, 59, 60
    sTB = 64
    sSC, sL2E, sHI, sTHR, sTMO, sX7, sE, sCOL, sY = 68, 69, 70, 71, 72, 73, 74, 75, 76
    sPC = 78
    sST = 80
    vL, vKO, vVO, vM0, vM1, vNM, vLS, vT = 0, 1, 2, 3, 4, 5, 6, 7
    vA0, vA1, vSS, vTT, vXX, vQ, vTMP = 8, 12, 16, 20, 24, 32, 48
    vSLOT = 64
    vW = vSLOT + 32*S
    vD = vW + 32
    assert vD + 32 <= 256
    def vr(b, n): return f"v[{b}:{b+n-1}]"
    def sr(b, n): return f"s[{b}:{b+n-1}]"
    nst = [0]
    def stamp():
        if stamps:
            a(f"s_memrealtime s[{sST+2*nst[0]}:{sST+2*nst[0]+1}]"); nst[0] += 1
    def allreduce_rows(op, v, t):
        a(f"v_mov_b32 v{t}, v{v}"); a(f"v_permlane16_swap_b32 v{v}, v{t}"); a(f"{op} v{v}, v{v}, v{t}")
        a(f"v_mov_b32 v{t}, v{v}"); a(f"v_permlane32_swap_b32 v{v}, v{t}"); a(f"{op} v{v}, v{v}, v{t}")
    def rowreduce(op, vs, steps=(8, 4, 2, 1)):
        for st in steps:
            for v in vs: a(f"{op}_dpp v{v}, v{v}, v{v} row_ror:{st} row_mask:0xf bank_mask:0xf")
    def unpack(dst, src, n):
        for i in range(n):
            a(f"v_lshlrev_b32 v{dst+2*i}, 16, v{src+i}"); a(f"v_and_b32 v{dst+2*i+1}, s{sHI}, v{src+i}")
    def issueK(s):
        for jj in range(4): a(f"buffer_load_dwordx4 {vr(vSLOT+32*s+4*jj,4)}, v{vKO}, {sr(rK,4)}, s{sOFF} offen offset:{64*jj} {kvflags}")
    def issueV(s):
        for i in range(4): a(f"buffer_load_dwordx4 {vr(vSLOT+32*s+16+4*i,4)}, v{vVO}, {sr(rV,4)}, s{sOFF} offen offset:{1024*i} {kvflags}")
        a(f"s_add_u32 s{sOFF}, s{sOFF}, 0x4000")
    def gemv128x32(vAop, vB, waits):
        for i in range(8):
            if waits is not None: a(f"s_waitcnt vmcnt({waits-1-i})")
            c0 = "0" if i == 0 else vr(vA0,4); c1 = "0" if i == 0 else vr(vA1,4)
            a(f"v_mfma_f32_16x16x16_bf16 {vr(vA0,4)}, {vr(vAop+2*i,2)}, {vr(vB+4*i,2)}, {c0}")
            a(f"v_mfma_f32_16x16x16_bf16 {vr(vA1,4)}, {vr(vAop+2*i,2)}, {vr(vB+4*i+2,2)}, {c1}")
        for b in (1, 2, 3):
            for acc in (vA0, vA1): a(f"v_mov_b32_dpp v{acc}, v{acc+b} quad_perm:[0,1,2,3] row_mask:0xf bank_mask:{1<<b:#x}")
        rowreduce("v_add_f32", (vA0, vA1), (8, 4))

    a(f"{NAME}_kernel:")
    stamp()
    a("s_cmp_ge_u32 s2, 256"); a("s_cbranch_scc1 L_done")
    a("s_load_dwordx16 s[4:19], s[0:1], 0"); a("s_load_dwordx8 s[20:27], s[0:1], 64")
    if codepf:
        a(f"s_getpc_b64 {sr(sPC,2)}")
        a("L_pc:")
        a(f"v_lshlrev_b32 v{vT}, 6, v0")
        a(f"v_min_u32 v{vT}, L_codeend-L_pc-4, v{vT}")
        a(f"global_load_dword v{vD}, v{vT}, {sr(sPC,2)}")
    a(f"v_lshrrev_b32 v{vKO}, 6, v0"); a(f"v_and_b32 v{vL}, 63, v0")
    a(f"v_readfirstlane_b32 s{sW}, v{vKO}")
    a(f"s_and_b32 s{sX7}, s2, 7"); a(f"s_lshr_b32 s{sTMP2}, s2, 3")
    if hmap == "low":
        a(f"s_mov_b32 s{sKVH}, s{sX7}"); a(f"s_mov_b32 s{sJ}, s{sTMP2}")
    else:
        a(f"s_lshr_b32 s{sKVH}, s2, 5"); a(f"s_and_b32 s{sJ}, s2, 31")
    a(f"s_mul_i32 s{sCB}, s{sX7}, 30"); a(f"s_add_u32 s{sCB}, s{sCB}, s{sTMP2}")
    a(f"s_movk_i32 s{sCOL}, 184"); a(f"s_cmp_lt_u32 s{sCB}, s{sCOL}"); a(f"s_cselect_b32 s{sCOL}, 128, s{sCOL}")
    a(f"s_cmp_lt_u32 s{sCB}, 128"); a(f"s_cselect_b32 s{sCOL}, 0, s{sCOL}")
    a(f"s_movk_i32 s{sSTR}, 3584"); a(f"s_cselect_b32 s{sSTR}, 8192, s{sSTR}")
    a(f"s_sub_u32 s{sCOL}, s{sCB}, s{sCOL}"); a(f"s_lshl_b32 s{sCOL}, s{sCOL}, 6")
    a(f"s_lshl_b32 s{sTMP}, s{sW}, 7"); a(f"s_mul_i32 s{sTMP}, s{sTMP}, s{sSTR}"); a(f"s_add_u32 s{sCOL}, s{sCOL}, s{sTMP}")
    a(f"v_lshlrev_b32 v{vVO}, 4, v{vL}")
    a(f"v_lshrrev_b32 v{vTMP}, 4, v{vL}")
    a(f"v_and_b32 v{vTMP+1}, 3, v{vL}")
    a(f"v_bfe_u32 v{vTMP+2}, v{vL}, 2, 2")
    a(f"v_lshl_add_u32 v{vTMP+3}, v{vTMP}, 2, v{vTMP+1}")
    a(f"v_lshlrev_b32 v{vTMP+3}, 4, v{vTMP+3}")
    a(f"s_lshl_b32 s{sTMP}, s{sW}, 8"); a(f"v_add_u32 v{vTMP+4}, s{sTMP}, v{vTMP+3}")
    a(f"v_lshrrev_b32 v{vTMP+5}, 2, v{vL}"); a(f"s_lshl_b32 s{sTMP}, s{sSTR}, 3")
    a(f"v_mul_u32_u24 v{vTMP+5}, s{sTMP}, v{vTMP+5}"); a(f"v_lshl_add_u32 v{vTMP+5}, v{vTMP+1}, 4, v{vTMP+5}")
    a(f"v_lshl_add_u32 v{vKO}, v{vTMP+1}, 2, v{vTMP+2}")
    a(f"v_lshlrev_b32 v{vKO}, 8, v{vKO}"); a(f"v_lshl_add_u32 v{vKO}, v{vTMP}, 4, v{vKO}")
    a(f"s_lshl_b32 s{sOFF}, s{sKVH}, 24"); a(f"s_lshl_b32 s{sTMP}, s{sJ}, 19"); a(f"s_add_u32 s{sOFF}, s{sOFF}, s{sTMP}")
    a(f"s_lshl_b32 s{sTMP}, s{sW}, 12"); a(f"s_add_u32 s{sOFF}, s{sOFF}, s{sTMP}")
    a(f"v_mov_b32 v{vNM}, {E_OFF}")
    a(f"s_mov_b32 s{rW1+3}, 0x20000"); a(f"s_mov_b32 s{rK+2}, 0x8000000"); a(f"s_mov_b32 s{rK+3}, 0x20000")
    a(f"s_mov_b32 s{rV+2}, 0x8000000"); a(f"s_mov_b32 s{rV+3}, 0x20000")
    a(f"s_lshl_b32 s{rW1+2}, s{sSTR}, 9"); a(f"s_cmp_lt_u32 s{sTMP2}, 30"); a(f"s_cselect_b32 s{rW1+2}, s{rW1+2}, 0")
    a("s_waitcnt lgkmcnt(0)")
    stamp()
    a(f"global_load_dword v{vNM}, v{vNM}, {sr(sWS,2)} sc1")
    a(f"global_load_dwordx4 {vr(vSS,4)}, v{vVO}, {sr(sX,2)}")
    a(f"global_load_dwordx4 {vr(vTT,4)}, v{vTMP+4}, {sr(sX,2)}")
    a(f"s_cmp_lt_u32 s{sCB}, 184"); a(f"s_cselect_b64 {sr(rW1,2)}, {sr(sG,2)}, {sr(sU,2)}")
    a(f"s_cmp_lt_u32 s{sCB}, 128"); a(f"s_cselect_b64 {sr(rW1,2)}, {sr(sWQ,2)}, {sr(rW1,2)}")
    for i in range(8):
        a(f"buffer_load_dwordx4 {vr(vW+4*i,4)}, v{vTMP+5}, {sr(rW1,4)}, s{sCOL} offen {wflags}")
        if i < 7: a(f"s_add_u32 s{sCOL}, s{sCOL}, s{sSTR}")
    a(f"s_mov_b64 {sr(rK,2)}, {sr(sK,2)}"); a(f"s_mov_b64 {sr(rV,2)}, {sr(sV,2)}")
    issueK(0); issueV(0)
    a(f"s_mov_b32 s{sHI}, 0xffff0000"); a(f"s_mov_b32 s{sSC}, {f2u(128**-0.5):#x}"); a(f"s_mov_b32 s{sL2E}, {f2u(1.4426950408889634):#x}")
    a(f"s_mov_b32 s{sTHR}, {f2u(thr):#x}")
    a(f"s_mov_b64 {sr(rWS,2)}, {sr(sWS,2)}"); a(f"s_mov_b32 s{rWS+2}, {WS_BYTES:#x}"); a(f"s_mov_b32 s{rWS+3}, 0x20000")
    a(f"v_and_b32 v{vT}, 1, v{vTMP+2}"); a(f"v_lshlrev_b32 v{vT}, 4, v{vT}"); a(f"v_mov_b32 v{vM1}, 0xffff"); a(f"v_lshlrev_b32 v{vM1}, v{vT}, v{vM1}")
    a(f"v_cmp_gt_u32 vcc, 2, v{vTMP+2}"); a(f"v_cndmask_b32 v{vM0}, 0, v{vM1}, vcc"); a(f"v_xor_b32 v{vM1}, v{vM1}, v{vM0}")
    a("s_waitcnt vmcnt(16)")
    a(f"v_readfirstlane_b32 s{sE}, v{vNM}")
    F = vTMP + 8
    unpack(F, vSS, 4)
    a(f"v_add_f32 v{vA0}, v{F}, v{F+1}")
    for i in range(2, 8): a(f"v_add_f32 v{vA0}, v{vA0}, v{F+i}")
    rowreduce("v_add_f32", (vA0,)); allreduce_rows("v_add_f32", vA0, vT)
    a(f"v_mul_f32 v{vA0}, {f2u(1/512):#x}, v{vA0}")
    for i in range(8): a(f"v_sub_f32 v{F+i}, v{F+i}, v{vA0}")
    a(f"v_mul_f32 v{vA1}, v{F}, v{F}")
    for i in range(1, 8): a(f"v_fmac_f32 v{vA1}, v{F+i}, v{F+i}")
    rowreduce("v_add_f32", (vA1,)); allreduce_rows("v_add_f32", vA1, vT)
    a(f"v_mul_f32 v{vA1}, {f2u(1/512):#x}, v{vA1}")
    a(f"v_cvt_pk_bf16_f32 v{vA0}, v{vA0}, v{vA1}")
    a(f"v_and_b32 v{vA1}, s{sHI}, v{vA0}"); a(f"v_lshlrev_b32 v{vA0}, 16, v{vA0}")
    a(f"v_add_f32 v{vA1}, {f2u(1e-5):#x}, v{vA1}")
    a(f"v_cvt_pk_bf16_f32 v{vA1}, v{vA1}, v{vA1}"); a(f"v_and_b32 v{vA1}, s{sHI}, v{vA1}")
    a(f"v_sqrt_f32 v{vA1}, v{vA1}")
    a(f"v_cvt_pk_bf16_f32 v{vA1}, v{vA1}, v{vA1}"); a(f"v_and_b32 v{vA1}, s{sHI}, v{vA1}")
    a(f"v_rcp_f32 v{vA1}, v{vA1}")
    unpack(F, vTT, 4)
    for i in range(8): a(f"v_sub_f32 v{F+i}, v{F+i}, v{vA0}")
    for i in range(4): a(f"v_cvt_pk_bf16_f32 v{vTT+i}, v{F+2*i}, v{F+2*i+1}")
    unpack(F, vTT, 4)
    for i in range(8): a(f"v_mul_f32 v{F+i}, v{F+i}, v{vA1}")
    for i in range(8): a(f"v_cvt_pk_bf16_f32 v{F+i}, v{F+i}, v{F+i}")
    for i in range(8):
        a(f"v_and_b32 v{vQ+2*i}, v{F+i}, v{vM0}"); a(f"v_and_b32 v{vQ+2*i+1}, v{F+i}, v{vM1}")
    gemv128x32(vQ, vW, 16)
    a(f"v_lshl_add_u32 v{vT}, v{vTMP+1}, 3, v{vTMP}"); a(f"v_lshlrev_b32 v{vT}, 2, v{vT}")
    a(f"v_mov_b32 v{vTMP+6}, v{vT}")
    a(f"s_lshl_b32 s{sTMP}, s{sW}, 7"); a(f"v_add_u32 v{vT}, s{sTMP}, v{vT}")
    a(f"ds_write2_b32 v{vT}, v{vA0}, v{vA1} offset0:0 offset1:4")
    a("s_waitcnt lgkmcnt(0)")
    a(f"s_add_u32 s{sT}, s{sE}, 0x01010101")
    a(f"s_and_b32 s{sTLO}, s{sT}, 0xffff"); a(f"s_lshr_b32 s{sTHI}, s{sT}, 16")
    for k in range(4): a(f"s_bfe_u32 s{sTB+k}, s{sT}, {(8<<16)|(8*k):#x}")
    a("s_barrier")
    a(f"s_cmp_lg_u32 s{sW}, 0"); a("s_cbranch_scc1 L_pub1_done")
    a(f"s_cmp_eq_u32 s{rW1+2}, 0"); a("s_cbranch_scc1 L_pub1_done")
    a("s_mov_b64 exec, 0xff")
    for w in range(4): a(f"ds_read_b128 {vr(vA0+4*w,4)}, v{vVO} offset:{128*w}")
    a(f"s_lshl_b32 s{sTMP}, s{sCB}, 7"); a(f"s_add_u32 s{sTMP}, s{sTMP}, {A1_OFF}")
    a(f"v_mov_b32 v{vT}, s{sHI}")
    a("s_waitcnt lgkmcnt(0)")
    for r in range(4): a(f"v_add_f32 v{vA0+r}, v{vA0+r}, v{vA0+4+r}"); a(f"v_add_f32 v{vA0+8+r}, v{vA0+8+r}, v{vA0+12+r}")
    for r in range(4): a(f"v_add_f32 v{vA0+r}, v{vA0+r}, v{vA0+8+r}")
    a(f"v_cvt_pk_bf16_f32 v{vA0+1}, v{vA0}, v{vA0+1}"); a(f"v_cvt_pk_bf16_f32 v{vA0+3}, v{vA0+2}, v{vA0+3}")
    a(f"v_lshl_or_b32 v{vA0}, v{vA0+1}, 16, s{sTLO}"); a(f"v_and_or_b32 v{vA0+1}, v{vA0+1}, v{vT}, s{sTHI}")
    a(f"v_lshl_or_b32 v{vA0+2}, v{vA0+3}, 16, s{sTLO}"); a(f"v_and_or_b32 v{vA0+3}, v{vA0+3}, v{vT}, s{sTHI}")
    a(f"buffer_store_dwordx4 {vr(vA0,4)}, v{vVO}, {sr(rWS,4)}, s{sTMP} offen sc1")
    a("s_mov_b64 exec, -1")
    a("L_pub1_done:")
    stamp()
    for s in range(1, S-1): issueK(s); issueV(s)
    a(f"s_lshr_b32 s{sTMP}, s2, 7"); a(f"s_lshl_b32 s{sY}, s{sTMP}, 3"); a(f"s_add_u32 s{sY}, s{sY}, s{sX7}")
    a(f"s_cmp_eq_u32 s{sW}, 3"); a(f"s_cselect_b32 s{sY}, s{sY}, 99")
    a(f"s_mov_b64 {sr(rDN,2)}, {sr(sDN,2)}"); a(f"s_mov_b32 s{rDN+2}, {1792*1024}"); a(f"s_mov_b32 s{rDN+3}, 0x20000")
    a(f"s_cmp_ge_u32 s{sY}, 14"); a("s_cbranch_scc1 L_noyload")
    a(f"s_bfe_u32 s{sCOL}, s2, {(4<<16)|3:#x}")
    a(f"s_lshl_b32 s{sTMP}, s{sY}, 17"); a(f"s_lshl_b32 s{sTMP2}, s{sCOL}, 6"); a(f"s_add_u32 s{sTMP}, s{sTMP}, s{sTMP2}")
    a(f"s_add_u32 s{sTMP2}, s{sTMP}, 4096")
    a(f"v_lshrrev_b32 v{vT}, 2, v{vL}"); a(f"v_lshlrev_b32 v{vT}, 13, v{vT}"); a(f"v_lshl_add_u32 v{vT}, v{vTMP+1}, 4, v{vT}")
    for i in range(8): a(f"buffer_load_dwordx4 {vr(vD+4*i,4)}, v{vT}, {sr(rDN,4)}, s{sTMP if i < 4 else sTMP2} offen offset:{1024*(i&3)} {wflags}")
    a("L_noyload:")
    a(f"v_lshlrev_b32 v{vTMP+7}, 9, v{vTMP+1}"); a(f"v_lshl_add_u32 v{vTMP+7}, v{vTMP}, 5, v{vTMP+7}")
    a(f"s_lshl_b32 s{sCB}, s{sKVH}, 11"); a(f"s_add_u32 s{sCB}, s{sCB}, {A1_OFF}")
    def qloads():
        for jj in range(4):
            for h in range(2): a(f"buffer_load_dwordx4 {vr(vW+8*jj+4*h,4)}, v{vTMP+7}, {sr(rWS,4)}, s{sCB} offen offset:{128*jj+16*h} sc1")
    qloads()
    issueK(S-1); issueV(S-1)
    a(f"s_mov_b32 s{sTMO}, {tmo}")
    a(f"s_mov_b32 s{sTMP}, 0x05040100"); a(f"s_mov_b32 s{sTMP2}, 0x07060302")
    a("s_waitcnt vmcnt(8)")
    a("L_qchk:")
    a(f"v_mov_b32 v{vT}, 0")
    for p in range(0, 16, 2):
        a(f"v_perm_b32 v{vA0}, v{vW+2*p+1}, v{vW+2*p}, s{sTMP}"); a(f"v_perm_b32 v{vA0+1}, v{vW+2*p+3}, v{vW+2*p+2}, s{sTMP}")
        a(f"v_xor_b32 v{vA0}, s{sT}, v{vA0}"); a(f"v_xor_b32 v{vA0+1}, s{sT}, v{vA0+1}")
        a(f"v_or3_b32 v{vT}, v{vT}, v{vA0}, v{vA0+1}")
    a(f"v_cmp_ne_u32 vcc, 0, v{vT}"); a("s_cbranch_vccnz L_qretry")
    a("L_qok:")
    for p in range(16): a(f"v_perm_b32 v{vQ+p}, v{vW+2*p+1}, v{vW+2*p}, s{sTMP2}")
    stamp()
    a(f"s_cmp_ge_u32 s{sY}, 14"); a("s_cbranch_scc1 L_noy")
    a(f"s_lshl_b32 s{sCB}, s{sY}, 9"); a(f"s_add_u32 s{sCB}, s{sCB}, {A1_OFF + 4096*4}"); a(f"s_add_u32 s{sCNT}, s{sCB}, {1792*4}")
    a(f"v_lshlrev_b32 v{vTMP+3}, 1, v{vTMP+3}")
    a("L_ypoll:")
    for h in range(2): a(f"buffer_load_dwordx4 {vr(vW+4*h,4)}, v{vTMP+3}, {sr(rWS,4)}, s{sCB} offen offset:{16*h} sc1")
    for h in range(2): a(f"buffer_load_dwordx4 {vr(vW+8+4*h,4)}, v{vTMP+3}, {sr(rWS,4)}, s{sCNT} offen offset:{16*h} sc1")
    a("s_waitcnt vmcnt(0)")
    a(f"v_mov_b32 v{vT}, 0")
    for p in range(0, 16, 2):
        a(f"v_xor_b32 v{vW+p}, s{sTLO}, v{vW+p}"); a(f"v_xor_b32 v{vW+p+1}, s{sTHI}, v{vW+p+1}")
        a(f"v_or3_b32 v{vT}, v{vT}, v{vW+p}, v{vW+p+1}")
    a(f"v_and_b32 v{vT}, 0xffff, v{vT}")
    a(f"v_cmp_ne_u32 vcc, 0, v{vT}"); a("s_cbranch_vccz L_yok")
    a(f"s_sub_u32 s{sTMO}, s{sTMO}, 1"); a(f"s_cmp_gt_i32 s{sTMO}, 0"); a("s_cbranch_scc1 L_ypoll")
    a("L_yok:")
    for i in range(8): a(f"v_mul_f32 v{vW+i}, {f2u(-1.4426950408889634):#x}, v{vW+i}")
    for i in range(8): a(f"v_exp_f32 v{vW+i}, v{vW+i}")
    for i in range(8): a(f"v_add_f32 v{vW+i}, 1.0, v{vW+i}")
    for i in range(8): a(f"v_rcp_f32 v{vW+i}, v{vW+i}")
    for i in range(8): a(f"v_cvt_pk_bf16_f32 v{vW+i}, v{vW+i}, v{vW+i}")
    for i in range(8): a(f"v_and_b32 v{vW+i}, s{sHI}, v{vW+i}")
    for i in range(8): a(f"v_mul_f32 v{vW+i}, v{vW+i}, v{vW+8+i}")
    for i in range(8): a(f"v_cvt_pk_bf16_f32 v{vW+i}, v{vW+i}, v{vW+i}")
    for i in range(8):
        a(f"v_and_b32 v{vW+16+2*i}, v{vW+i}, v{vM0}"); a(f"v_and_b32 v{vW+16+2*i+1}, v{vW+i}, v{vM1}")
    gemv128x32(vW+16, vD, None)
    a(f"ds_write2_b32 v{vTMP+6}, v{vA0}, v{vA1} offset0:128 offset1:132")
    a("s_waitcnt lgkmcnt(0)")
    a("s_mov_b64 exec, 0xff")
    a(f"ds_read_b128 {vr(vA0,4)}, v{vVO} offset:512")
    a(f"s_lshl_b32 s{sTMP}, s{sY}, 11"); a(f"s_lshl_b32 s{sTMP2}, s{sCOL}, 7"); a(f"s_add_u32 s{sTMP}, s{sTMP}, s{sTMP2}"); a(f"s_add_u32 s{sTMP}, s{sTMP}, {Y_OFF}")
    a(f"v_mov_b32 v{vT}, 0xff")
    a("s_waitcnt lgkmcnt(0)")
    for r in range(4): a(f"v_bfi_b32 v{vA0+r}, v{vT}, s{sTB+r}, v{vA0+r}")
    a(f"buffer_store_dwordx4 {vr(vA0,4)}, v{vVO}, {sr(rWS,4)}, s{sTMP} offen sc1")
    a("s_mov_b64 exec, -1")
    a("s_nop 1")
    a("L_noy:")
    for r in range(8): a(f"v_mov_b32 v{vA0+r}, 0")
    a(f"v_mov_b32 v{vNM}, {f2u(3e38):#x}"); a(f"v_mov_b32 v{vLS}, 0")
    a(f"s_mov_b32 s{sCNT}, {32//S}")
    assert 32 % S == 0
    N = 8*S - 4
    a(".p2align 3")
    a("L_loop:")
    a(f"s_cmp_eq_u32 s{sCNT}, 1"); a(f"s_cselect_b32 s{rK+2}, 0, s{rK+2}"); a(f"s_cselect_b32 s{rV+2}, 0, s{rV+2}")
    for s in range(S):
        kb = vSLOT + 32*s; vb = kb + 16
        a(f"s_waitcnt vmcnt({N})")
        for jj in range(4):
            a(f"v_mfma_f32_16x16x32_bf16 {vr(vSS,4)}, {vr(kb+4*jj,4)}, {vr(vQ+4*jj,4)}, {'0' if jj == 0 else vr(vSS,4)}")
        issueK(s)
        a(f"v_cvt_pk_bf16_f32 v{vSS}, v{vSS}, v{vSS+1}"); a(f"v_cvt_pk_bf16_f32 v{vSS+1}, v{vSS+2}, v{vSS+3}")
        unpack(vTT, vSS, 2)
        for i in range(4): a(f"v_mul_f32 v{vTT+i}, s{sSC}, v{vTT+i}")
        a(f"v_cvt_pk_bf16_f32 v{vTT}, v{vTT}, v{vTT+1}"); a(f"v_cvt_pk_bf16_f32 v{vTT+1}, v{vTT+2}, v{vTT+3}")
        unpack(vSS, vTT, 2)
        for i in range(4): a(f"v_fma_f32 v{vTT+i}, v{vSS+i}, s{sL2E}, v{vNM}")
        a(f"v_max3_f32 v{vT}, v{vTT}, v{vTT+1}, v{vTT+2}"); a(f"v_max_f32 v{vT}, v{vT}, v{vTT+3}")
        a(f"v_cmp_lt_f32 vcc, s{sTHR}, v{vT}"); a(f"s_cbranch_vccnz L_resc{s}")
        a(f"L_back{s}:")
        for i in range(4): a(f"v_exp_f32 v{vTT+i}, v{vTT+i}")
        for i in range(4): a(f"v_cvt_pk_bf16_f32 v{vSS+i}, v{vTT+i}, v{vTT+i}")
        for i in range(4):
            a(f"v_and_b32 v{vXX+2*i}, v{vSS+i}, v{vM0}"); a(f"v_and_b32 v{vXX+2*i+1}, v{vSS+i}, v{vM1}")
        a(f"v_add_f32 v{vTT}, v{vTT}, v{vTT+1}"); a(f"v_add_f32 v{vTT+2}, v{vTT+2}, v{vTT+3}")
        a(f"s_waitcnt vmcnt({N})")
        for i in range(4):
            a(f"v_mfma_f32_16x16x16_bf16 {vr(vA0,4)}, {vr(vXX+2*i,2)}, {vr(vb+4*i,2)}, {vr(vA0,4)}")
            a(f"v_mfma_f32_16x16x16_bf16 {vr(vA1,4)}, {vr(vXX+2*i,2)}, {vr(vb+4*i+2,2)}, {vr(vA1,4)}")
            if i == 0: a(f"v_add_f32 v{vLS}, v{vLS}, v{vTT}")
            if i == 1: a(f"v_add_f32 v{vLS}, v{vLS}, v{vTT+2}")
        issueV(s)
    a(f"s_sub_u32 s{sCNT}, s{sCNT}, 1"); a(f"s_cmp_lg_u32 s{sCNT}, 0"); a("s_cbranch_scc1 L_loop")
    stamp()
    allreduce_rows("v_add_f32", vLS, vT)
    a(f"s_lshl_b32 s{sTMP}, s{sW}, 11"); a(f"v_add_u32 v{vT}, s{sTMP}, v{vVO}")
    a(f"ds_write_b128 v{vT}, {vr(vA0,4)} offset:1024"); a(f"ds_write_b128 v{vT}, {vr(vA1,4)} offset:2048")
    a(f"s_lshl_b32 s{sTMP}, s{sW}, 4"); a(f"v_lshl_add_u32 v{vT}, v{vTMP+1}, 2, s{sTMP}")
    a(f"ds_write2_b32 v{vT}, v{vNM}, v{vLS} offset0:192 offset1:208")
    a(f"v_mov_b32 v{vKO}, 0xff")
    vFF = vKO
    a(f"s_lshl_b32 s{sCB}, s{sKVH}, 5"); a(f"s_add_u32 s{sCB}, s{sCB}, s{sJ}")
    a("s_waitcnt lgkmcnt(0)")
    a("s_barrier")
    a(f"s_cmp_ge_u32 s{sW}, 2"); a("s_cbranch_scc1 L_nocomb")
    a(f"v_and_b32 v{vT}, 15, v{vL}"); a(f"v_lshlrev_b32 v{vT}, 2, v{vT}")
    a(f"ds_read2_b32 {vr(vSS,2)}, v{vT} offset0:192 offset1:208")
    a(f"s_lshl_b32 s{sTMP}, s{sW}, 10"); a(f"v_add_u32 v{vT}, s{sTMP}, v{vVO}")
    for w in range(4): a(f"ds_read_b128 {vr(vQ+4*w,4)}, v{vT} offset:{1024+2048*w}")
    a(f"s_lshl_b32 s{sTMP2}, s{sCB}, 11"); a(f"s_add_u32 s{sTMP2}, s{sTMP2}, {P_OFF}")
    a("s_waitcnt lgkmcnt(4)")
    a(f"v_min_f32_dpp v{vSS+2}, v{vSS}, v{vSS} row_ror:4 row_mask:0xf bank_mask:0xf")
    a(f"v_min_f32_dpp v{vSS+2}, v{vSS+2}, v{vSS+2} row_ror:8 row_mask:0xf bank_mask:0xf")
    a(f"v_and_b32 v{vSS+2}, 0xffffff00, v{vSS+2}")
    a(f"v_sub_f32 v{vSS}, v{vSS+2}, v{vSS}")
    a(f"v_exp_f32 v{vSS}, v{vSS}")
    a(f"v_mul_f32 v{vSS+1}, v{vSS}, v{vSS+1}")
    a("s_waitcnt lgkmcnt(0)")
    for r in range(4): a(f"v_mul_f32_dpp v{vA0+r}, v{vSS}, v{vQ+r} row_newbcast:{r} row_mask:0xf bank_mask:0xf")
    for w in range(1, 4):
        for r in range(4): a(f"v_fmac_f32_dpp v{vA0+r}, v{vSS}, v{vQ+4*w+r} row_newbcast:{4*w+r} row_mask:0xf bank_mask:0xf")
    for r in range(4): a(f"v_bfi_b32 v{vA0+r}, v{vFF}, s{sTB+r}, v{vA0+r}")
    a(f"buffer_store_dwordx4 {vr(vA0,4)}, v{vT}, {sr(rWS,4)}, s{sTMP2} offen sc1")
    a(f"s_cmp_lg_u32 s{sW}, 0"); a("s_cbranch_scc1 L_nocomb")
    rowreduce("v_add_f32", (vSS+1,), (8, 4))
    a(f"v_mov_b32_dpp v{vSS+2}, v{vSS+1} quad_perm:[0,1,2,3] row_mask:0xf bank_mask:0x2")
    for r in range(4): a(f"v_mov_b32_dpp v{vA1+r}, v{vSS+2} quad_perm:[{r},{r},{r},{r}] row_mask:0xf bank_mask:0xf")
    for r in range(4): a(f"v_bfi_b32 v{vA1+r}, v{vFF}, s{sTB+r}, v{vA1+r}")
    a(f"v_lshlrev_b32 v{vT}, 2, v{vL}")
    a(f"s_lshl_b32 s{sTMP2}, s{sCB}, 5"); a(f"s_add_u32 s{sTMP2}, s{sTMP2}, {ML_OFF}")
    a("s_mov_b64 exec, 0x11")
    a(f"buffer_store_dwordx4 {vr(vA1,4)}, v{vT}, {sr(rWS,4)}, s{sTMP2} offen sc1")
    a("s_mov_b64 exec, -1")
    a("L_nocomb:")
    stamp()
    vGS, vXO = vTMP + 8, vTMP + 12
    a(f"s_lshr_b32 s{sTMP}, s2, 3"); a(f"s_lshl_b32 s{sY}, s{sX7}, 4"); a(f"s_add_u32 s{sY}, s{sY}, s{sTMP}")
    a(f"s_cmp_lt_u32 s{sTMP}, 16"); a(f"s_cselect_b32 s{sY}, s{sY}, 999")
    a(f"s_cmp_eq_u32 s{sW}, 2"); a(f"s_cselect_b32 s{sY}, s{sY}, 999")
    a(f"v_lshlrev_b32 v{vTMP+4}, 11, v{vL}")
    a(f"s_cmp_ge_u32 s{sY}, 128"); a("s_cbranch_scc1 L_nog")
    a(f"s_lshl_b32 s{sTMP}, s{sY}, 3"); a(f"v_mov_b32 v{vT}, s{sTMP}")
    a(f"global_load_dwordx2 {vr(vXO,2)}, v{vT}, {sr(sX,2)}")
    a(f"s_lshl_b32 s{sTMP}, s{sY}, 4"); a(f"s_add_u32 s{sTMP}, s{sTMP}, {Y_OFF}")
    for r in range(4): a(f"v_mov_b32 v{vGS+r}, 0")
    a("s_mov_b64 exec, 0x3fff")
    a("L_gpoll:")
    a(f"buffer_load_dwordx4 {vr(vGS,4)}, v{vTMP+4}, {sr(rWS,4)}, s{sTMP} offen sc1")
    a("s_waitcnt vmcnt(0)")
    for r in range(4): a(f"v_xor_b32 v{vGS+r}, s{sTB+r}, v{vGS+r}")
    a(f"v_or3_b32 v{vT}, v{vGS}, v{vGS+1}, v{vGS+2}"); a(f"v_or_b32 v{vT}, v{vT}, v{vGS+3}"); a(f"v_and_b32 v{vT}, v{vFF}, v{vT}")
    a(f"v_cmp_ne_u32 vcc, 0, v{vT}"); a("s_cbranch_vccz L_gok")
    a(f"s_sub_u32 s{sTMO}, s{sTMO}, 1"); a(f"s_cmp_gt_i32 s{sTMO}, 0"); a("s_cbranch_scc1 L_gpoll")
    a("L_gok:")
    a("s_mov_b64 exec, -1")
    rowreduce("v_add_f32", [vGS+r for r in range(4)])
    for r in range(4): a(f"v_cvt_pk_bf16_f32 v{vGS+r}, v{vGS+r}, v{vGS+r}")
    for r in range(4): a(f"v_and_b32 v{vGS+r}, s{sHI}, v{vGS+r}")
    for r in range(4): a(f"v_mul_f32 v{vSS+r}, {f2u(-1.4426950408889634):#x}, v{vGS+r}")
    for r in range(4): a(f"v_exp_f32 v{vSS+r}, v{vSS+r}")
    for r in range(4): a(f"v_add_f32 v{vSS+r}, 1.0, v{vSS+r}")
    for r in range(4): a(f"v_rcp_f32 v{vSS+r}, v{vSS+r}")
    for r in range(4): a(f"v_mul_f32 v{vGS+r}, v{vGS+r}, v{vSS+r}")
    for r in range(4): a(f"v_cvt_pk_bf16_f32 v{vGS+r}, v{vGS+r}, v{vGS+r}")
    for r in range(4): a(f"v_and_b32 v{vGS+r}, s{sHI}, v{vGS+r}")
    a(f"v_and_b32 v{vXO+3}, s{sHI}, v{vXO+1}"); a(f"v_lshlrev_b32 v{vXO+2}, 16, v{vXO+1}")
    a(f"v_and_b32 v{vXO+1}, s{sHI}, v{vXO}"); a(f"v_lshlrev_b32 v{vXO}, 16, v{vXO}")
    a("L_nog:")
    a(f"s_lshr_b32 s{sSTR}, s{sJ}, 2")
    a(f"s_and_b32 s{sCOL}, s{sJ}, 3")
    a(f"s_lshl_b32 s{sTMP}, s{sKVH}, 9"); a(f"s_lshl_b32 s{sTMP2}, s{sW}, 5"); a(f"s_add_u32 s{sTMP}, s{sTMP}, s{sTMP2}"); a(f"s_add_u32 s{sTMP}, s{sTMP}, s{sSTR}")
    a(f"s_lshl_b32 s{sTMP}, s{sTMP}, 10"); a(f"s_lshl_b32 s{sTMP2}, s{sCOL}, 8"); a(f"s_add_u32 s{sTMP}, s{sTMP}, s{sTMP2}")
    a(f"v_and_b32 v{vTMP+5}, 15, v{vL}")
    a(f"v_lshlrev_b32 v{vT}, 4, v{vTMP+5}"); a(f"v_lshl_add_u32 v{vT}, v{vTMP}, 13, v{vT}")
    a(f"s_mov_b64 {sr(rDN,2)}, {sr(sWO,2)}"); a(f"s_mov_b32 s{rDN+2}, {4096*1024}")
    for r in range(4):
        a(f"buffer_load_dwordx4 {vr(vD+4*r,4)}, v{vT}, {sr(rDN,4)}, s{sTMP} offen {wflags}")
        if r < 3: a(f"s_add_u32 s{sTMP}, s{sTMP}, {128*1024}")
    a(f"v_lshlrev_b32 v{vTMP+6}, 11, v{vTMP+5}"); a(f"v_lshl_add_u32 v{vTMP+6}, v{vTMP}, 4, v{vTMP+6}")
    a(f"v_lshlrev_b32 v{vTMP+7}, 5, v{vTMP+5}")
    a(f"s_lshl_b32 s{sTMP}, s{sKVH}, 16"); a(f"s_lshl_b32 s{sTMP2}, s{sSTR}, 8"); a(f"s_add_u32 s{sTMP}, s{sTMP}, s{sTMP2}")
    a(f"s_lshl_b32 s{sTMP2}, s{sW}, 6"); a(f"s_add_u32 s{sTMP}, s{sTMP}, s{sTMP2}"); a(f"s_add_u32 s{sTMP}, s{sTMP}, {P_OFF}")
    a(f"s_add_u32 s{sTMP2}, s{sTMP}, 0x8000")
    a(f"s_lshl_b32 s{sCNT}, s{sKVH}, 10"); a(f"s_add_u32 s{sCNT}, s{sCNT}, {ML_OFF}")
    vMK = vXX
    a(f"v_and_b32 v{vT}, 1, v{vL}"); a(f"v_lshlrev_b32 v{vT}, 4, v{vT}"); a(f"v_mov_b32 v{vMK+4}, 0xffff"); a(f"v_lshlrev_b32 v{vMK+4}, v{vT}, v{vMK+4}")
    a(f"v_bfe_u32 v{vT}, v{vL}, 1, 2")
    for t in range(4):
        a(f"v_cmp_eq_u32 vcc, {t}, v{vT}"); a(f"v_cndmask_b32 v{vMK+t}, 0, v{vMK+4}, vcc")
    O0, O1, M0, M1, L0, L1 = vW, vW+4, vW+8, vW+12, vW+16, vW+20
    a("L_apoll:")
    a(f"buffer_load_dwordx4 {vr(M0,4)}, v{vTMP+7}, {sr(rWS,4)}, s{sCNT} offen sc1")
    a(f"buffer_load_dwordx4 {vr(M1,4)}, v{vTMP+7}, {sr(rWS,4)}, s{sCNT} offen offset:512 sc1")
    a(f"buffer_load_dwordx4 {vr(L0,4)}, v{vTMP+7}, {sr(rWS,4)}, s{sCNT} offen offset:16 sc1")
    a(f"buffer_load_dwordx4 {vr(L1,4)}, v{vTMP+7}, {sr(rWS,4)}, s{sCNT} offen offset:528 sc1")
    a(f"buffer_load_dwordx4 {vr(O0,4)}, v{vTMP+6}, {sr(rWS,4)}, s{sTMP} offen sc1")
    a(f"buffer_load_dwordx4 {vr(O1,4)}, v{vTMP+6}, {sr(rWS,4)}, s{sTMP2} offen sc1")
    a("s_waitcnt vmcnt(0)")
    for i in range(24): a(f"v_xor_b32 v{vW+i}, s{sTB+(i&3)}, v{vW+i}")
    a(f"v_or_b32 v{vT}, v{vW}, v{vW+1}")
    for i in range(2, 24, 2): a(f"v_or3_b32 v{vT}, v{vT}, v{vW+i}, v{vW+i+1}")
    a(f"v_and_b32 v{vT}, v{vFF}, v{vT}")
    a(f"v_cmp_ne_u32 vcc, 0, v{vT}"); a("s_cbranch_vccz L_aok")
    a(f"s_sub_u32 s{sTMO}, s{sTMO}, 1"); a(f"s_cmp_gt_i32 s{sTMO}, 0"); a("s_cbranch_scc1 L_apoll")
    a("L_aok:")
    stamp()
    for r in range(4): a(f"v_min_f32 v{vSS+r}, v{M0+r}, v{M1+r}")
    rowreduce("v_min_f32", [vSS+r for r in range(4)])
    for r in range(4): a(f"v_sub_f32 v{M0+r}, v{vSS+r}, v{M0+r}"); a(f"v_sub_f32 v{M1+r}, v{vSS+r}, v{M1+r}")
    for r in range(8): a(f"v_exp_f32 v{M0+r}, v{M0+r}")
    for r in range(4): a(f"v_mul_f32 v{L0+r}, v{L0+r}, v{M0+r}"); a(f"v_mul_f32 v{O0+r}, v{O0+r}, v{M0+r}")
    for r in range(4): a(f"v_fmac_f32 v{L0+r}, v{L1+r}, v{M1+r}"); a(f"v_fmac_f32 v{O0+r}, v{O1+r}, v{M1+r}")
    rowreduce("v_add_f32", [L0+r for r in range(4)] + [O0+r for r in range(4)])
    for r in range(4): a(f"v_rcp_f32 v{L0+r}, v{L0+r}")
    for r in range(4): a(f"v_mul_f32 v{O0+r}, v{O0+r}, v{L0+r}")
    for r in range(4): a(f"v_cvt_pk_bf16_f32 v{O0+r}, v{O0+r}, v{O0+r}")
    for r in range(4):
        for t in range(4): a(f"v_and_b32 v{vQ+4*r+t}, v{O0+r}, v{vMK+t}")
    for r in range(4): a(f"v_mfma_f32_16x16x32_bf16 {vr(vA0,4)}, {vr(vQ+4*r,4)}, {vr(vD+4*r,4)}, {'0' if r == 0 else vr(vA0,4)}")
    a(f"v_lshl_add_u32 v{vT}, v{vTMP+5}, 1, v{vTMP}"); a(f"v_lshlrev_b32 v{vT}, 4, v{vT}")
    a(f"s_lshl_b32 s{sTMP}, s{sW}, 9"); a(f"v_add_u32 v{vT}, s{sTMP}, v{vT}")
    a("s_mov_b32 exec_hi, 0")
    a(f"ds_write_b128 v{vT}, {vr(vA0,4)} offset:10240")
    a("s_waitcnt lgkmcnt(0)")
    a("s_barrier")
    a(f"s_cmp_lg_u32 s{sW}, 0"); a("s_cbranch_scc1 L_nopub")
    for w in range(4): a(f"ds_read_b128 {vr(vQ+4*w,4)}, v{vVO} offset:{10240+512*w}")
    a(f"s_lshl_b32 s{sTMP}, s{sKVH}, 3"); a(f"s_add_u32 s{sTMP}, s{sTMP}, s{sSTR}"); a(f"s_lshl_b32 s{sTMP}, s{sTMP}, 11")
    a(f"s_lshl_b32 s{sTMP2}, s{sCOL}, 9"); a(f"s_add_u32 s{sTMP}, s{sTMP}, s{sTMP2}"); a(f"s_add_u32 s{sTMP}, s{sTMP}, {S_OFF}")
    a("s_waitcnt lgkmcnt(0)")
    for r in range(4): a(f"v_add_f32 v{vQ+r}, v{vQ+r}, v{vQ+4+r}"); a(f"v_add_f32 v{vQ+8+r}, v{vQ+8+r}, v{vQ+12+r}")
    for r in range(4): a(f"v_add_f32 v{vQ+r}, v{vQ+r}, v{vQ+8+r}")
    for r in range(4): a(f"v_bfi_b32 v{vQ+r}, v{vFF}, s{sTB+r}, v{vQ+r}")
    a(f"buffer_store_dwordx4 {vr(vQ,4)}, v{vVO}, {sr(rWS,4)}, s{sTMP} offen sc1")
    a("L_nopub:")
    a("s_mov_b64 exec, -1")
    a(f"s_cmp_ge_u32 s{sY}, 128"); a("s_cbranch_scc1 L_fin")
    a(f"s_lshl_b32 s{sTMP}, s{sY}, 4"); a(f"s_add_u32 s{sTMP}, s{sTMP}, {S_OFF}")
    a("L_bpoll:")
    a(f"buffer_load_dwordx4 {vr(vSS,4)}, v{vTMP+4}, {sr(rWS,4)}, s{sTMP} offen sc1")
    a("s_waitcnt vmcnt(0)")
    for r in range(4): a(f"v_xor_b32 v{vSS+r}, s{sTB+r}, v{vSS+r}")
    a(f"v_or3_b32 v{vT}, v{vSS}, v{vSS+1}, v{vSS+2}"); a(f"v_or_b32 v{vT}, v{vT}, v{vSS+3}"); a(f"v_and_b32 v{vT}, v{vFF}, v{vT}")
    a(f"v_cmp_ne_u32 vcc, 0, v{vT}"); a("s_cbranch_vccz L_bok")
    a(f"s_sub_u32 s{sTMO}, s{sTMO}, 1"); a(f"s_cmp_gt_i32 s{sTMO}, 0"); a("s_cbranch_scc1 L_bpoll")
    a("L_bok:")
    rowreduce("v_add_f32", [vSS+r for r in range(4)])
    for r in range(4): a(f"v_mov_b32 v{vTT+r}, v{vSS+r}")
    for r in range(4): a(f"v_permlane16_swap_b32 v{vSS+r}, v{vTT+r}")
    for r in range(4): a(f"v_add_f32 v{vSS+r}, v{vSS+r}, v{vTT+r}")
    for r in range(4): a(f"v_mov_b32 v{vTT+r}, v{vSS+r}")
    for r in range(4): a(f"v_permlane32_swap_b32 v{vSS+r}, v{vTT+r}")
    for r in range(4): a(f"v_add_f32 v{vSS+r}, v{vSS+r}, v{vTT+r}")
    for r in range(4): a(f"v_cvt_pk_bf16_f32 v{vSS+r}, v{vSS+r}, v{vSS+r}")
    for r in range(4): a(f"v_and_b32 v{vSS+r}, s{sHI}, v{vSS+r}")
    for r in range(4): a(f"v_mul_f32 v{vSS+r}, v{vSS+r}, v{vGS+r}")
    for r in range(4): a(f"v_cvt_pk_bf16_f32 v{vSS+r}, v{vSS+r}, v{vSS+r}")
    for r in range(4): a(f"v_and_b32 v{vSS+r}, s{sHI}, v{vSS+r}")
    for r in range(4): a(f"v_add_f32 v{vSS+r}, v{vSS+r}, v{vXO+r}")
    a(f"v_cvt_pk_bf16_f32 v{vSS}, v{vSS}, v{vSS+1}"); a(f"v_cvt_pk_bf16_f32 v{vSS+1}, v{vSS+2}, v{vSS+3}")
    a(f"s_lshl_b32 s{sTMP}, s{sY}, 3"); a(f"v_mov_b32 v{vT}, s{sTMP}")
    a("s_mov_b64 exec, 1")
    a(f"global_store_dwordx2 v{vT}, {vr(vSS,2)}, {sr(sOUT,2)}")
    a(f"s_cmp_lg_u32 s{sY}, 0"); a("s_cbranch_scc1 L_fin")
    a(f"v_mov_b32 v{vSS+2}, s{sT}"); a(f"s_mov_b32 s{sTMP}, {E_OFF}")
    a(f"buffer_store_dword v{vSS+2}, v{vT}, {sr(rWS,4)}, s{sTMP} offen sc1")
    a("L_fin:")
    if stamps:
        stamp()
        a("s_mov_b64 exec, -1")
        a("s_waitcnt lgkmcnt(0)")
        for i in range(nst[0]): a(f"v_writelane_b32 v{vT}, s{sST+2*i}, {i}")
        a(f"v_writelane_b32 v{vT}, s{sTMO}, 15")
        a(f"s_lshl_b32 s{sTMP}, s2, 2"); a(f"s_add_u32 s{sTMP}, s{sTMP}, s{sW}"); a(f"s_lshl_b32 s{sTMP}, s{sTMP}, 6"); a(f"s_add_u32 s{sTMP}, s{sTMP}, {ST_OFF}")
        a(f"v_lshlrev_b32 v{vSS}, 2, v{vL}")
        a("s_mov_b64 exec, 0xffff")
        a(f"buffer_store_dword v{vT}, v{vSS}, {sr(rWS,4)}, s{sTMP} offen")
    a("L_done:")
    a("s_endpgm")
    a("L_qretry:")
    a(f"s_sub_u32 s{sTMO}, s{sTMO}, 1"); a(f"s_cmp_le_i32 s{sTMO}, 0"); a("s_cbranch_scc1 L_qok")
    qloads()
    a("s_waitcnt vmcnt(0)")
    a("s_branch L_qchk")
    for s in range(S):
        a(f"L_resc{s}:"); a(f"s_mov_b32 s{sRET}, {s}")
        if s < S-1: a("s_branch L_resc")
    a("L_resc:")
    a(f"v_max3_f32 v{vT}, v{vSS}, v{vSS+1}, v{vSS+2}"); a(f"v_max_f32 v{vT}, v{vT}, v{vSS+3}")
    a(f"v_mul_f32 v{vT}, {f2u(-1.4426950408889634):#x}, v{vT}")
    allreduce_rows("v_min_f32", vT, vXX)
    a(f"v_min_f32 v{vT}, v{vT}, v{vNM}")
    a(f"v_sub_f32 v{vXX}, v{vT}, v{vNM}")
    a(f"v_mov_b32 v{vNM}, v{vT}")
    a(f"v_exp_f32 v{vXX}, v{vXX}")
    for i in range(4): a(f"v_fma_f32 v{vTT+i}, v{vSS+i}, s{sL2E}, v{vNM}")
    a(f"v_mul_f32 v{vLS}, v{vLS}, v{vXX}")
    for acc in (vA0, vA1):
        for r in range(4): a(f"v_mul_f32_dpp v{acc+r}, v{vXX}, v{acc+r} quad_perm:[{r},{r},{r},{r}] row_mask:0xf bank_mask:0xf")
    for s in range(S-1):
        a(f"s_cmp_eq_u32 s{sRET}, {s}"); a(f"s_cbranch_scc1 L_back{s}")
    a(f"s_branch L_back{S-1}")
    body = a.finish()
    pad = "L_codeend:\n"
    txt = HEADER + f"; @launch grid=(256,1,1) block=(256,1,1) lds={lds}\n"
    txt += f'.amdgcn_target "amdgcn-amd-amdhsa--gfx950"\n.text\n.globl {NAME}_kernel\n.p2align 8\n.type {NAME}_kernel,@function\n'
    txt += body + pad
    txt += f'''.section .rodata,"a"
.p2align 6
.amdhsa_kernel {NAME}_kernel
  .amdhsa_next_free_vgpr 256
  .amdhsa_next_free_sgpr 102
  .amdhsa_accum_offset 256
  .amdhsa_group_segment_fixed_size 0
  .amdhsa_kernarg_size 96
  .amdhsa_user_sgpr_count 2
  .amdhsa_user_sgpr_kernarg_segment_ptr 1
  .amdhsa_system_sgpr_workgroup_id_x 1
  .amdhsa_float_denorm_mode_32 3
.end_amdhsa_kernel
'''
    return txt

if __name__ == "__main__":
    kw = {}
    for x in sys.argv[2:]:
        k, v = x.split("=", 1)
        try: v = eval(v)
        except Exception: pass
        kw[k] = v
    open(sys.argv[1], "w").write(gen(**kw))
```

```python
import sys, struct
from asmlib import Asm
NAME = "recurrent_scan__gqa_block_cached__glu_gated_glu__decode"
def f2u(x): return struct.unpack("<I", struct.pack("<f", x))[0]

HEADER = open("cdna_kernels/%s.s.ref" % NAME).read().split("; Override launch")[0]

def gen(S=4, hmap="low", lds=98304, kvflags="nt", wflags="nt", wsbase=0, stamps=False, thr=8.0, codepf=True, tmo=1<<16, diag=None):
    a = Asm()
    E_OFF, A1_OFF, Y_OFF, ML_OFF, S_OFF, P_OFF, ST_OFF = [wsbase + x for x in (0, 0x1000, 0x10000, 0x20000, 0x40000, 0x80000, 0x100000)]
    WS_BYTES = 0x20000000
    sX, sK, sV, sWQ, sWO, sG, sU, sDN, sOUT, sWS = 4, 6, 8, 10, 12, 16, 18, 20, 22, 26
    rK, rV, rW1, rWS, rDN = 28, 32, 36, 40, 44
    sW, sKVH, sJ, sOFF, sCB, sSTR, sT, sTMP, sTMP2, sCNT, sRET, sTLO, sTHI = 48, 49, 50, 51, 52, 53, 54, 55, 56, 57, 58, 59, 60
    sTB = 64
    sSC, sL2E, sHI, sTHR, sTMO, sX7, sE, sCOL, sY = 68, 69, 70, 71, 72, 73, 74, 75, 76
    sPC = 78
    sST = 80
    vL, vKO, vVO, vM0, vM1, vNM, vLS, vT = 0, 1, 2, 3, 4, 5, 6, 7
    vA0, vA1, vSS, vTT, vXX, vQ, vTMP = 8, 12, 16, 20, 24, 32, 48
    vSLOT = 64
    vW = vSLOT + 32*S
    vD = vW + 32
    assert vD + 32 <= 256
    def vr(b, n): return f"v[{b}:{b+n-1}]"
    def sr(b, n): return f"s[{b}:{b+n-1}]"
    nst = [0]
    def stamp():
        if stamps or diag:
            a(f"s_memrealtime s[{sST+2*nst[0]}:{sST+2*nst[0]+1}]"); nst[0] += 1
    def allreduce_rows(op, v, t):
        a(f"v_mov_b32 v{t}, v{v}"); a(f"v_permlane16_swap_b32 v{v}, v{t}"); a(f"{op} v{v}, v{v}, v{t}")
        a(f"v_mov_b32 v{t}, v{v}"); a(f"v_permlane32_swap_b32 v{v}, v{t}"); a(f"{op} v{v}, v{v}, v{t}")
    def rowreduce(op, vs, steps=(8, 4, 2, 1)):
        for st in steps:
            for v in vs: a(f"{op}_dpp v{v}, v{v}, v{v} row_ror:{st} row_mask:0xf bank_mask:0xf")
    def unpack(dst, src, n):
        for i in range(n):
            a(f"v_lshlrev_b32 v{dst+2*i}, 16, v{src+i}"); a(f"v_and_b32 v{dst+2*i+1}, s{sHI}, v{src+i}")
    def issueK(s):
        for jj in range(4): a(f"buffer_load_dwordx4 {vr(vSLOT+32*s+4*jj,4)}, v{vKO}, {sr(rK,4)}, s{sOFF} offen offset:{64*jj} {kvflags}")
    def issueV(s):
        for i in range(4): a(f"buffer_load_dwordx4 {vr(vSLOT+32*s+16+4*i,4)}, v{vVO}, {sr(rV,4)}, s{sOFF} offen offset:{1024*i} {kvflags}")
        a(f"s_add_u32 s{sOFF}, s{sOFF}, 0x4000")
    def gemv128x32(vAop, vB, waits):
        for i in range(8):
            if waits is not None: a(f"s_waitcnt vmcnt({waits-1-i})")
            c0 = "0" if i == 0 else vr(vA0,4); c1 = "0" if i == 0 else vr(vA1,4)
            a(f"v_mfma_f32_16x16x16_bf16 {vr(vA0,4)}, {vr(vAop+2*i,2)}, {vr(vB+4*i,2)}, {c0}")
            a(f"v_mfma_f32_16x16x16_bf16 {vr(vA1,4)}, {vr(vAop+2*i,2)}, {vr(vB+4*i+2,2)}, {c1}")
        for b in (1, 2, 3):
            for acc in (vA0, vA1): a(f"v_mov_b32_dpp v{acc}, v{acc+b} quad_perm:[0,1,2,3] row_mask:0xf bank_mask:{1<<b:#x}")
        rowreduce("v_add_f32", (vA0, vA1), (8, 4))

    a(f"{NAME}_kernel:")
    stamp()
    a("s_cmp_ge_u32 s2, 256"); a("s_cbranch_scc1 L_done")
    a("s_load_dwordx16 s[4:19], s[0:1], 0"); a("s_load_dwordx8 s[20:27], s[0:1], 64")
    if codepf:
        a(f"s_getpc_b64 {sr(sPC,2)}")
        a("L_pc:")
        a(f"v_lshlrev_b32 v{vT}, 6, v0")
        a(f"v_min_u32 v{vT}, L_codeend-L_pc-4, v{vT}")
        a(f"global_load_dword v{vD}, v{vT}, {sr(sPC,2)}")
    a(f"v_lshrrev_b32 v{vKO}, 6, v0"); a(f"v_and_b32 v{vL}, 63, v0")
    a(f"v_readfirstlane_b32 s{sW}, v{vKO}")
    a(f"s_and_b32 s{sX7}, s2, 7"); a(f"s_lshr_b32 s{sTMP2}, s2, 3")
    if hmap == "low":
        a(f"s_mov_b32 s{sKVH}, s{sX7}"); a(f"s_mov_b32 s{sJ}, s{sTMP2}")
    else:
        a(f"s_lshr_b32 s{sKVH}, s2, 5"); a(f"s_and_b32 s{sJ}, s2, 31")
    a(f"s_mul_i32 s{sCB}, s{sX7}, 30"); a(f"s_add_u32 s{sCB}, s{sCB}, s{sTMP2}")
    a(f"s_movk_i32 s{sCOL}, 184"); a(f"s_cmp_lt_u32 s{sCB}, s{sCOL}"); a(f"s_cselect_b32 s{sCOL}, 128, s{sCOL}")
    a(f"s_cmp_lt_u32 s{sCB}, 128"); a(f"s_cselect_b32 s{sCOL}, 0, s{sCOL}")
    a(f"s_movk_i32 s{sSTR}, 3584"); a(f"s_cselect_b32 s{sSTR}, 8192, s{sSTR}")
    a(f"s_sub_u32 s{sCOL}, s{sCB}, s{sCOL}"); a(f"s_lshl_b32 s{sCOL}, s{sCOL}, 6")
    a(f"s_lshl_b32 s{sTMP}, s{sW}, 7"); a(f"s_mul_i32 s{sTMP}, s{sTMP}, s{sSTR}"); a(f"s_add_u32 s{sCOL}, s{sCOL}, s{sTMP}")
    a(f"v_lshlrev_b32 v{vVO}, 4, v{vL}")
    a(f"v_lshrrev_b32 v{vTMP}, 4, v{vL}")
    a(f"v_and_b32 v{vTMP+1}, 3, v{vL}")
    a(f"v_bfe_u32 v{vTMP+2}, v{vL}, 2, 2")
    a(f"v_lshl_add_u32 v{vTMP+3}, v{vTMP}, 2, v{vTMP+1}")
    a(f"v_lshlrev_b32 v{vTMP+3}, 4, v{vTMP+3}")
    a(f"s_lshl_b32 s{sTMP}, s{sW}, 8"); a(f"v_add_u32 v{vTMP+4}, s{sTMP}, v{vTMP+3}")
    a(f"v_lshrrev_b32 v{vTMP+5}, 2, v{vL}"); a(f"s_lshl_b32 s{sTMP}, s{sSTR}, 3")
    a(f"v_mul_u32_u24 v{vTMP+5}, s{sTMP}, v{vTMP+5}"); a(f"v_lshl_add_u32 v{vTMP+5}, v{vTMP+1}, 4, v{vTMP+5}")
    a(f"v_lshl_add_u32 v{vKO}, v{vTMP+1}, 2, v{vTMP+2}")
    a(f"v_lshlrev_b32 v{vKO}, 8, v{vKO}"); a(f"v_lshl_add_u32 v{vKO}, v{vTMP}, 4, v{vKO}")
    a(f"s_lshl_b32 s{sOFF}, s{sKVH}, 24"); a(f"s_lshl_b32 s{sTMP}, s{sJ}, 19"); a(f"s_add_u32 s{sOFF}, s{sOFF}, s{sTMP}")
    a(f"s_lshl_b32 s{sTMP}, s{sW}, 12"); a(f"s_add_u32 s{sOFF}, s{sOFF}, s{sTMP}")
    a(f"v_mov_b32 v{vNM}, {E_OFF}")
    a(f"s_mov_b32 s{rW1+3}, 0x20000"); a(f"s_mov_b32 s{rK+2}, 0x8000000"); a(f"s_mov_b32 s{rK+3}, 0x20000")
    a(f"s_mov_b32 s{rV+2}, 0x8000000"); a(f"s_mov_b32 s{rV+3}, 0x20000")
    a(f"s_lshl_b32 s{rW1+2}, s{sSTR}, 9"); a(f"s_cmp_lt_u32 s{sTMP2}, 30"); a(f"s_cselect_b32 s{rW1+2}, s{rW1+2}, 0")
    a("s_waitcnt lgkmcnt(0)")
    stamp()
    a(f"global_load_dword v{vNM}, v{vNM}, {sr(sWS,2)} sc1")
    a(f"global_load_dwordx4 {vr(vSS,4)}, v{vVO}, {sr(sX,2)}")
    a(f"global_load_dwordx4 {vr(vTT,4)}, v{vTMP+4}, {sr(sX,2)}")
    a(f"s_cmp_lt_u32 s{sCB}, 184"); a(f"s_cselect_b64 {sr(rW1,2)}, {sr(sG,2)}, {sr(sU,2)}")
    a(f"s_cmp_lt_u32 s{sCB}, 128"); a(f"s_cselect_b64 {sr(rW1,2)}, {sr(sWQ,2)}, {sr(rW1,2)}")
    for i in range(8):
        a(f"buffer_load_dwordx4 {vr(vW+4*i,4)}, v{vTMP+5}, {sr(rW1,4)}, s{sCOL} offen {wflags}")
        if i < 7: a(f"s_add_u32 s{sCOL}, s{sCOL}, s{sSTR}")
    a(f"s_mov_b64 {sr(rK,2)}, {sr(sK,2)}"); a(f"s_mov_b64 {sr(rV,2)}, {sr(sV,2)}")
    issueK(0); issueV(0)
    a(f"s_mov_b32 s{sHI}, 0xffff0000"); a(f"s_mov_b32 s{sSC}, {f2u(128**-0.5):#x}"); a(f"s_mov_b32 s{sL2E}, {f2u(1.4426950408889634):#x}")
    a(f"s_mov_b32 s{sTHR}, {f2u(thr):#x}")
    a(f"s_mov_b64 {sr(rWS,2)}, {sr(sWS,2)}"); a(f"s_mov_b32 s{rWS+2}, {WS_BYTES:#x}"); a(f"s_mov_b32 s{rWS+3}, 0x20000")
    a(f"v_and_b32 v{vT}, 1, v{vTMP+2}"); a(f"v_lshlrev_b32 v{vT}, 4, v{vT}"); a(f"v_mov_b32 v{vM1}, 0xffff"); a(f"v_lshlrev_b32 v{vM1}, v{vT}, v{vM1}")
    a(f"v_cmp_gt_u32 vcc, 2, v{vTMP+2}"); a(f"v_cndmask_b32 v{vM0}, 0, v{vM1}, vcc"); a(f"v_xor_b32 v{vM1}, v{vM1}, v{vM0}")
    a("s_waitcnt vmcnt(16)")
    a(f"v_readfirstlane_b32 s{sE}, v{vNM}")
    F = vTMP + 8
    unpack(F, vSS, 4)
    a(f"v_add_f32 v{vA0}, v{F}, v{F+1}")
    for i in range(2, 8): a(f"v_add_f32 v{vA0}, v{vA0}, v{F+i}")
    rowreduce("v_add_f32", (vA0,)); allreduce_rows("v_add_f32", vA0, vT)
    a(f"v_mul_f32 v{vA0}, {f2u(1/512):#x}, v{vA0}")
    for i in range(8): a(f"v_sub_f32 v{F+i}, v{F+i}, v{vA0}")
    a(f"v_mul_f32 v{vA1}, v{F}, v{F}")
    for i in range(1, 8): a(f"v_fmac_f32 v{vA1}, v{F+i}, v{F+i}")
    rowreduce("v_add_f32", (vA1,)); allreduce_rows("v_add_f32", vA1, vT)
    a(f"v_mul_f32 v{vA1}, {f2u(1/512):#x}, v{vA1}")
    a(f"v_cvt_pk_bf16_f32 v{vA0}, v{vA0}, v{vA1}")
    a(f"v_and_b32 v{vA1}, s{sHI}, v{vA0}"); a(f"v_lshlrev_b32 v{vA0}, 16, v{vA0}")
    a(f"v_add_f32 v{vA1}, {f2u(1e-5):#x}, v{vA1}")
    a(f"v_cvt_pk_bf16_f32 v{vA1}, v{vA1}, v{vA1}"); a(f"v_and_b32 v{vA1}, s{sHI}, v{vA1}")
    a(f"v_sqrt_f32 v{vA1}, v{vA1}")
    a(f"v_cvt_pk_bf16_f32 v{vA1}, v{vA1}, v{vA1}"); a(f"v_and_b32 v{vA1}, s{sHI}, v{vA1}")
    a(f"v_rcp_f32 v{vA1}, v{vA1}")
    unpack(F, vTT, 4)
    for i in range(8): a(f"v_sub_f32 v{F+i}, v{F+i}, v{vA0}")
    for i in range(4): a(f"v_cvt_pk_bf16_f32 v{vTT+i}, v{F+2*i}, v{F+2*i+1}")
    unpack(F, vTT, 4)
    for i in range(8): a(f"v_mul_f32 v{F+i}, v{F+i}, v{vA1}")
    for i in range(8): a(f"v_cvt_pk_bf16_f32 v{F+i}, v{F+i}, v{F+i}")
    for i in range(8):
        a(f"v_and_b32 v{vQ+2*i}, v{F+i}, v{vM0}"); a(f"v_and_b32 v{vQ+2*i+1}, v{F+i}, v{vM1}")
    gemv128x32(vQ, vW, 16)
    a(f"v_lshl_add_u32 v{vT}, v{vTMP+1}, 3, v{vTMP}"); a(f"v_lshlrev_b32 v{vT}, 2, v{vT}")
    a(f"v_mov_b32 v{vTMP+6}, v{vT}")
    a(f"s_lshl_b32 s{sTMP}, s{sW}, 7"); a(f"v_add_u32 v{vT}, s{sTMP}, v{vT}")
    a(f"ds_write2_b32 v{vT}, v{vA0}, v{vA1} offset0:0 offset1:4")
    a("s_waitcnt lgkmcnt(0)")
    a(f"s_add_u32 s{sT}, s{sE}, 0x01010101")
    a(f"s_and_b32 s{sTLO}, s{sT}, 0xffff"); a(f"s_lshr_b32 s{sTHI}, s{sT}, 16")
    for k in range(4): a(f"s_bfe_u32 s{sTB+k}, s{sT}, {(8<<16)|(8*k):#x}")
    a("s_barrier")
    a(f"s_cmp_lg_u32 s{sW}, 0"); a("s_cbranch_scc1 L_pub1_done")
    a(f"s_cmp_eq_u32 s{rW1+2}, 0"); a("s_cbranch_scc1 L_pub1_done")
    a("s_mov_b64 exec, 0xff")
    for w in range(4): a(f"ds_read_b128 {vr(vA0+4*w,4)}, v{vVO} offset:{128*w}")
    a(f"s_lshl_b32 s{sTMP}, s{sCB}, 7"); a(f"s_add_u32 s{sTMP}, s{sTMP}, {A1_OFF}")
    a(f"v_mov_b32 v{vT}, s{sHI}")
    a("s_waitcnt lgkmcnt(0)")
    for r in range(4): a(f"v_add_f32 v{vA0+r}, v{vA0+r}, v{vA0+4+r}"); a(f"v_add_f32 v{vA0+8+r}, v{vA0+8+r}, v{vA0+12+r}")
    for r in range(4): a(f"v_add_f32 v{vA0+r}, v{vA0+r}, v{vA0+8+r}")
    a(f"v_cvt_pk_bf16_f32 v{vA0+1}, v{vA0}, v{vA0+1}"); a(f"v_cvt_pk_bf16_f32 v{vA0+3}, v{vA0+2}, v{vA0+3}")
    a(f"v_lshl_or_b32 v{vA0}, v{vA0+1}, 16, s{sTLO}"); a(f"v_and_or_b32 v{vA0+1}, v{vA0+1}, v{vT}, s{sTHI}")
    a(f"v_lshl_or_b32 v{vA0+2}, v{vA0+3}, 16, s{sTLO}"); a(f"v_and_or_b32 v{vA0+3}, v{vA0+3}, v{vT}, s{sTHI}")
    a(f"buffer_store_dwordx4 {vr(vA0,4)}, v{vVO}, {sr(rWS,4)}, s{sTMP} offen sc1")
    a("s_mov_b64 exec, -1")
    a("L_pub1_done:")
    stamp()
    for s in range(1, S-1): issueK(s); issueV(s)
    a(f"s_lshr_b32 s{sTMP}, s2, 7"); a(f"s_lshl_b32 s{sY}, s{sTMP}, 3"); a(f"s_add_u32 s{sY}, s{sY}, s{sX7}")
    a(f"s_cmp_eq_u32 s{sW}, 3"); a(f"s_cselect_b32 s{sY}, s{sY}, 99")
    a(f"s_mov_b64 {sr(rDN,2)}, {sr(sDN,2)}"); a(f"s_mov_b32 s{rDN+2}, {1792*1024}"); a(f"s_mov_b32 s{rDN+3}, 0x20000")
    a(f"s_cmp_ge_u32 s{sY}, 14"); a("s_cbranch_scc1 L_noyload")
    a(f"s_bfe_u32 s{sCOL}, s2, {(4<<16)|3:#x}")
    a(f"s_lshl_b32 s{sTMP}, s{sY}, 17"); a(f"s_lshl_b32 s{sTMP2}, s{sCOL}, 6"); a(f"s_add_u32 s{sTMP}, s{sTMP}, s{sTMP2}")
    a(f"s_add_u32 s{sTMP2}, s{sTMP}, 4096")
    a(f"v_lshrrev_b32 v{vT}, 2, v{vL}"); a(f"v_lshlrev_b32 v{vT}, 13, v{vT}"); a(f"v_lshl_add_u32 v{vT}, v{vTMP+1}, 4, v{vT}")
    for i in range(8): a(f"buffer_load_dwordx4 {vr(vD+4*i,4)}, v{vT}, {sr(rDN,4)}, s{sTMP if i < 4 else sTMP2} offen offset:{1024*(i&3)} {wflags}")
    a("L_noyload:")
    a(f"v_lshlrev_b32 v{vTMP+7}, 9, v{vTMP+1}"); a(f"v_lshl_add_u32 v{vTMP+7}, v{vTMP}, 5, v{vTMP+7}")
    a(f"s_lshl_b32 s{sCB}, s{sKVH}, 11"); a(f"s_add_u32 s{sCB}, s{sCB}, {A1_OFF}")
    def qloads():
        for jj in range(4):
            for h in range(2): a(f"buffer_load_dwordx4 {vr(vW+8*jj+4*h,4)}, v{vTMP+7}, {sr(rWS,4)}, s{sCB} offen offset:{128*jj+16*h} sc1")
    qloads()
    issueK(S-1); issueV(S-1)
    a(f"s_mov_b32 s{sTMO}, {tmo}")
    a(f"s_mov_b32 s{sTMP}, 0x05040100"); a(f"s_mov_b32 s{sTMP2}, 0x07060302")
    a("s_waitcnt vmcnt(8)")
    a("L_qchk:")
    a(f"v_mov_b32 v{vT}, 0")
    for p in range(0, 16, 2):
        a(f"v_perm_b32 v{vA0}, v{vW+2*p+1}, v{vW+2*p}, s{sTMP}"); a(f"v_perm_b32 v{vA0+1}, v{vW+2*p+3}, v{vW+2*p+2}, s{sTMP}")
        a(f"v_xor_b32 v{vA0}, s{sT}, v{vA0}"); a(f"v_xor_b32 v{vA0+1}, s{sT}, v{vA0+1}")
        a(f"v_or3_b32 v{vT}, v{vT}, v{vA0}, v{vA0+1}")
    a(f"v_cmp_ne_u32 vcc, 0, v{vT}"); a("s_cbranch_vccnz L_qretry")
    a("L_qok:")
    for p in range(16): a(f"v_perm_b32 v{vQ+p}, v{vW+2*p+1}, v{vW+2*p}, s{sTMP2}")
    stamp()
    a(f"s_cmp_ge_u32 s{sY}, 14"); a("s_cbranch_scc1 L_noy")
    a(f"s_lshl_b32 s{sCB}, s{sY}, 9"); a(f"s_add_u32 s{sCB}, s{sCB}, {A1_OFF + 4096*4}"); a(f"s_add_u32 s{sCNT}, s{sCB}, {1792*4}")
    a(f"v_lshlrev_b32 v{vTMP+3}, 1, v{vTMP+3}")
    a("L_ypoll:")
    for h in range(2): a(f"buffer_load_dwordx4 {vr(vW+4*h,4)}, v{vTMP+3}, {sr(rWS,4)}, s{sCB} offen offset:{16*h} sc1")
    for h in range(2): a(f"buffer_load_dwordx4 {vr(vW+8+4*h,4)}, v{vTMP+3}, {sr(rWS,4)}, s{sCNT} offen offset:{16*h} sc1")
    a("s_waitcnt vmcnt(0)")
    a(f"v_mov_b32 v{vT}, 0")
    for p in range(0, 16, 2):
        a(f"v_xor_b32 v{vW+p}, s{sTLO}, v{vW+p}"); a(f"v_xor_b32 v{vW+p+1}, s{sTHI}, v{vW+p+1}")
        a(f"v_or3_b32 v{vT}, v{vT}, v{vW+p}, v{vW+p+1}")
    a(f"v_and_b32 v{vT}, 0xffff, v{vT}")
    a(f"v_cmp_ne_u32 vcc, 0, v{vT}"); a("s_cbranch_vccz L_yok")
    a(f"s_sub_u32 s{sTMO}, s{sTMO}, 1"); a(f"s_cmp_gt_i32 s{sTMO}, 0"); a("s_cbranch_scc1 L_ypoll")
    a("L_yok:")
    for i in range(8): a(f"v_mul_f32 v{vW+i}, {f2u(-1.4426950408889634):#x}, v{vW+i}")
    for i in range(8): a(f"v_exp_f32 v{vW+i}, v{vW+i}")
    for i in range(8): a(f"v_add_f32 v{vW+i}, 1.0, v{vW+i}")
    for i in range(8): a(f"v_rcp_f32 v{vW+i}, v{vW+i}")
    for i in range(8): a(f"v_cvt_pk_bf16_f32 v{vW+i}, v{vW+i}, v{vW+i}")
    for i in range(8): a(f"v_and_b32 v{vW+i}, s{sHI}, v{vW+i}")
    for i in range(8): a(f"v_mul_f32 v{vW+i}, v{vW+i}, v{vW+8+i}")
    for i in range(8): a(f"v_cvt_pk_bf16_f32 v{vW+i}, v{vW+i}, v{vW+i}")
    for i in range(8):
        a(f"v_and_b32 v{vW+16+2*i}, v{vW+i}, v{vM0}"); a(f"v_and_b32 v{vW+16+2*i+1}, v{vW+i}, v{vM1}")
    gemv128x32(vW+16, vD, None)
    a(f"ds_write2_b32 v{vTMP+6}, v{vA0}, v{vA1} offset0:128 offset1:132")
    a("s_waitcnt lgkmcnt(0)")
    a("s_mov_b64 exec, 0xff")
    a(f"ds_read_b128 {vr(vA0,4)}, v{vVO} offset:512")
    a(f"s_lshl_b32 s{sTMP}, s{sY}, 11"); a(f"s_lshl_b32 s{sTMP2}, s{sCOL}, 7"); a(f"s_add_u32 s{sTMP}, s{sTMP}, s{sTMP2}"); a(f"s_add_u32 s{sTMP}, s{sTMP}, {Y_OFF}")
    a(f"v_mov_b32 v{vT}, 0xff")
    a("s_waitcnt lgkmcnt(0)")
    for r in range(4): a(f"v_bfi_b32 v{vA0+r}, v{vT}, s{sTB+r}, v{vA0+r}")
    a(f"buffer_store_dwordx4 {vr(vA0,4)}, v{vVO}, {sr(rWS,4)}, s{sTMP} offen sc1")
    a("s_mov_b64 exec, -1")
    a("s_nop 1")
    a("L_noy:")
    for r in range(8): a(f"v_mov_b32 v{vA0+r}, 0")
    a(f"v_mov_b32 v{vNM}, {f2u(3e38):#x}"); a(f"v_mov_b32 v{vLS}, 0")
    a(f"s_mov_b32 s{sCNT}, {32//S}")
    assert 32 % S == 0
    N = 8*S - 4
    a(".p2align 3")
    a("L_loop:")
    a(f"s_cmp_eq_u32 s{sCNT}, 1"); a(f"s_cselect_b32 s{rK+2}, 0, s{rK+2}"); a(f"s_cselect_b32 s{rV+2}, 0, s{rV+2}")
    for s in range(S):
        kb = vSLOT + 32*s; vb = kb + 16
        a(f"s_waitcnt vmcnt({N})")
        for jj in range(4):
            a(f"v_mfma_f32_16x16x32_bf16 {vr(vSS,4)}, {vr(kb+4*jj,4)}, {vr(vQ+4*jj,4)}, {'0' if jj == 0 else vr(vSS,4)}")
        issueK(s)
        a(f"v_cvt_pk_bf16_f32 v{vSS}, v{vSS}, v{vSS+1}"); a(f"v_cvt_pk_bf16_f32 v{vSS+1}, v{vSS+2}, v{vSS+3}")
        unpack(vTT, vSS, 2)
        for i in range(4): a(f"v_mul_f32 v{vTT+i}, s{sSC}, v{vTT+i}")
        a(f"v_cvt_pk_bf16_f32 v{vTT}, v{vTT}, v{vTT+1}"); a(f"v_cvt_pk_bf16_f32 v{vTT+1}, v{vTT+2}, v{vTT+3}")
        unpack(vSS, vTT, 2)
        for i in range(4): a(f"v_fma_f32 v{vTT+i}, v{vSS+i}, s{sL2E}, v{vNM}")
        a(f"v_max3_f32 v{vT}, v{vTT}, v{vTT+1}, v{vTT+2}"); a(f"v_max_f32 v{vT}, v{vT}, v{vTT+3}")
        a(f"v_cmp_lt_f32 vcc, s{sTHR}, v{vT}"); a(f"s_cbranch_vccnz L_resc{s}")
        a(f"L_back{s}:")
        for i in range(4): a(f"v_exp_f32 v{vTT+i}, v{vTT+i}")
        for i in range(4): a(f"v_cvt_pk_bf16_f32 v{vSS+i}, v{vTT+i}, v{vTT+i}")
        for i in range(4):
            a(f"v_and_b32 v{vXX+2*i}, v{vSS+i}, v{vM0}"); a(f"v_and_b32 v{vXX+2*i+1}, v{vSS+i}, v{vM1}")
        a(f"v_add_f32 v{vTT}, v{vTT}, v{vTT+1}"); a(f"v_add_f32 v{vTT+2}, v{vTT+2}, v{vTT+3}")
        a(f"s_waitcnt vmcnt({N})")
        for i in range(4):
            a(f"v_mfma_f32_16x16x16_bf16 {vr(vA0,4)}, {vr(vXX+2*i,2)}, {vr(vb+4*i,2)}, {vr(vA0,4)}")
            a(f"v_mfma_f32_16x16x16_bf16 {vr(vA1,4)}, {vr(vXX+2*i,2)}, {vr(vb+4*i+2,2)}, {vr(vA1,4)}")
            if i == 0: a(f"v_add_f32 v{vLS}, v{vLS}, v{vTT}")
            if i == 1: a(f"v_add_f32 v{vLS}, v{vLS}, v{vTT+2}")
        issueV(s)
    a(f"s_sub_u32 s{sCNT}, s{sCNT}, 1"); a(f"s_cmp_lg_u32 s{sCNT}, 0"); a("s_cbranch_scc1 L_loop")
    stamp()
    allreduce_rows("v_add_f32", vLS, vT)
    a(f"s_lshl_b32 s{sTMP}, s{sW}, 11"); a(f"v_add_u32 v{vT}, s{sTMP}, v{vVO}")
    a(f"ds_write_b128 v{vT}, {vr(vA0,4)} offset:1024"); a(f"ds_write_b128 v{vT}, {vr(vA1,4)} offset:2048")
    a(f"s_lshl_b32 s{sTMP}, s{sW}, 4"); a(f"v_lshl_add_u32 v{vT}, v{vTMP+1}, 2, s{sTMP}")
    a(f"ds_write2_b32 v{vT}, v{vNM}, v{vLS} offset0:192 offset1:208")
    a(f"v_mov_b32 v{vKO}, 0xff")
    vFF = vKO
    a(f"s_lshl_b32 s{sCB}, s{sKVH}, 5"); a(f"s_add_u32 s{sCB}, s{sCB}, s{sJ}")
    a("s_waitcnt lgkmcnt(0)")
    a("s_barrier")
    a(f"s_cmp_ge_u32 s{sW}, 2"); a("s_cbranch_scc1 L_nocomb")
    a(f"v_and_b32 v{vT}, 15, v{vL}"); a(f"v_lshlrev_b32 v{vT}, 2, v{vT}")
    a(f"ds_read2_b32 {vr(vSS,2)}, v{vT} offset0:192 offset1:208")
    a(f"s_lshl_b32 s{sTMP}, s{sW}, 10"); a(f"v_add_u32 v{vT}, s{sTMP}, v{vVO}")
    for w in range(4): a(f"ds_read_b128 {vr(vQ+4*w,4)}, v{vT} offset:{1024+2048*w}")
    a(f"s_lshl_b32 s{sTMP2}, s{sCB}, 11"); a(f"s_add_u32 s{sTMP2}, s{sTMP2}, {P_OFF}")
    a("s_waitcnt lgkmcnt(4)")
    a(f"v_min_f32_dpp v{vSS+2}, v{vSS}, v{vSS} row_ror:4 row_mask:0xf bank_mask:0xf")
    a(f"v_min_f32_dpp v{vSS+2}, v{vSS+2}, v{vSS+2} row_ror:8 row_mask:0xf bank_mask:0xf")
    a(f"v_and_b32 v{vSS+2}, 0xffffff00, v{vSS+2}")
    a(f"v_sub_f32 v{vSS}, v{vSS+2}, v{vSS}")
    a(f"v_exp_f32 v{vSS}, v{vSS}")
    a(f"v_mul_f32 v{vSS+1}, v{vSS}, v{vSS+1}")
    a("s_waitcnt lgkmcnt(0)")
    for r in range(4): a(f"v_mul_f32_dpp v{vA0+r}, v{vSS}, v{vQ+r} row_newbcast:{r} row_mask:0xf bank_mask:0xf")
    for w in range(1, 4):
        for r in range(4): a(f"v_fmac_f32_dpp v{vA0+r}, v{vSS}, v{vQ+4*w+r} row_newbcast:{4*w+r} row_mask:0xf bank_mask:0xf")
    for r in range(4): a(f"v_bfi_b32 v{vA0+r}, v{vFF}, s{sTB+r}, v{vA0+r}")
    a(f"buffer_store_dwordx4 {vr(vA0,4)}, v{vT}, {sr(rWS,4)}, s{sTMP2} offen sc1")
    a(f"s_cmp_lg_u32 s{sW}, 0"); a("s_cbranch_scc1 L_nocomb")
    rowreduce("v_add_f32", (vSS+1,), (8, 4))
    a(f"v_mov_b32_dpp v{vSS+2}, v{vSS+1} quad_perm:[0,1,2,3] row_mask:0xf bank_mask:0x2")
    for r in range(4): a(f"v_mov_b32_dpp v{vA1+r}, v{vSS+2} quad_perm:[{r},{r},{r},{r}] row_mask:0xf bank_mask:0xf")
    for r in range(4): a(f"v_bfi_b32 v{vA1+r}, v{vFF}, s{sTB+r}, v{vA1+r}")
    a(f"v_lshlrev_b32 v{vT}, 2, v{vL}")
    a(f"s_lshl_b32 s{sTMP2}, s{sCB}, 5"); a(f"s_add_u32 s{sTMP2}, s{sTMP2}, {ML_OFF}")
    a("s_mov_b64 exec, 0x11")
    a(f"buffer_store_dwordx4 {vr(vA1,4)}, v{vT}, {sr(rWS,4)}, s{sTMP2} offen sc1")
    a("s_mov_b64 exec, -1")
    a("L_nocomb:")
    stamp()
    vGS, vXO = vTMP + 8, vTMP + 12
    a(f"s_lshr_b32 s{sTMP}, s2, 3"); a(f"s_lshl_b32 s{sY}, s{sX7}, 4"); a(f"s_add_u32 s{sY}, s{sY}, s{sTMP}")
    a(f"s_cmp_lt_u32 s{sTMP}, 16"); a(f"s_cselect_b32 s{sY}, s{sY}, 999")
    a(f"s_cmp_eq_u32 s{sW}, 2"); a(f"s_cselect_b32 s{sY}, s{sY}, 999")
    a(f"v_lshlrev_b32 v{vTMP+4}, 11, v{vL}")
    a(f"s_cmp_ge_u32 s{sY}, 128"); a("s_cbranch_scc1 L_nog")
    a(f"s_lshl_b32 s{sTMP}, s{sY}, 3"); a(f"v_mov_b32 v{vT}, s{sTMP}")
    a(f"global_load_dwordx2 {vr(vXO,2)}, v{vT}, {sr(sX,2)}")
    a(f"s_lshl_b32 s{sTMP}, s{sY}, 4"); a(f"s_add_u32 s{sTMP}, s{sTMP}, {Y_OFF}")
    for r in range(4): a(f"v_mov_b32 v{vGS+r}, 0")
    a("s_mov_b64 exec, 0x3fff")
    a("L_gpoll:")
    a(f"buffer_load_dwordx4 {vr(vGS,4)}, v{vTMP+4}, {sr(rWS,4)}, s{sTMP} offen sc1")
    a("s_waitcnt vmcnt(0)")
    for r in range(4): a(f"v_xor_b32 v{vGS+r}, s{sTB+r}, v{vGS+r}")
    a(f"v_or3_b32 v{vT}, v{vGS}, v{vGS+1}, v{vGS+2}"); a(f"v_or_b32 v{vT}, v{vT}, v{vGS+3}"); a(f"v_and_b32 v{vT}, v{vFF}, v{vT}")
    a(f"v_cmp_ne_u32 vcc, 0, v{vT}"); a("s_cbranch_vccz L_gok")
    a(f"s_sub_u32 s{sTMO}, s{sTMO}, 1"); a(f"s_cmp_gt_i32 s{sTMO}, 0"); a("s_cbranch_scc1 L_gpoll")
    a("L_gok:")
    a("s_mov_b64 exec, -1")
    rowreduce("v_add_f32", [vGS+r for r in range(4)])
    for r in range(4): a(f"v_cvt_pk_bf16_f32 v{vGS+r}, v{vGS+r}, v{vGS+r}")
    for r in range(4): a(f"v_and_b32 v{vGS+r}, s{sHI}, v{vGS+r}")
    for r in range(4): a(f"v_mul_f32 v{vSS+r}, {f2u(-1.4426950408889634):#x}, v{vGS+r}")
    for r in range(4): a(f"v_exp_f32 v{vSS+r}, v{vSS+r}")
    for r in range(4): a(f"v_add_f32 v{vSS+r}, 1.0, v{vSS+r}")
    for r in range(4): a(f"v_rcp_f32 v{vSS+r}, v{vSS+r}")
    for r in range(4): a(f"v_mul_f32 v{vGS+r}, v{vGS+r}, v{vSS+r}")
    for r in range(4): a(f"v_cvt_pk_bf16_f32 v{vGS+r}, v{vGS+r}, v{vGS+r}")
    for r in range(4): a(f"v_and_b32 v{vGS+r}, s{sHI}, v{vGS+r}")
    a(f"v_and_b32 v{vXO+3}, s{sHI}, v{vXO+1}"); a(f"v_lshlrev_b32 v{vXO+2}, 16, v{vXO+1}")
    a(f"v_and_b32 v{vXO+1}, s{sHI}, v{vXO}"); a(f"v_lshlrev_b32 v{vXO}, 16, v{vXO}")
    a("L_nog:")
    a(f"s_lshr_b32 s{sSTR}, s{sJ}, 2")
    a(f"s_and_b32 s{sCOL}, s{sJ}, 3")
    a(f"s_lshl_b32 s{sTMP}, s{sKVH}, 9"); a(f"s_lshl_b32 s{sTMP2}, s{sW}, 5"); a(f"s_add_u32 s{sTMP}, s{sTMP}, s{sTMP2}"); a(f"s_add_u32 s{sTMP}, s{sTMP}, s{sSTR}")
    a(f"s_lshl_b32 s{sTMP}, s{sTMP}, 10"); a(f"s_lshl_b32 s{sTMP2}, s{sCOL}, 8"); a(f"s_add_u32 s{sTMP}, s{sTMP}, s{sTMP2}")
    a(f"v_and_b32 v{vTMP+5}, 15, v{vL}")
    a(f"v_lshlrev_b32 v{vT}, 4, v{vTMP+5}"); a(f"v_lshl_add_u32 v{vT}, v{vTMP}, 13, v{vT}")
    a(f"s_mov_b64 {sr(rDN,2)}, {sr(sWO,2)}"); a(f"s_mov_b32 s{rDN+2}, {4096*1024}")
    for r in range(4):
        a(f"buffer_load_dwordx4 {vr(vD+4*r,4)}, v{vT}, {sr(rDN,4)}, s{sTMP} offen {wflags}")
        if r < 3: a(f"s_add_u32 s{sTMP}, s{sTMP}, {128*1024}")
    a(f"v_lshlrev_b32 v{vTMP+6}, 11, v{vTMP+5}"); a(f"v_lshl_add_u32 v{vTMP+6}, v{vTMP}, 4, v{vTMP+6}")
    a(f"v_lshlrev_b32 v{vTMP+7}, 5, v{vTMP+5}")
    a(f"s_lshl_b32 s{sTMP}, s{sKVH}, 16"); a(f"s_lshl_b32 s{sTMP2}, s{sSTR}, 8"); a(f"s_add_u32 s{sTMP}, s{sTMP}, s{sTMP2}")
    a(f"s_lshl_b32 s{sTMP2}, s{sW}, 6"); a(f"s_add_u32 s{sTMP}, s{sTMP}, s{sTMP2}"); a(f"s_add_u32 s{sTMP}, s{sTMP}, {P_OFF}")
    a(f"s_add_u32 s{sTMP2}, s{sTMP}, 0x8000")
    a(f"s_lshl_b32 s{sCNT}, s{sKVH}, 10"); a(f"s_add_u32 s{sCNT}, s{sCNT}, {ML_OFF}")
    vMK = vXX
    a(f"v_and_b32 v{vT}, 1, v{vL}"); a(f"v_lshlrev_b32 v{vT}, 4, v{vT}"); a(f"v_mov_b32 v{vMK+4}, 0xffff"); a(f"v_lshlrev_b32 v{vMK+4}, v{vT}, v{vMK+4}")
    a(f"v_bfe_u32 v{vT}, v{vL}, 1, 2")
    for t in range(4):
        a(f"v_cmp_eq_u32 vcc, {t}, v{vT}"); a(f"v_cndmask_b32 v{vMK+t}, 0, v{vMK+4}, vcc")
    O0, O1, M0, M1, L0, L1 = vW, vW+4, vW+8, vW+12, vW+16, vW+20
    a("L_apoll:")
    a(f"buffer_load_dwordx4 {vr(M0,4)}, v{vTMP+7}, {sr(rWS,4)}, s{sCNT} offen sc1")
    a(f"buffer_load_dwordx4 {vr(M1,4)}, v{vTMP+7}, {sr(rWS,4)}, s{sCNT} offen offset:512 sc1")
    a(f"buffer_load_dwordx4 {vr(L0,4)}, v{vTMP+7}, {sr(rWS,4)}, s{sCNT} offen offset:16 sc1")
    a(f"buffer_load_dwordx4 {vr(L1,4)}, v{vTMP+7}, {sr(rWS,4)}, s{sCNT} offen offset:528 sc1")
    a(f"buffer_load_dwordx4 {vr(O0,4)}, v{vTMP+6}, {sr(rWS,4)}, s{sTMP} offen sc1")
    a(f"buffer_load_dwordx4 {vr(O1,4)}, v{vTMP+6}, {sr(rWS,4)}, s{sTMP2} offen sc1")
    a("s_waitcnt vmcnt(0)")
    for i in range(24): a(f"v_xor_b32 v{vW+i}, s{sTB+(i&3)}, v{vW+i}")
    a(f"v_or_b32 v{vT}, v{vW}, v{vW+1}")
    for i in range(2, 24, 2): a(f"v_or3_b32 v{vT}, v{vT}, v{vW+i}, v{vW+i+1}")
    a(f"v_and_b32 v{vT}, v{vFF}, v{vT}")
    a(f"v_cmp_ne_u32 vcc, 0, v{vT}"); a("s_cbranch_vccz L_aok")
    a(f"s_sub_u32 s{sTMO}, s{sTMO}, 1"); a(f"s_cmp_gt_i32 s{sTMO}, 0"); a("s_cbranch_scc1 L_apoll")
    a("L_aok:")
    stamp()
    for r in range(4): a(f"v_min_f32 v{vSS+r}, v{M0+r}, v{M1+r}")
    rowreduce("v_min_f32", [vSS+r for r in range(4)])
    for r in range(4): a(f"v_sub_f32 v{M0+r}, v{vSS+r}, v{M0+r}"); a(f"v_sub_f32 v{M1+r}, v{vSS+r}, v{M1+r}")
    for r in range(8): a(f"v_exp_f32 v{M0+r}, v{M0+r}")
    for r in range(4): a(f"v_mul_f32 v{L0+r}, v{L0+r}, v{M0+r}"); a(f"v_mul_f32 v{O0+r}, v{O0+r}, v{M0+r}")
    for r in range(4): a(f"v_fmac_f32 v{L0+r}, v{L1+r}, v{M1+r}"); a(f"v_fmac_f32 v{O0+r}, v{O1+r}, v{M1+r}")
    rowreduce("v_add_f32", [L0+r for r in range(4)] + [O0+r for r in range(4)])
    for r in range(4): a(f"v_rcp_f32 v{L0+r}, v{L0+r}")
    for r in range(4): a(f"v_mul_f32 v{O0+r}, v{O0+r}, v{L0+r}")
    for r in range(4): a(f"v_cvt_pk_bf16_f32 v{O0+r}, v{O0+r}, v{O0+r}")
    for r in range(4):
        for t in range(4): a(f"v_and_b32 v{vQ+4*r+t}, v{O0+r}, v{vMK+t}")
    for r in range(4): a(f"v_mfma_f32_16x16x32_bf16 {vr(vA0,4)}, {vr(vQ+4*r,4)}, {vr(vD+4*r,4)}, {'0' if r == 0 else vr(vA0,4)}")
    a(f"v_lshl_add_u32 v{vT}, v{vTMP+5}, 1, v{vTMP}"); a(f"v_lshlrev_b32 v{vT}, 4, v{vT}")
    a(f"s_lshl_b32 s{sTMP}, s{sW}, 9"); a(f"v_add_u32 v{vT}, s{sTMP}, v{vT}")
    a("s_mov_b32 exec_hi, 0")
    a(f"ds_write_b128 v{vT}, {vr(vA0,4)} offset:10240")
    a("s_waitcnt lgkmcnt(0)")
    a("s_barrier")
    a(f"s_cmp_lg_u32 s{sW}, 0"); a("s_cbranch_scc1 L_nopub")
    for w in range(4): a(f"ds_read_b128 {vr(vQ+4*w,4)}, v{vVO} offset:{10240+512*w}")
    a(f"s_lshl_b32 s{sTMP}, s{sKVH}, 3"); a(f"s_add_u32 s{sTMP}, s{sTMP}, s{sSTR}"); a(f"s_lshl_b32 s{sTMP}, s{sTMP}, 11")
    a(f"s_lshl_b32 s{sTMP2}, s{sCOL}, 9"); a(f"s_add_u32 s{sTMP}, s{sTMP}, s{sTMP2}"); a(f"s_add_u32 s{sTMP}, s{sTMP}, {S_OFF}")
    a("s_waitcnt lgkmcnt(0)")
    for r in range(4): a(f"v_add_f32 v{vQ+r}, v{vQ+r}, v{vQ+4+r}"); a(f"v_add_f32 v{vQ+8+r}, v{vQ+8+r}, v{vQ+12+r}")
    for r in range(4): a(f"v_add_f32 v{vQ+r}, v{vQ+r}, v{vQ+8+r}")
    for r in range(4): a(f"v_bfi_b32 v{vQ+r}, v{vFF}, s{sTB+r}, v{vQ+r}")
    a(f"buffer_store_dwordx4 {vr(vQ,4)}, v{vVO}, {sr(rWS,4)}, s{sTMP} offen sc1")
    a("L_nopub:")
    a("s_mov_b64 exec, -1")
    a(f"s_cmp_ge_u32 s{sY}, 128"); a("s_cbranch_scc1 L_fin")
    a(f"s_lshl_b32 s{sTMP}, s{sY}, 4"); a(f"s_add_u32 s{sTMP}, s{sTMP}, {S_OFF}")
    a("L_bpoll:")
    a(f"buffer_load_dwordx4 {vr(vSS,4)}, v{vTMP+4}, {sr(rWS,4)}, s{sTMP} offen sc1")
    a("s_waitcnt vmcnt(0)")
    for r in range(4): a(f"v_xor_b32 v{vSS+r}, s{sTB+r}, v{vSS+r}")
    a(f"v_or3_b32 v{vT}, v{vSS}, v{vSS+1}, v{vSS+2}"); a(f"v_or_b32 v{vT}, v{vT}, v{vSS+3}"); a(f"v_and_b32 v{vT}, v{vFF}, v{vT}")
    a(f"v_cmp_ne_u32 vcc, 0, v{vT}"); a("s_cbranch_vccz L_bok")
    a(f"s_sub_u32 s{sTMO}, s{sTMO}, 1"); a(f"s_cmp_gt_i32 s{sTMO}, 0"); a("s_cbranch_scc1 L_bpoll")
    a("L_bok:")
    rowreduce("v_add_f32", [vSS+r for r in range(4)])
    for r in range(4): a(f"v_mov_b32 v{vTT+r}, v{vSS+r}")
    for r in range(4): a(f"v_permlane16_swap_b32 v{vSS+r}, v{vTT+r}")
    for r in range(4): a(f"v_add_f32 v{vSS+r}, v{vSS+r}, v{vTT+r}")
    for r in range(4): a(f"v_mov_b32 v{vTT+r}, v{vSS+r}")
    for r in range(4): a(f"v_permlane32_swap_b32 v{vSS+r}, v{vTT+r}")
    for r in range(4): a(f"v_add_f32 v{vSS+r}, v{vSS+r}, v{vTT+r}")
    for r in range(4): a(f"v_cvt_pk_bf16_f32 v{vSS+r}, v{vSS+r}, v{vSS+r}")
    for r in range(4): a(f"v_and_b32 v{vSS+r}, s{sHI}, v{vSS+r}")
    for r in range(4): a(f"v_mul_f32 v{vSS+r}, v{vSS+r}, v{vGS+r}")
    for r in range(4): a(f"v_cvt_pk_bf16_f32 v{vSS+r}, v{vSS+r}, v{vSS+r}")
    for r in range(4): a(f"v_and_b32 v{vSS+r}, s{sHI}, v{vSS+r}")
    for r in range(4): a(f"v_add_f32 v{vSS+r}, v{vSS+r}, v{vXO+r}")
    a(f"v_cvt_pk_bf16_f32 v{vSS}, v{vSS}, v{vSS+1}"); a(f"v_cvt_pk_bf16_f32 v{vSS+1}, v{vSS+2}, v{vSS+3}")
    a(f"s_lshl_b32 s{sTMP}, s{sY}, 3"); a(f"v_mov_b32 v{vT}, s{sTMP}")
    a("s_mov_b64 exec, 1")
    a(f"global_store_dwordx2 v{vT}, {vr(vSS,2)}, {sr(sOUT,2)}")
    a(f"s_cmp_lg_u32 s{sY}, 0"); a("s_cbranch_scc1 L_fin")
    a(f"v_mov_b32 v{vSS+2}, s{sT}"); a(f"s_mov_b32 s{sTMP}, {E_OFF}")
    a(f"buffer_store_dword v{vSS+2}, v{vT}, {sr(rWS,4)}, s{sTMP} offen sc1")
    a("L_fin:")
    if diag:
        base, mult, k = diag[:3]
        if len(diag) > 3:
            a(f"s_cmp_lg_u32 s2, {diag[3]}"); a("s_cbranch_scc1 L_done")
        stamp()
        a("s_waitcnt lgkmcnt(0)")
        a(f"s_sub_u32 s{sTMP}, s{sST+2*k}, s{sST}"); a(f"s_mul_i32 s{sTMP}, s{sTMP}, {mult}"); a(f"s_add_u32 s{sTMP}, s{sTMP}, {base}")
        a("L_spin:")
        a(f"s_memrealtime s[98:99]"); a("s_waitcnt lgkmcnt(0)")
        a(f"s_sub_u32 s98, s98, s{sST}"); a(f"s_cmp_lt_u32 s98, s{sTMP}"); a("s_cbranch_scc1 L_spin")
    if stamps:
        stamp()
        a("s_mov_b64 exec, -1")
        a("s_waitcnt lgkmcnt(0)")
        for i in range(nst[0]): a(f"v_writelane_b32 v{vT}, s{sST+2*i}, {i}")
        a(f"v_writelane_b32 v{vT}, s{sTMO}, 15")
        a(f"s_lshl_b32 s{sTMP}, s2, 2"); a(f"s_add_u32 s{sTMP}, s{sTMP}, s{sW}"); a(f"s_lshl_b32 s{sTMP}, s{sTMP}, 6"); a(f"s_add_u32 s{sTMP}, s{sTMP}, {ST_OFF}")
        a(f"v_lshlrev_b32 v{vSS}, 2, v{vL}")
        a("s_mov_b64 exec, 0xffff")
        a(f"buffer_store_dword v{vT}, v{vSS}, {sr(rWS,4)}, s{sTMP} offen")
    a("L_done:")
    a("s_endpgm")
    a("L_qretry:")
    a(f"s_sub_u32 s{sTMO}, s{sTMO}, 1"); a(f"s_cmp_le_i32 s{sTMO}, 0"); a("s_cbranch_scc1 L_qok")
    qloads()
    a("s_waitcnt vmcnt(0)")
    a("s_branch L_qchk")
    for s in range(S):
        a(f"L_resc{s}:"); a(f"s_mov_b32 s{sRET}, {s}")
        if s < S-1: a("s_branch L_resc")
    a("L_resc:")
    a(f"v_max3_f32 v{vT}, v{vSS}, v{vSS+1}, v{vSS+2}"); a(f"v_max_f32 v{vT}, v{vT}, v{vSS+3}")
    a(f"v_mul_f32 v{vT}, {f2u(-1.4426950408889634):#x}, v{vT}")
    allreduce_rows("v_min_f32", vT, vXX)
    a(f"v_min_f32 v{vT}, v{vT}, v{vNM}")
    a(f"v_sub_f32 v{vXX}, v{vT}, v{vNM}")
    a(f"v_mov_b32 v{vNM}, v{vT}")
    a(f"v_exp_f32 v{vXX}, v{vXX}")
    for i in range(4): a(f"v_fma_f32 v{vTT+i}, v{vSS+i}, s{sL2E}, v{vNM}")
    a(f"v_mul_f32 v{vLS}, v{vLS}, v{vXX}")
    for acc in (vA0, vA1):
        for r in range(4): a(f"v_mul_f32_dpp v{acc+r}, v{vXX}, v{acc+r} quad_perm:[{r},{r},{r},{r}] row_mask:0xf bank_mask:0xf")
    for s in range(S-1):
        a(f"s_cmp_eq_u32 s{sRET}, {s}"); a(f"s_cbranch_scc1 L_back{s}")
    a(f"s_branch L_back{S-1}")
    body = a.finish()
    pad = "L_codeend:\n"
    txt = HEADER + f"; @launch grid=(256,1,1) block=(256,1,1) lds={lds}\n"
    txt += f'.amdgcn_target "amdgcn-amd-amdhsa--gfx950"\n.text\n.globl {NAME}_kernel\n.p2align 8\n.type {NAME}_kernel,@function\n'
    txt += body + pad
    txt += f'''.section .rodata,"a"
.p2align 6
.amdhsa_kernel {NAME}_kernel
  .amdhsa_next_free_vgpr 256
  .amdhsa_next_free_sgpr 102
  .amdhsa_accum_offset 256
  .amdhsa_group_segment_fixed_size 0
  .amdhsa_kernarg_size 96
  .amdhsa_user_sgpr_count 2
  .amdhsa_user_sgpr_kernarg_segment_ptr 1
  .amdhsa_system_sgpr_workgroup_id_x 1
  .amdhsa_float_denorm_mode_32 3
.end_amdhsa_kernel
'''
    return txt

if __name__ == "__main__":
    kw = {}
    for x in sys.argv[2:]:
        k, v = x.split("=", 1)
        try: v = eval(v)
        except Exception: pass
        kw[k] = v
    open(sys.argv[1], "w").write(gen(**kw))
```

```python
import sys, struct
from asmlib import Asm
NAME = "recurrent_scan__gqa_block_cached__glu_gated_glu__decode"
def f2u(x): return struct.unpack("<I", struct.pack("<f", x))[0]
HEADER = open("cdna_kernels/%s.s.ref" % NAME).read().split("; Override launch")[0]
L2E = 1.4426950408889634

def gen(NS=8, R=3, pre=2, qpos=None, hmap="low", lds=16384, kvflags="nt", wflags="nt", wsbase=0, stamps=False, thr=8.0,
        codepf=True, tmo=1<<16, cx=1, pst="sc1", q1="", NT=32, ypub=12, yget=22, klast=True, maskpoll=True, stagger=0, wolate=True):
    a = Asm()
    qpos = NS-2 if qpos is None else qpos
    E_OFF, A1_OFF, Y_OFF, ML_OFF, S_OFF, P_OFF, ST_OFF = [wsbase + x for x in (0, 0x1000, 0x10000, 0x20000, 0x40000, 0x80000, 0x100000)]
    WS_BYTES = 0x20000000
    L_S1, L_Y, L_CNT, L_ML, L_OA, L_SR = 0, 2048, 4096, 4224, 4608, 12800
    assert L_SR + 2048 <= lds
    sX, sK, sV, sWQ, sWO, sG, sU, sDN, sOUT, sWS = 4, 6, 8, 10, 12, 16, 18, 20, 22, 26
    rK, rV, rW1, rWS, rDN = 28, 32, 36, 40, 44
    sW, sKVH, sJ, sOFK, sOFV, sCB, sSTR, sT, sTMP, sTMP2 = 48, 49, 50, 51, 52, 53, 54, 55, 56, 57
    sRET = 58
    sTLO, sTHI, sSC, sL2E = 60, 61, 62, 63
    sTB = 64
    sHI, sTHR, sTMO, sX7, sCOL, sRG, sF, sPP, sPM, sPS = 68, 69, 70, 71, 72, 73, 74, 75, 76, 77
    sPC = 78
    sDG = 14
    sGO0, sGO1, sGM, sGS = 24, 25, 3, 2
    sST = 80
    vL, vKO, vVO, vM0, vM1, vNM, vLS, vT = 0, 1, 2, 3, 4, 5, 6, 7
    vA0, vA1, vSS, vTT, vXX, vQ = 8, 12, 16, 20, 24, 32
    vSL, vE, vBK, vN, vFF, vOAW, vOAR, vMLW, vMLR, vGO, vGM, vSRW, vL2K, vWOO, vDGA, vT2 = range(48, 64)
    vW, vD, vGU, vWO, vMK, vGS, vXO, vF = 64, 96, 104, 108, 124, 128, 132, 136
    NV = 144
    def vr(b, n): return f"v[{b}:{b+n-1}]"
    def ar(b, n): return f"a[{b}:{b+n-1}]"
    def sr(b, n): return f"s[{b}:{b+n-1}]"
    nst = [0]
    def stamp():
        if stamps:
            a(f"s_memrealtime s[{sST+2*nst[0]}:{sST+2*nst[0]+1}]"); nst[0] += 1
    Q = []; done = [0]
    def vm(tag, text): a(text); Q.append(tag)
    def wait(tag):
        idx = max(i for i, t in enumerate(Q) if t == tag)
        if idx < done[0]: return
        n = min(len(Q) - 1 - idx, 63)
        a(f"s_waitcnt vmcnt({n})"); done[0] = len(Q) - n
    def allreduce_rows(op, v, t):
        a(f"v_mov_b32 v{t}, v{v}"); a(f"v_permlane16_swap_b32 v{v}, v{t}"); a(f"{op} v{v}, v{v}, v{t}")
        a(f"v_mov_b32 v{t}, v{v}"); a(f"v_permlane32_swap_b32 v{v}, v{t}"); a(f"{op} v{v}, v{v}, v{t}")
    def rowreduce(op, vs, steps=(8, 4, 2, 1)):
        for st in steps:
            for v in vs: a(f"{op}_dpp v{v}, v{v}, v{v} row_ror:{st} row_mask:0xf bank_mask:0xf")
    def unpack(dst, src, n):
        for i in range(n):
            a(f"v_lshlrev_b32 v{dst+2*i}, 16, v{src+i}"); a(f"v_and_b32 v{dst+2*i+1}, s{sHI}, v{src+i}")
    freeK = list(range(NS)); freeV = list(range(NS)); slotK = {}; slotV = {}
    def issueK(t):
        s = slotK[t] = freeK.pop(0)
        for jj in range(4): vm(("K", t), f"buffer_load_dwordx4 {ar(32*s+4*jj,4)}, v{vKO}, {sr(rK,4)}, s{sOFK} offen offset:{64*jj} {kvflags}")
        if t < NT-1: a(f"s_add_u32 s{sOFK}, s{sOFK}, 0x4000")
    def issueV(t):
        s = slotV[t] = freeV.pop(0)
        for i in range(4): vm(("V", t), f"buffer_load_dwordx4 {ar(32*s+16+4*i,4)}, v{vVO}, {sr(rV,4)}, s{sOFV} offen offset:{1024*i} {kvflags}")
        if t < NT-1: a(f"s_add_u32 s{sOFV}, s{sOFV}, 0x4000")
    def gemv(vAop, vB, n, tag):
        for i in range(n):
            wait((tag, i))
            c0 = "0" if i == 0 else vr(vA0,4); c1 = "0" if i == 0 else vr(vA1,4)
            a(f"v_mfma_f32_16x16x16_bf16 {vr(vA0,4)}, {vr(vAop+2*i,2)}, {vr(vB+4*i,2)}, {c0}")
            a(f"v_mfma_f32_16x16x16_bf16 {vr(vA1,4)}, {vr(vAop+2*i,2)}, {vr(vB+4*i+2,2)}, {c1}")
    def gemv_store(base):
        a(f"s_mov_b64 exec, {sr(sDG,2)}")
        a(f"ds_write_b128 v{vDGA}, {vr(vA0,4)} offset:{base}"); a(f"ds_write_b128 v{vDGA}, {vr(vA1,4)} offset:{base+16}")
        a("s_mov_b64 exec, -1")
    def gemv_reduce(base, tmp):
        for p in range(8): a(f"ds_read_b128 {vr(tmp+4*p,4)}, v{vVO} offset:{base+256*p}")
        for step in (16, 8, 4):
            if step == 16: a("s_waitcnt lgkmcnt(0)")
            for r in range(step): a(f"v_add_f32 v{tmp+r}, v{tmp+r}, v{tmp+step+r}")
        rowreduce("v_add_f32", [tmp+r for r in range(4)], (8,))
    def timeout(lbl):
        a(f"s_sub_u32 s{sTMO}, s{sTMO}, 1"); a(f"s_cmp_gt_i32 s{sTMO}, 0"); a(f"s_cbranch_scc1 {lbl}")

    a(f"{NAME}_kernel:")
    stamp()
    a("s_cmp_ge_u32 s2, 256"); a("s_cbranch_scc1 L_done")
    a("s_load_dwordx16 s[4:19], s[0:1], 0"); a("s_load_dwordx8 s[20:27], s[0:1], 64")
    a(f"s_and_b32 s{sX7}, s2, 7"); a(f"s_lshr_b32 s{sTMP2}, s2, 3")
    if codepf:
        a(f"s_getpc_b64 {sr(sPC,2)}")
        a("L_pc:")
        a(f"v_and_b32 v{vT}, 7, v0"); a(f"v_lshl_add_u32 v{vT}, s{sTMP2}, 3, v{vT}"); a(f"v_lshlrev_b32 v{vT}, 7, v{vT}")
        a(f"v_min_u32 v{vT}, L_codeend-L_pc-4, v{vT}")
        vm("pf", f"global_load_dword v{vT2}, v{vT}, {sr(sPC,2)}")
    a(f"v_lshrrev_b32 v{vKO}, 6, v0"); a(f"v_and_b32 v{vL}, 63, v0")
    a(f"v_readfirstlane_b32 s{sW}, v{vKO}")
    if hmap == "low":
        a(f"s_mov_b32 s{sKVH}, s{sX7}"); a(f"s_mov_b32 s{sJ}, s{sTMP2}")
    else:
        a(f"s_lshr_b32 s{sKVH}, s2, 5"); a(f"s_and_b32 s{sJ}, s2, 31")
    a(f"s_mul_i32 s{sCB}, s{sX7}, 30"); a(f"s_add_u32 s{sCB}, s{sCB}, s{sTMP2}")
    a(f"s_movk_i32 s{sCOL}, 184"); a(f"s_cmp_lt_u32 s{sCB}, s{sCOL}"); a(f"s_cselect_b32 s{sCOL}, 128, s{sCOL}")
    a(f"s_cmp_lt_u32 s{sCB}, 128"); a(f"s_cselect_b32 s{sCOL}, 0, s{sCOL}")
    a(f"s_movk_i32 s{sSTR}, 3584"); a(f"s_cselect_b32 s{sSTR}, 8192, s{sSTR}")
    a(f"s_sub_u32 s{sCOL}, s{sCB}, s{sCOL}"); a(f"s_lshl_b32 s{sCOL}, s{sCOL}, 6")
    a(f"s_lshl_b32 s{sTMP}, s{sW}, 7"); a(f"s_mul_i32 s{sTMP}, s{sTMP}, s{sSTR}"); a(f"s_add_u32 s{sCOL}, s{sCOL}, s{sTMP}")
    a(f"v_lshlrev_b32 v{vVO}, 4, v{vL}")
    a(f"v_lshrrev_b32 v{vSL}, 4, v{vL}"); a(f"v_and_b32 v{vE}, 3, v{vL}"); a(f"v_bfe_u32 v{vBK}, v{vL}, 2, 2")
    a(f"v_lshrrev_b32 v{vT}, 2, v{vL}")
    a(f"s_lshl_b32 s{sTMP}, s{sW}, 8"); a(f"v_lshl_add_u32 v{vGO}, v{vT}, 4, s{sTMP}")
    a(f"s_lshl_b32 s{sTMP}, s{sSTR}, 3")
    a(f"v_mul_u32_u24 v{vGM}, s{sTMP}, v{vT}"); a(f"v_lshl_add_u32 v{vGM}, v{vE}, 4, v{vGM}")
    a(f"v_lshl_add_u32 v{vKO}, v{vE}, 2, v{vBK}")
    a(f"v_lshlrev_b32 v{vKO}, 8, v{vKO}"); a(f"v_lshl_add_u32 v{vKO}, v{vSL}, 4, v{vKO}")
    a(f"s_lshl_b32 s{sOFK}, s{sKVH}, 24"); a(f"s_lshl_b32 s{sTMP}, s{sJ}, 19"); a(f"s_add_u32 s{sOFK}, s{sOFK}, s{sTMP}")
    a(f"s_lshl_b32 s{sTMP}, s{sW}, 12"); a(f"s_add_u32 s{sOFK}, s{sOFK}, s{sTMP}"); a(f"s_mov_b32 s{sOFV}, s{sOFK}")
    a(f"v_mov_b32 v{vNM}, {E_OFF}")
    a(f"s_mov_b32 s{rW1+3}, 0x20000"); a(f"s_mov_b32 s{rK+2}, 0x8000000"); a(f"s_mov_b32 s{rK+3}, 0x20000")
    a(f"s_mov_b32 s{rV+2}, 0x8000000"); a(f"s_mov_b32 s{rV+3}, 0x20000")
    a(f"s_lshl_b32 s{rW1+2}, s{sSTR}, 9"); a(f"s_cmp_lt_u32 s{sTMP2}, 30"); a(f"s_cselect_b32 s{rW1+2}, s{rW1+2}, 0")
    a("s_waitcnt lgkmcnt(0)")
    stamp()
    vm("x", f"global_load_dword v{vNM}, v{vNM}, {sr(sWS,2)} sc1")
    vm("x", f"global_load_dwordx4 {vr(vSS,4)}, v{vVO}, {sr(sX,2)}")
    vm("x", f"global_load_dwordx4 {vr(vTT,4)}, v{vGO}, {sr(sX,2)}")
    a(f"s_cmp_lt_u32 s{sCB}, 184"); a(f"s_cselect_b64 {sr(rW1,2)}, {sr(sG,2)}, {sr(sU,2)}")
    a(f"s_cmp_lt_u32 s{sCB}, 128"); a(f"s_cselect_b64 {sr(rW1,2)}, {sr(sWQ,2)}, {sr(rW1,2)}")
    for i in range(8):
        vm(("w1", i), f"buffer_load_dwordx4 {vr(vW+4*i,4)}, v{vGM}, {sr(rW1,4)}, s{sCOL} offen {wflags}")
        if i < 7: a(f"s_add_u32 s{sCOL}, s{sCOL}, s{sSTR}")
    a(f"s_mov_b64 {sr(rK,2)}, {sr(sK,2)}"); a(f"s_mov_b64 {sr(rV,2)}, {sr(sV,2)}")
    issueK(0); issueV(0)
    a(f"s_mov_b32 s{sHI}, 0xffff0000"); a(f"s_mov_b32 s{sSC}, {f2u(128**-0.5):#x}"); a(f"s_mov_b32 s{sL2E}, {f2u(L2E):#x}")
    a(f"s_mov_b32 s{sTHR}, {f2u(thr):#x}"); a(f"s_mov_b32 s{sTMO}, {tmo}")
    a(f"s_mov_b64 {sr(rWS,2)}, {sr(sWS,2)}"); a(f"s_mov_b32 s{rWS+2}, {WS_BYTES:#x}"); a(f"s_mov_b32 s{rWS+3}, 0x20000")
    a(f"s_mov_b32 s{sDG}, 0x00f0000f"); a(f"s_mov_b32 s{sDG+1}, 0xf0000f00")
    a(f"v_and_b32 v{vT}, 1, v{vL}"); a(f"v_lshlrev_b32 v{vT}, 4, v{vT}"); a(f"v_mov_b32 v{vM1}, 0xffff")
    wait("x")
    a(f"v_lshlrev_b32 v{vT2}, v{vT}, v{vM1}")
    a(f"v_cmp_gt_u32 vcc, 2, v{vE}"); a(f"v_cndmask_b32 v{vM0}, 0, v{vT2}, vcc"); a(f"v_xor_b32 v{vM1}, v{vT2}, v{vM0}")
    a(f"v_bfe_u32 v{vT}, v{vL}, 1, 2")
    for t in range(4):
        a(f"v_cmp_eq_u32 vcc, {t}, v{vT}"); a(f"v_cndmask_b32 v{vMK+t}, 0, v{vT2}, vcc")
    a(f"v_readfirstlane_b32 s{sT}, v{vNM}")
    F = vF
    unpack(F, vSS, 4)
    a(f"v_add_f32 v{vA0}, v{F}, v{F+1}")
    for i in range(2, 8): a(f"v_add_f32 v{vA0}, v{vA0}, v{F+i}")
    rowreduce("v_add_f32", (vA0,)); allreduce_rows("v_add_f32", vA0, vT)
    a(f"v_mul_f32 v{vA0}, {f2u(1/512):#x}, v{vA0}")
    for i in range(8): a(f"v_sub_f32 v{F+i}, v{F+i}, v{vA0}")
    a(f"v_mul_f32 v{vA1}, v{F}, v{F}")
    for i in range(1, 8): a(f"v_fmac_f32 v{vA1}, v{F+i}, v{F+i}")
    rowreduce("v_add_f32", (vA1,)); allreduce_rows("v_add_f32", vA1, vT)
    a(f"v_mul_f32 v{vA1}, {f2u(1/512):#x}, v{vA1}")
    a(f"v_cvt_pk_bf16_f32 v{vA0}, v{vA0}, v{vA1}")
    a(f"v_and_b32 v{vA1}, s{sHI}, v{vA0}"); a(f"v_lshlrev_b32 v{vA0}, 16, v{vA0}")
    a(f"v_add_f32 v{vA1}, {f2u(1e-5):#x}, v{vA1}")
    a(f"v_cvt_pk_bf16_f32 v{vA1}, v{vA1}, v{vA1}"); a(f"v_and_b32 v{vA1}, s{sHI}, v{vA1}")
    a(f"v_sqrt_f32 v{vA1}, v{vA1}")
    a(f"v_cvt_pk_bf16_f32 v{vA1}, v{vA1}, v{vA1}"); a(f"v_and_b32 v{vA1}, s{sHI}, v{vA1}")
    a(f"v_rcp_f32 v{vA1}, v{vA1}")
    unpack(F, vTT, 4)
    for i in range(8): a(f"v_sub_f32 v{F+i}, v{F+i}, v{vA0}")
    for i in range(4): a(f"v_cvt_pk_bf16_f32 v{vTT+i}, v{F+2*i}, v{F+2*i+1}")
    unpack(F, vTT, 4)
    for i in range(8): a(f"v_mul_f32 v{F+i}, v{F+i}, v{vA1}")
    for i in range(8): a(f"v_cvt_pk_bf16_f32 v{F+i}, v{F+i}, v{F+i}")
    for i in range(8):
        a(f"v_and_b32 v{vQ+2*i}, v{F+i}, v{vM0}"); a(f"v_and_b32 v{vQ+2*i+1}, v{F+i}, v{vM1}")
    for t in range(1, pre): issueK(t); issueV(t)
    gemv(vQ, vW, 8, "w1")
    a(f"s_add_u32 s{sT}, s{sT}, 0x01010101")
    a(f"s_and_b32 s{sTLO}, s{sT}, 0xffff"); a(f"s_lshr_b32 s{sTHI}, s{sT}, 16")
    for k in range(4): a(f"s_bfe_u32 s{sTB+k}, s{sT}, {(8<<16)|(8*k):#x}")
    a(f"s_lshl_b32 s{sTMP}, s{sW}, 9"); a(f"v_lshl_add_u32 v{vDGA}, v{vSL}, 7, s{sTMP}"); a(f"v_lshl_add_u32 v{vDGA}, v{vE}, 5, v{vDGA}")
    a(f"v_mov_b32 v{vT}, 0"); a(f"ds_write_b32 v{vT}, v{vT} offset:{L_CNT}")
    gemv_store(L_S1)
    a("s_waitcnt lgkmcnt(0)")
    a("s_barrier")
    a(f"s_cmp_lg_u32 s{sW}, 0"); a("s_cbranch_scc1 L_pub1_done")
    a(f"s_cmp_eq_u32 s{rW1+2}, 0"); a("s_cbranch_scc1 L_pub1_done")
    a("s_mov_b64 exec, 0xffff")
    a(f"s_lshl_b32 s{sTMP}, s{sCB}, 7"); a(f"s_add_u32 s{sTMP}, s{sTMP}, {A1_OFF}")
    a(f"v_mov_b32 v{vT}, s{sHI}")
    gemv_reduce(L_S1, vW)
    a(f"v_cvt_pk_bf16_f32 v{vW+1}, v{vW}, v{vW+1}"); a(f"v_cvt_pk_bf16_f32 v{vW+3}, v{vW+2}, v{vW+3}")
    a(f"v_lshl_or_b32 v{vA0}, v{vW+1}, 16, s{sTLO}"); a(f"v_and_or_b32 v{vA0+1}, v{vW+1}, v{vT}, s{sTHI}")
    a(f"v_lshl_or_b32 v{vA0+2}, v{vW+3}, 16, s{sTLO}"); a(f"v_and_or_b32 v{vA0+3}, v{vW+3}, v{vT}, s{sTHI}")
    a("s_mov_b64 exec, 0xff")
    a(f"buffer_store_dwordx4 {vr(vA0,4)}, v{vVO}, {sr(rWS,4)}, s{sTMP} offen sc1")
    a("s_mov_b64 exec, -1")
    a("L_pub1_done:")
    stamp()
    issueK(pre); issueV(pre)
    a(f"s_lshr_b32 s{sTMP}, s2, 7"); a(f"s_lshl_b32 s{sRG}, s{sTMP}, 3"); a(f"s_add_u32 s{sRG}, s{sRG}, s{sX7}")
    a(f"s_mov_b64 {sr(rDN,2)}, {sr(sDN,2)}"); a(f"s_mov_b32 s{rDN+2}, {1792*1024}"); a(f"s_mov_b32 s{rDN+3}, 0x20000")
    a(f"s_bfe_u32 s{sCOL}, s2, {(4<<16)|3:#x}")
    a(f"s_lshl_b32 s{sTMP}, s{sRG}, 2"); a(f"s_add_u32 s{sSTR}, s{sTMP}, s{sW}")
    a(f"s_lshl_b32 s{sTMP}, s{sSTR}, 15"); a(f"s_lshl_b32 s{sTMP2}, s{sCOL}, 6"); a(f"s_add_u32 s{sTMP}, s{sTMP}, s{sTMP2}")
    a(f"v_lshrrev_b32 v{vT2}, 2, v{vL}"); a(f"v_lshlrev_b32 v{vT}, 11, v{vT2}"); a(f"v_lshl_add_u32 v{vT}, v{vE}, 4, v{vT}")
    for i in range(2): vm(("dn", i), f"buffer_load_dwordx4 {vr(vD+4*i,4)}, v{vT}, {sr(rDN,4)}, s{sTMP} offen offset:{1024*i} {wflags}")
    a(f"v_and_b32 v{vN}, 15, v{vL}"); a(f"v_mov_b32 v{vFF}, 0xff")
    a(f"v_and_b32 v{vT}, 7, v{vL}"); a(f"v_xor_b32 v{vT}, v{vT}, v{vSL}"); a(f"v_lshlrev_b32 v{vT}, 4, v{vT}")
    a(f"v_lshl_add_u32 v{vOAW}, v{vN}, 7, v{vT}"); a(f"s_lshl_b32 s{sTMP}, s{sW}, 11"); a(f"v_add_u32 v{vOAW}, s{sTMP}, v{vOAW}")
    a(f"v_lshrrev_b32 v{vT}, 3, v{vL}"); a(f"v_xor_b32 v{vOAR}, v{vT}, v{vL}"); a(f"v_and_b32 v{vOAR}, 7, v{vOAR}"); a(f"v_lshlrev_b32 v{vOAR}, 4, v{vOAR}")
    a(f"v_lshl_add_u32 v{vOAR}, v{vT}, 7, v{vOAR}"); a(f"s_and_b32 s{sTMP}, s{sW}, 1"); a(f"s_lshl_b32 s{sTMP}, s{sTMP}, 10"); a(f"v_add_u32 v{vOAR}, s{sTMP}, v{vOAR}")
    a(f"s_lshl_b32 s{sPM}, s{sKVH}, 5"); a(f"s_add_u32 s{sPM}, s{sPM}, s{sJ}")
    a(f"s_lshl_b32 s{sPP}, s{sPM}, 11"); a(f"s_add_u32 s{sPP}, s{sPP}, s{sTMP}"); a(f"s_add_u32 s{sPP}, s{sPP}, {P_OFF}")
    a(f"s_lshl_b32 s{sPM}, s{sPM}, 6"); a(f"s_add_u32 s{sPM}, s{sPM}, {ML_OFF}")
    a(f"s_lshl_b32 s{sTMP}, s{sW}, 2"); a(f"v_lshl_add_u32 v{vMLW}, v{vBK}, 4, s{sTMP}"); a(f"v_lshlrev_b32 v{vMLR}, 4, v{vE}")
    a(f"v_lshl_add_u32 v{vSRW}, v{vN}, 1, v{vSL}"); a(f"v_lshlrev_b32 v{vSRW}, 4, v{vSRW}"); a(f"s_lshl_b32 s{sTMP}, s{sW}, 9"); a(f"v_add_u32 v{vSRW}, s{sTMP}, v{vSRW}")
    a(f"v_lshlrev_b32 v{vL2K}, 11, v{vL}")
    a(f"v_lshlrev_b32 v{vWOO}, 4, v{vN}"); a(f"v_lshl_add_u32 v{vWOO}, v{vSL}, 17, v{vWOO}")
    a(f"s_lshr_b32 s{sTMP}, s2, 3"); a(f"s_lshl_b32 s{sF}, s{sX7}, 4"); a(f"s_add_u32 s{sF}, s{sF}, s{sTMP}")
    a(f"s_cmp_lt_u32 s{sTMP}, 16"); a(f"s_cselect_b32 s{sF}, s{sF}, 999")
    a(f"s_cmp_eq_u32 s{sW}, 2"); a(f"s_cselect_b32 s{sF}, s{sF}, 999")
    for t in range(pre+1, qpos): issueK(t); issueV(t)
    a(f"v_lshlrev_b32 v{vGO}, 9, v{vBK}"); a(f"v_lshl_add_u32 v{vGO}, v{vSL}, 5, v{vGO}")
    a(f"s_lshl_b32 s{sCB}, s{sKVH}, 11"); a(f"s_add_u32 s{sCB}, s{sCB}, {A1_OFF}")
    a(f"v_lshlrev_b32 v{vGM}, 3, v{vT2}")
    a(f"s_min_u32 s{sSTR}, s{sSTR}, 55")
    a(f"s_lshl_b32 s{sGO0}, s{sSTR}, 7"); a(f"s_add_u32 s{sGO0}, s{sGO0}, {A1_OFF + 4096*4}"); a(f"s_add_u32 s{sGO1}, s{sGO0}, {1792*4}")
    def qloads(fl, cnt):
        e = vm if cnt else (lambda tag, text: a(text))
        for jj in range(4):
            for h in range(2): e("q", f"buffer_load_dwordx4 {vr(vW+8*jj+4*h,4)}, v{vGO}, {sr(rWS,4)}, s{sCB} offen offset:{128*jj+16*h} {fl}")
        e("q", f"buffer_load_dwordx2 {vr(vGU,2)}, v{vGM}, {sr(rWS,4)}, s{sGO0} offen {fl}")
        e("q", f"buffer_load_dwordx2 {vr(vGU+2,2)}, v{vGM}, {sr(rWS,4)}, s{sGO1} offen {fl}")
    qloads(q1, True)
    for t in range(qpos, NS): issueK(t); issueV(t)
    a(f"s_mov_b32 s{sTMP}, 0x05040100"); a(f"s_mov_b32 s{sTMP2}, 0x07060302")
    wait("q")
    a("L_qchk:")
    a(f"v_perm_b32 v{vA0}, v{vGU+1}, v{vGU}, s{sTMP}"); a(f"v_perm_b32 v{vA0+1}, v{vGU+3}, v{vGU+2}, s{sTMP}")
    a(f"v_xor_b32 v{vA0}, s{sT}, v{vA0}"); a(f"v_xor_b32 v{vA0+1}, s{sT}, v{vA0+1}"); a(f"v_or_b32 v{vT}, v{vA0}, v{vA0+1}")
    for p in range(0, 16, 2):
        a(f"v_perm_b32 v{vA0}, v{vW+2*p+1}, v{vW+2*p}, s{sTMP}"); a(f"v_perm_b32 v{vA0+1}, v{vW+2*p+3}, v{vW+2*p+2}, s{sTMP}")
        a(f"v_xor_b32 v{vA0}, s{sT}, v{vA0}"); a(f"v_xor_b32 v{vA0+1}, s{sT}, v{vA0+1}")
        a(f"v_or3_b32 v{vT}, v{vT}, v{vA0}, v{vA0+1}")
    a(f"v_cmp_ne_u32 vcc, 0, v{vT}"); a("s_cbranch_vccnz L_qretry")
    a("L_qok:")
    for i in range(4): a(f"v_and_b32 v{vGU+i}, s{sHI}, v{vGU+i}")
    for i in range(2): a(f"v_mul_f32 v{vGU+i}, {f2u(-L2E):#x}, v{vGU+i}")
    for i in range(2): a(f"v_exp_f32 v{vGU+i}, v{vGU+i}")
    for i in range(2): a(f"v_add_f32 v{vGU+i}, 1.0, v{vGU+i}")
    for i in range(2): a(f"v_rcp_f32 v{vGU+i}, v{vGU+i}")
    for i in range(2): a(f"v_cvt_pk_bf16_f32 v{vGU+i}, v{vGU+i}, v{vGU+i}")
    for i in range(2): a(f"v_and_b32 v{vGU+i}, s{sHI}, v{vGU+i}")
    for i in range(2): a(f"v_mul_f32 v{vGU+i}, v{vGU+i}, v{vGU+2+i}")
    for i in range(2): a(f"v_cvt_pk_bf16_f32 v{vGU+i}, v{vGU+i}, v{vGU+i}")
    for i in range(2):
        a(f"v_and_b32 v{vXX+2*i}, v{vGU+i}, v{vM0}"); a(f"v_and_b32 v{vXX+2*i+1}, v{vGU+i}, v{vM1}")
    gemv(vXX, vD, 2, "dn")
    for p in range(16): a(f"v_perm_b32 v{vQ+p}, v{vW+2*p+1}, v{vW+2*p}, s{sTMP2}")
    gemv_store(L_Y)
    a(f"v_mov_b32 v{vT}, 0"); a(f"v_mov_b32 v{vT2}, 1")
    a("s_mov_b64 exec, 1"); a(f"ds_add_u32 v{vT}, v{vT2} offset:{L_CNT}"); a("s_mov_b64 exec, -1")
    if cx: a(f"s_xor_b32 s{sKVH}, s{sKVH}, {cx}")
    a(f"v_lshlrev_b32 v{vGO}, 11, v{vN}"); a(f"v_lshl_add_u32 v{vGO}, v{vSL}, 4, v{vGO}")
    a(f"v_lshlrev_b32 v{vGM}, 6, v{vN}"); a(f"v_lshl_add_u32 v{vGM}, v{vSL}, 4, v{vGM}")
    a(f"s_and_b32 s{sTMP}, s{sJ}, 28"); a(f"s_add_u32 s{sSTR}, s{sTMP}, s{sW}")
    a(f"s_lshl_b32 s{sTMP}, s{sKVH}, 16"); a(f"s_lshl_b32 s{sTMP2}, s{sSTR}, 6"); a(f"s_add_u32 s{sGO0}, s{sTMP}, s{sTMP2}")
    a(f"s_add_u32 s{sGO0}, s{sGO0}, {P_OFF}"); a(f"s_add_u32 s{sGO1}, s{sGO0}, 0x8000")
    a(f"s_lshl_b32 s{sGM}, s{sKVH}, 11"); a(f"s_add_u32 s{sGM}, s{sGM}, {ML_OFF}")
    a(f"s_lshl_b32 s{sTMP}, s{sKVH}, 5"); a(f"s_add_u32 s{sTMP}, s{sTMP}, s{sJ}"); a(f"s_lshl_b32 s{sPS}, s{sTMP}, 9"); a(f"s_add_u32 s{sPS}, s{sPS}, {S_OFF}")
    a(f"s_lshl_b32 s{sTMP}, s{sKVH}, 19"); a(f"s_lshl_b32 s{sTMP2}, s{sSTR}, 12"); a(f"s_add_u32 s{sCB}, s{sTMP}, s{sTMP2}")
    a(f"s_and_b32 s{sTMP}, s{sJ}, 3"); a(f"s_lshl_b32 s{sTMP}, s{sTMP}, 8"); a(f"s_add_u32 s{sCB}, s{sCB}, s{sTMP}")
    a(f"s_mov_b64 {sr(rDN,2)}, {sr(sWO,2)}"); a(f"s_mov_b32 s{rDN+2}, {4096*1024}")
    def woloads():
        for r in range(4): vm("wo", f"buffer_load_dwordx4 {vr(vWO+4*r,4)}, v{vWOO}, {sr(rDN,4)}, s{sCB} offen offset:{1024*r} {wflags}")
    a("s_waitcnt lgkmcnt(0)")
    for r in range(8): a(f"v_mov_b32 v{vA0+r}, 0")
    a(f"v_mov_b32 v{vNM}, {f2u(3e38):#x}"); a(f"v_mov_b32 v{vLS}, 0")
    stamp()
    nxtK = nxtV = NS; skip = NS - R
    for t in range(NT):
        kb = 32*slotK[t]
        doiss = not (skip > 0 and t % 2 == 1)
        if not doiss: skip -= 1
        wait(("K", t))
        for jj in range(4):
            a(f"v_mfma_f32_16x16x32_bf16 {vr(vSS,4)}, {ar(kb+4*jj,4)}, {vr(vQ+4*jj,4)}, {'0' if jj == 0 else vr(vSS,4)}")
        freeK.append(slotK[t])
        if doiss and nxtK < NT:
            issueK(nxtK); nxtK += 1
            if klast and nxtK == NT-1 and freeK: issueK(nxtK); nxtK += 1
        a(f"v_cvt_pk_bf16_f32 v{vSS}, v{vSS}, v{vSS+1}"); a(f"v_cvt_pk_bf16_f32 v{vSS+1}, v{vSS+2}, v{vSS+3}")
        unpack(vTT, vSS, 2)
        for i in range(4): a(f"v_mul_f32 v{vTT+i}, s{sSC}, v{vTT+i}")
        a(f"v_cvt_pk_bf16_f32 v{vTT}, v{vTT}, v{vTT+1}"); a(f"v_cvt_pk_bf16_f32 v{vTT+1}, v{vTT+2}, v{vTT+3}")
        unpack(vSS, vTT, 2)
        for i in range(4): a(f"v_fma_f32 v{vTT+i}, v{vSS+i}, s{sL2E}, v{vNM}")
        a(f"v_max3_f32 v{vT}, v{vTT}, v{vTT+1}, v{vTT+2}"); a(f"v_max_f32 v{vT}, v{vT}, v{vTT+3}")
        a(f"v_cmp_lt_f32 vcc, s{sTHR}, v{vT}"); a(f"s_cbranch_vccnz L_resc{t}")
        a(f"L_back{t}:")
        for i in range(4): a(f"v_exp_f32 v{vTT+i}, v{vTT+i}")
        for i in range(4): a(f"v_cvt_pk_bf16_f32 v{vSS+i}, v{vTT+i}, v{vTT+i}")
        for i in range(4):
            a(f"v_and_b32 v{vXX+2*i}, v{vSS+i}, v{vM0}"); a(f"v_and_b32 v{vXX+2*i+1}, v{vSS+i}, v{vM1}")
        a(f"v_add_f32 v{vTT}, v{vTT}, v{vTT+1}"); a(f"v_add_f32 v{vTT+2}, v{vTT+2}, v{vTT+3}")
        a(f"v_add_f32 v{vLS}, v{vLS}, v{vTT}"); a(f"v_add_f32 v{vLS}, v{vLS}, v{vTT+2}")
        if t == NT-1:
            allreduce_rows("v_add_f32", vLS, vT)
            a(f"ds_write2_b32 v{vMLW}, v{vNM}, v{vLS} offset0:{0} offset1:{16}".replace(f"v{vMLW},", f"v{vMLW},"))
        wait(("V", t))
        vb = 32*slotV[t] + 16
        for i in range(4):
            a(f"v_mfma_f32_16x16x16_bf16 {vr(vA0,4)}, {vr(vXX+2*i,2)}, {ar(vb+4*i,2)}, {vr(vA0,4)}")
            a(f"v_mfma_f32_16x16x16_bf16 {vr(vA1,4)}, {vr(vXX+2*i,2)}, {ar(vb+4*i+2,2)}, {vr(vA1,4)}")
        freeV.append(slotV[t])
        if doiss and nxtV < NT:
            issueV(nxtV); nxtV += 1
            if nxtV == NT and wolate: woloads()
        if t == 1 and not wolate: woloads()
        if t == 0: a(f"v_add_u32 v{vMLW}, {L_ML}, v{vMLW}")
        if t == ypub:
            a(f"s_cmp_lg_u32 s{sW}, 3"); a("s_cbranch_scc1 L_noypub")
            a(f"s_cmp_ge_u32 s{sRG}, 14"); a("s_cbranch_scc1 L_noypub")
            a(f"v_mov_b32 v{vT}, 0")
            a("L_ycnt:")
            a(f"ds_read_b32 v{vT2}, v{vT} offset:{L_CNT}"); a("s_waitcnt lgkmcnt(0)")
            a(f"v_cmp_ne_u32 vcc, 4, v{vT2}"); a("s_cbranch_vccz L_ycntok"); timeout("L_ycnt")
            a("L_ycntok:")
            a("s_mov_b64 exec, 0xffff")
            a(f"s_lshl_b32 s{sTMP}, s{sRG}, 11"); a(f"s_lshl_b32 s{sTMP2}, s{sCOL}, 7"); a(f"s_add_u32 s{sTMP}, s{sTMP}, s{sTMP2}"); a(f"s_add_u32 s{sTMP}, s{sTMP}, {Y_OFF}")
            gemv_reduce(L_Y, vW)
            for r in range(4): a(f"v_bfi_b32 v{vW+r}, v{vFF}, s{sTB+r}, v{vW+r}")
            a("s_mov_b64 exec, 0xff")
            a(f"buffer_store_dwordx4 {vr(vW,4)}, v{vVO}, {sr(rWS,4)}, s{sTMP} offen sc1")
            a("s_mov_b64 exec, -1")
            a("L_noypub:")
        if t == yget:
            a(f"v_lshrrev_b32 v{vT}, 5, v{vL}"); a(f"v_and_b32 v{vT2}, 1, v{vSL}"); a(f"v_lshl_add_u32 v{vT}, v{vT2}, 1, v{vT}")
            a(f"s_and_b32 s{sTMP}, s{sF}, 127"); a(f"s_lshl_b32 s{sTMP}, s{sTMP}, 2"); a(f"v_add_lshl_u32 v{vXO+1}, v{vT}, s{sTMP}, 1")
            a(f"s_cmp_ge_u32 s{sF}, 128"); a("s_cbranch_scc1 L_noyget")
            a(f"global_load_ushort v{vXO}, v{vXO+1}, {sr(sX,2)}")
            a(f"s_lshl_b32 s{sRG}, s{sF}, 4"); a(f"s_add_u32 s{sRG}, s{sRG}, {Y_OFF}")
            for r in range(4): a(f"v_mov_b32 v{vGS+r}, 0")
            a("s_mov_b64 exec, 0x3fff")
            a(f"buffer_load_dwordx4 {vr(vGS,4)}, v{vL2K}, {sr(rWS,4)}, s{sRG} offen sc1")
            a("s_mov_b64 exec, -1")
            a("L_noyget:")
            ymark = len(Q)
        if t == yget + R + 1:
            assert done[0] > ymark
            a(f"s_cmp_ge_u32 s{sF}, 128"); a("s_cbranch_scc1 L_nog")
            a("s_mov_b64 exec, 0x3fff")
            a("L_gchk:")
            for r in range(4): a(f"v_xor_b32 v{vGS+r}, s{sTB+r}, v{vGS+r}")
            a(f"v_or3_b32 v{vT}, v{vGS}, v{vGS+1}, v{vGS+2}"); a(f"v_or_b32 v{vT}, v{vT}, v{vGS+3}"); a(f"v_and_b32 v{vT}, v{vFF}, v{vT}")
            a(f"v_cmp_ne_u32 vcc, 0, v{vT}"); a("s_cbranch_vccnz L_gretry")
            a("L_gok:")
            a("s_mov_b64 exec, -1")
            a(f"v_permlane32_swap_b32 v{vGS}, v{vGS+1}"); a(f"v_permlane32_swap_b32 v{vGS+2}, v{vGS+3}")
            a(f"v_add_f32 v{vGS}, v{vGS}, v{vGS+1}"); a(f"v_add_f32 v{vGS+2}, v{vGS+2}, v{vGS+3}")
            a(f"v_permlane16_swap_b32 v{vGS}, v{vGS+2}"); a(f"v_add_f32 v{vGS}, v{vGS}, v{vGS+2}")
            rowreduce("v_add_f32", (vGS,))
            a(f"v_cvt_pk_bf16_f32 v{vGS}, v{vGS}, v{vGS}"); a(f"v_and_b32 v{vGS}, s{sHI}, v{vGS}")
            a(f"v_mul_f32 v{vT}, {f2u(-L2E):#x}, v{vGS}"); a(f"v_exp_f32 v{vT}, v{vT}"); a(f"v_add_f32 v{vT}, 1.0, v{vT}"); a(f"v_rcp_f32 v{vT}, v{vT}")
            a(f"v_mul_f32 v{vGS}, v{vGS}, v{vT}"); a(f"v_cvt_pk_bf16_f32 v{vGS}, v{vGS}, v{vGS}"); a(f"v_and_b32 v{vGS}, s{sHI}, v{vGS}")
            a(f"v_lshlrev_b32 v{vXO}, 16, v{vXO}")
            a(f"s_lshl_b32 s{sRG}, s{sF}, 4"); a(f"s_add_u32 s{sRG}, s{sRG}, {S_OFF}")
            a("L_nog:")
    if stagger:
        a(f"s_mul_i32 s{sTMP}, s{sJ}, {stagger}"); a(f"s_add_u32 s{sTMP}, s{sTMP}, 2500")
        a("L_stag:"); a("s_memrealtime s[98:99]"); a("s_waitcnt lgkmcnt(0)"); a(f"s_sub_u32 s98, s98, s{sST}"); a(f"s_cmp_lt_u32 s98, s{sTMP}"); a("s_cbranch_scc1 L_stag")
    stamp()
    a(f"v_xor_b32 v{vT}, 64, v{vOAW}")
    a(f"ds_write_b128 v{vOAW}, {vr(vA0,4)} offset:{L_OA}"); a(f"ds_write_b128 v{vT}, {vr(vA1,4)} offset:{L_OA}")
    a("s_waitcnt lgkmcnt(0)")
    a("s_barrier")
    a(f"s_cmp_ge_u32 s{sW}, 2"); a("s_cbranch_scc1 L_nocomb")
    a(f"ds_read_b128 {vr(vSS,4)}, v{vMLR} offset:{L_ML}")
    for w in range(4): a(f"ds_read_b128 {vr(vQ+4*w,4)}, v{vOAR} offset:{L_OA+2048*w}")
    a(f"ds_read_b128 {vr(vTT,4)}, v{vMLR} offset:{L_ML+64}")
    a("s_waitcnt lgkmcnt(5)")
    a(f"v_min3_f32 v{vA1}, v{vSS}, v{vSS+1}, v{vSS+2}"); a(f"v_min_f32 v{vA1}, v{vA1}, v{vSS+3}")
    for w in range(4): a(f"v_sub_f32 v{vSS+w}, v{vA1}, v{vSS+w}")
    for w in range(4): a(f"v_exp_f32 v{vSS+w}, v{vSS+w}")
    for w in range(4):
        a(f"s_waitcnt lgkmcnt({4-w})")
        for r in range(4): a(f"{'v_mul_f32' if w == 0 else 'v_fmac_f32'} v{vA0+r}, v{vSS+w}, v{vQ+4*w+r}")
    for r in range(4): a(f"v_bfi_b32 v{vA0+r}, v{vFF}, s{sTB+r}, v{vA0+r}")
    a(f"buffer_store_dwordx4 {vr(vA0,4)}, v{vVO}, {sr(rWS,4)}, s{sPP} offen {pst}")
    a(f"s_cmp_lg_u32 s{sW}, 0"); a("s_cbranch_scc1 L_nocomb")
    a("s_waitcnt lgkmcnt(0)")
    a(f"v_mul_f32 v{vA1+1}, v{vSS}, v{vTT}")
    for w in range(1, 4): a(f"v_fmac_f32 v{vA1+1}, v{vSS+w}, v{vTT+w}")
    a(f"v_mov_b32 v{vA1+2}, s{sT}"); a(f"v_mov_b32 v{vA1+3}, s{sT}")
    a("s_mov_b64 exec, 0xf")
    a(f"buffer_store_dwordx4 {vr(vA1,4)}, v{vVO}, {sr(rWS,4)}, s{sPM} offen {pst}")
    a("s_mov_b64 exec, -1")
    a("L_nocomb:")
    stamp()
    O0, O1, M0, M1 = vW, vW+4, vW+8, vW+12
    a("L_apoll:")
    a(f"buffer_load_dwordx4 {vr(M0,4)}, v{vGM}, {sr(rWS,4)}, s{sGM} offen sc1")
    a(f"buffer_load_dwordx4 {vr(M1,4)}, v{vGM}, {sr(rWS,4)}, s{sGM} offen offset:1024 sc1")
    a(f"buffer_load_dwordx4 {vr(O0,4)}, v{vGO}, {sr(rWS,4)}, s{sGO0} offen sc1")
    a(f"buffer_load_dwordx4 {vr(O1,4)}, v{vGO}, {sr(rWS,4)}, s{sGO1} offen sc1")
    a("s_waitcnt vmcnt(2)")
    a(f"v_xor_b32 v{M0+2}, s{sT}, v{M0+2}"); a(f"v_xor_b32 v{M1+2}, s{sT}, v{M1+2}")
    a("s_waitcnt vmcnt(0)")
    for i in range(8): a(f"v_xor_b32 v{vW+i}, s{sTB+(i&3)}, v{vW+i}")
    a(f"v_or3_b32 v{vT}, v{vW}, v{vW+1}, v{vW+2}"); a(f"v_or3_b32 v{vT2}, v{vW+3}, v{vW+4}, v{vW+5}"); a(f"v_or3_b32 v{vT}, v{vT}, v{vW+6}, v{vW+7}")
    a(f"v_or_b32 v{vT}, v{vT}, v{vT2}"); a(f"v_and_b32 v{vT}, v{vFF}, v{vT}"); a(f"v_or3_b32 v{vT}, v{vT}, v{M0+2}, v{M1+2}")
    a(f"v_cmp_ne_u32 vcc, 0, v{vT}"); a("s_cbranch_vccz L_aok")
    if maskpoll: a("s_mov_b64 exec, vcc")
    timeout("L_apoll")
    a("L_aok:")
    if maskpoll: a("s_mov_b64 exec, -1")
    stamp()
    a(f"v_min_f32 v{vT}, v{M0}, v{M1}")
    rowreduce("v_min_f32", (vT,))
    a(f"v_sub_f32 v{M0}, v{vT}, v{M0}"); a(f"v_sub_f32 v{M1}, v{vT}, v{M1}")
    a(f"v_exp_f32 v{M0}, v{M0}"); a(f"v_exp_f32 v{M1}, v{M1}")
    a(f"v_mul_f32 v{vT}, v{M0}, v{M0+1}"); a(f"v_fmac_f32 v{vT}, v{M1}, v{M1+1}")
    for r in range(4): a(f"v_mul_f32 v{O0+r}, v{O0+r}, v{M0}")
    for r in range(4): a(f"v_fmac_f32 v{O0+r}, v{O1+r}, v{M1}")
    rowreduce("v_add_f32", [vT] + [O0+r for r in range(4)])
    a(f"v_rcp_f32 v{vT}, v{vT}")
    for r in range(4): a(f"v_mul_f32 v{O0+r}, v{O0+r}, v{vT}")
    for r in range(4): a(f"v_cvt_pk_bf16_f32 v{O0+r}, v{O0+r}, v{O0+r}")
    for r in range(4):
        for t in range(4): a(f"v_and_b32 v{vQ+4*r+t}, v{O0+r}, v{vMK+t}")
        if r > 0: a(f"v_mfma_f32_16x16x32_bf16 {vr(vA0,4)}, {vr(vQ+4*(r-1),4)}, {vr(vWO+4*(r-1),4)}, {'0' if r == 1 else vr(vA0,4)}")
    a(f"v_mfma_f32_16x16x32_bf16 {vr(vA0,4)}, {vr(vQ+12,4)}, {vr(vWO+12,4)}, {vr(vA0,4)}")
    a("s_mov_b32 exec_hi, 0")
    a(f"ds_write_b128 v{vSRW}, {vr(vA0,4)} offset:{L_SR}")
    a("s_waitcnt lgkmcnt(0)")
    a("s_barrier")
    a(f"s_cmp_lg_u32 s{sW}, 0"); a("s_cbranch_scc1 L_nopub")
    for w in range(4): a(f"ds_read_b128 {vr(vQ+4*w,4)}, v{vVO} offset:{L_SR+512*w}")
    a("s_waitcnt lgkmcnt(2)")
    for r in range(4): a(f"v_add_f32 v{vQ+r}, v{vQ+r}, v{vQ+4+r}")
    a("s_waitcnt lgkmcnt(0)")
    for r in range(4): a(f"v_add_f32 v{vQ+8+r}, v{vQ+8+r}, v{vQ+12+r}")
    for r in range(4): a(f"v_add_f32 v{vQ+r}, v{vQ+r}, v{vQ+8+r}")
    for r in range(4): a(f"v_bfi_b32 v{vQ+r}, v{vFF}, s{sTB+r}, v{vQ+r}")
    a(f"buffer_store_dwordx4 {vr(vQ,4)}, v{vVO}, {sr(rWS,4)}, s{sPS} offen sc1")
    a("L_nopub:")
    a("s_mov_b64 exec, -1")
    a(f"s_cmp_ge_u32 s{sF}, 128"); a("s_cbranch_scc1 L_fin")
    a("L_bpoll:")
    a(f"buffer_load_dwordx4 {vr(vSS,4)}, v{vL2K}, {sr(rWS,4)}, s{sRG} offen sc1")
    a("s_waitcnt vmcnt(0)")
    for r in range(4): a(f"v_xor_b32 v{vSS+r}, s{sTB+r}, v{vSS+r}")
    a(f"v_or3_b32 v{vT}, v{vSS}, v{vSS+1}, v{vSS+2}"); a(f"v_or_b32 v{vT}, v{vT}, v{vSS+3}"); a(f"v_and_b32 v{vT}, v{vFF}, v{vT}")
    a(f"v_cmp_ne_u32 vcc, 0, v{vT}"); a("s_cbranch_vccz L_bok")
    if maskpoll: a("s_mov_b64 exec, vcc")
    timeout("L_bpoll")
    a("L_bok:")
    if maskpoll: a("s_mov_b64 exec, -1")
    a(f"v_permlane32_swap_b32 v{vSS}, v{vSS+1}"); a(f"v_permlane32_swap_b32 v{vSS+2}, v{vSS+3}")
    a(f"v_add_f32 v{vSS}, v{vSS}, v{vSS+1}"); a(f"v_add_f32 v{vSS+2}, v{vSS+2}, v{vSS+3}")
    a(f"v_permlane16_swap_b32 v{vSS}, v{vSS+2}"); a(f"v_add_f32 v{vSS}, v{vSS}, v{vSS+2}")
    rowreduce("v_add_f32", (vSS,))
    a(f"v_cvt_pk_bf16_f32 v{vSS}, v{vSS}, v{vSS}"); a(f"v_and_b32 v{vSS}, s{sHI}, v{vSS}")
    a(f"v_mul_f32 v{vSS}, v{vSS}, v{vGS}")
    a(f"v_cvt_pk_bf16_f32 v{vSS}, v{vSS}, v{vSS}"); a(f"v_and_b32 v{vSS}, s{sHI}, v{vSS}")
    a(f"v_add_f32 v{vSS}, v{vSS}, v{vXO}")
    a(f"v_cvt_pk_bf16_f32 v{vSS}, v{vSS}, v{vSS}")
    a("s_mov_b32 exec_lo, 0x00010001"); a("s_mov_b32 exec_hi, 0x00010001")
    a(f"global_store_short v{vXO+1}, v{vSS}, {sr(sOUT,2)}")
    a(f"s_cmp_lg_u32 s{sF}, 0"); a("s_cbranch_scc1 L_fin")
    a("s_mov_b64 exec, 1")
    a(f"v_mov_b32 v{vT}, s{sT}"); a(f"s_mov_b32 s{sTMP}, {E_OFF}")
    a(f"buffer_store_dword v{vT}, v{vVO}, {sr(rWS,4)}, s{sTMP} offen sc1")
    a("L_fin:")
    if stamps:
        stamp()
        a("s_mov_b64 exec, -1")
        a("s_waitcnt lgkmcnt(0)")
        for i in range(nst[0]): a(f"v_writelane_b32 v{vT2}, s{sST+2*i}, {i}")
        a(f"v_writelane_b32 v{vT2}, s{sTMO}, 15")
        a(f"s_lshl_b32 s{sTMP}, s2, 2"); a(f"s_add_u32 s{sTMP}, s{sTMP}, s{sW}"); a(f"s_lshl_b32 s{sTMP}, s{sTMP}, 6"); a(f"s_add_u32 s{sTMP}, s{sTMP}, {ST_OFF}")
        a(f"v_lshlrev_b32 v{vTT}, 2, v{vL}")
        a("s_mov_b64 exec, 0xffff")
        a(f"buffer_store_dword v{vT2}, v{vTT}, {sr(rWS,4)}, s{sTMP} offen")
    a("L_done:")
    a("s_endpgm")
    a("L_qretry:")
    a(f"s_sub_u32 s{sTMO}, s{sTMO}, 1"); a(f"s_cmp_le_i32 s{sTMO}, 0"); a("s_cbranch_scc1 L_qok")
    qloads("sc1", False)
    a("s_waitcnt vmcnt(0)")
    a("s_branch L_qchk")
    a("L_gretry:")
    a(f"s_sub_u32 s{sTMO}, s{sTMO}, 1"); a(f"s_cmp_le_i32 s{sTMO}, 0"); a("s_cbranch_scc1 L_gok")
    a(f"buffer_load_dwordx4 {vr(vGS,4)}, v{vL2K}, {sr(rWS,4)}, s{sRG} offen sc1")
    a("s_waitcnt vmcnt(0)")
    a("s_branch L_gchk")
    a("L_resc:")
    a(f"v_max3_f32 v{vT}, v{vSS}, v{vSS+1}, v{vSS+2}"); a(f"v_max_f32 v{vT}, v{vT}, v{vSS+3}")
    a(f"v_mul_f32 v{vT}, {f2u(-L2E):#x}, v{vT}")
    allreduce_rows("v_min_f32", vT, vXX)
    a(f"v_min_f32 v{vT}, v{vT}, v{vNM}")
    a(f"v_sub_f32 v{vXX}, v{vT}, v{vNM}")
    a(f"v_mov_b32 v{vNM}, v{vT}")
    a(f"v_exp_f32 v{vXX}, v{vXX}")
    for i in range(4): a(f"v_fma_f32 v{vTT+i}, v{vSS+i}, s{sL2E}, v{vNM}")
    a(f"v_mul_f32 v{vLS}, v{vLS}, v{vXX}")
    for R_ in range(4): a(f"v_mov_b32_dpp v{vXX+1}, v{vXX} row_newbcast:{4*R_} row_mask:{1<<R_:#x} bank_mask:0xf")
    for r in range(8): a(f"v_mul_f32 v{vA0+r}, v{vA0+r}, v{vXX+1}")
    a(f"s_setpc_b64 {sr(sRET,2)}")
    for t in range(NT):
        a(f"L_resc{t}:"); a(f"s_call_b64 {sr(sRET,2)}, L_resc"); a(f"s_branch L_back{t}")
    body = a.finish()
    txt = HEADER + f"; @launch grid=(256,1,1) block=(256,1,1) lds={lds}\n"
    txt += f'.amdgcn_target "amdgcn-amd-amdhsa--gfx950"\n.text\n.globl {NAME}_kernel\n.p2align 8\n.type {NAME}_kernel,@function\n'
    txt += body + "L_codeend:\n"
    txt += f'''.section .rodata,"a"
.p2align 6
.amdhsa_kernel {NAME}_kernel
  .amdhsa_next_free_vgpr {max(NV + 32*NS, 264)}
  .amdhsa_next_free_sgpr 102
  .amdhsa_accum_offset {NV}
  .amdhsa_group_segment_fixed_size 0
  .amdhsa_kernarg_size 96
  .amdhsa_user_sgpr_count 2
  .amdhsa_user_sgpr_kernarg_segment_ptr 1
  .amdhsa_system_sgpr_workgroup_id_x 1
  .amdhsa_float_denorm_mode_32 3
.end_amdhsa_kernel
'''
    return txt

if __name__ == "__main__":
    kw = {}
    for x in sys.argv[2:]:
        k, v = x.split("=", 1)
        try: v = eval(v)
        except Exception: pass
        kw[k] = v
    open(sys.argv[1], "w").write(gen(**kw))
```

```python
import sys, struct
from asmlib import Asm
NAME = "recurrent_scan__gqa_block_cached__glu_gated_glu__decode"
def f2u(x): return struct.unpack("<I", struct.pack("<f", x))[0]
HEADER = open("cdna_kernels/%s.s.ref" % NAME).read().split("; Override launch")[0]
L2E = 1.4426950408889634

def rank_table(D, sig, G=32):
    from statistics import NormalDist
    tot = D*4*G
    ideal = [tot/G - sig*NormalDist().inv_cdf((r+0.5)/G) for r in range(G)]
    p = [0]; acc = 0
    for r in range(G):
        acc += ideal[r]; p.append(round(acc))
    assert p[-1] == tot and all(b-a >= 0 for a, b in zip(p, p[1:])), p
    return p

def gen(NS=8, pre=3, qpos=None, lds=16384, kvflags="nt", wflags="nt", wsbase=0, stamps=False, thr=8.0,
        codepf=True, tmo=1<<16, q1="", ypub=12, yget=18, xget=16, touch=24, tstamps=False, notail=False,
        pa=0, pb=0, bdelay=0, kseq="pp"+"r"*30, kdyn="p", fine=False, D=2, TD=24, sig=2.0, force=None, table=None, early=True, touchs=True):
    R = 2; NT = 32; NST = NT - D; faststart = True; cx = 0; slay = "prod"; DA = DB = 1
    a = Asm()
    qpos = NS-2 if qpos is None else qpos
    E_OFF, A1_OFF, Y_OFF, ML_OFF, S_OFF, P_OFF, ST_OFF = [wsbase + x for x in (0, 0x1000, 0x10000, 0x20000, 0x40000, 0x80000, 0x100000)]
    X_OFF, C_OFF = wsbase + 0x30000, wsbase + 0x34000
    WS_BYTES = 0x20000000
    L_S1, L_Y, L_CNT, L_ML, L_OA, L_SR = 0, 2048, 4096, 4224, 4608, 12800
    assert L_SR + 2048 <= lds
    sX, sK, sV, sWQ, sWO, sG, sU, sDN, sOUT, sWS = 4, 6, 8, 10, 12, 16, 18, 20, 22, 26
    rK, rV, rW1, rWS, rDN = 28, 32, 36, 40, 44
    sW, sKVH, sJ, sOFK, sOFV, sCB, sSTR, sT, sTMP, sTMP2 = 48, 49, 50, 51, 52, 53, 54, 55, 56, 57
    sRET = 58
    sTLO, sTHI, sSC, sL2E = 60, 61, 62, 63
    sTB = 64
    sHI, sTHR, sTMO, sX7, sCOL, sRG, sF, sPP, sPM, sPS = 68, 69, 70, 71, 72, 73, 74, 75, 76, 77
    sPC = 78
    sDG = 14
    sGO0, sGO1, sGM, sGS = 24, 25, 3, 2
    sST = 80
    vL, vKO, vVO, vM0, vM1, vNM, vLS, vT = 0, 1, 2, 3, 4, 5, 6, 7
    vA0, vA1, vSS, vTT, vXX, vQ = 8, 12, 16, 20, 24, 32
    vSL, vE, vBK, vN, vFF, vOAW, vOAR, vMLW, vMLR, vGO, vGM, vSRW, vL2K, vWOO, vDGA, vT2 = range(48, 64)
    vW, vD, vGU, vWO, vMK, vGS, vXO, vF = 64, 96, 104, 108, 124, 128, 132, 136
    vTS, vVW, vKP = 144, 145, 146
    vQP, vP = 148, 152
    NV = vP + max(16*DA, 4*DB, 16)
    sM1, sM2, sM3 = 16, 18, 10
    sFAST, sXV, sLOC, sG0, sG1, sTAB = 36, 37, 38, 6, 7, 8
    vXG = 147
    def vr(b, n): return f"v[{b}:{b+n-1}]"
    def ar(b, n): return f"a[{b}:{b+n-1}]"
    def sr(b, n): return f"s[{b}:{b+n-1}]"
    nst = [0]
    def stamp():
        if stamps:
            a(f"s_memrealtime s[{sST+2*nst[0]}:{sST+2*nst[0]+1}]"); nst[0] += 1
    Q = []; done = [0]
    def vm(tag, text): a(text); Q.append(tag)
    def wait(tag):
        idx = max(i for i, t in enumerate(Q) if t == tag)
        if idx < done[0]: return
        n = min(len(Q) - 1 - idx, 63)
        a(f"s_waitcnt vmcnt({n})"); done[0] = len(Q) - n
    def allreduce_rows(op, v, t):
        a(f"v_mov_b32 v{t}, v{v}"); a(f"v_permlane16_swap_b32 v{v}, v{t}"); a(f"{op} v{v}, v{v}, v{t}")
        a(f"v_mov_b32 v{t}, v{v}"); a(f"v_permlane32_swap_b32 v{v}, v{t}"); a(f"{op} v{v}, v{v}, v{t}")
    def rowreduce(op, vs, steps=(8, 4, 2, 1)):
        for st in steps:
            for v in vs: a(f"{op}_dpp v{v}, v{v}, v{v} row_ror:{st} row_mask:0xf bank_mask:0xf")
    def unpack(dst, src, n):
        for i in range(n):
            a(f"v_lshlrev_b32 v{dst+2*i}, 16, v{src+i}"); a(f"v_and_b32 v{dst+2*i+1}, s{sHI}, v{src+i}")
    freeK = list(range(NS)); freeV = list(range(NS)); slotK = {}; slotV = {}
    def ldK(s, pat, so, tag):
        vo, st = (vKO, 64) if pat == "r" else (vKP, 1024)
        for jj in range(4): vm(tag, f"buffer_load_dwordx4 {ar(32*s+4*jj,4)}, v{vo}, {sr(rK,4)}, s{so} offen offset:{st*jj} {kvflags}")
    def ldV(s, so, tag):
        for i in range(4): vm(tag, f"buffer_load_dwordx4 {ar(32*s+16+4*i,4)}, v{vVW}, {sr(rV,4)}, s{so} offen offset:{1024*i} {kvflags}")
    def issueK(t):
        s = slotK[t] = freeK.pop(0)
        ldK(s, kseq[t], sOFK, ("K", t))
        if t < NST-1: a(f"s_add_u32 s{sOFK}, s{sOFK}, 0x4000")
    def issueV(t):
        s = slotV[t] = freeV.pop(0)
        ldV(s, sOFV, ("V", t))
        if t < NST-1: a(f"s_add_u32 s{sOFV}, s{sOFV}, 0x4000")
        if tstamps:
            a("s_memrealtime s[98:99]"); a("s_waitcnt lgkmcnt(0)"); a(f"v_writelane_b32 v{vTS}, s98, {16+t}")
    def gemv(vAop, vB, n, tag):
        for i in range(n):
            wait((tag, i))
            c0 = "0" if i == 0 else vr(vA0,4); c1 = "0" if i == 0 else vr(vA1,4)
            a(f"v_mfma_f32_16x16x16_bf16 {vr(vA0,4)}, {vr(vAop+2*i,2)}, {vr(vB+4*i,2)}, {c0}")
            a(f"v_mfma_f32_16x16x16_bf16 {vr(vA1,4)}, {vr(vAop+2*i,2)}, {vr(vB+4*i+2,2)}, {c1}")
    def gemv_store(base):
        a(f"s_mov_b64 exec, {sr(sDG,2)}")
        a(f"ds_write_b128 v{vDGA}, {vr(vA0,4)} offset:{base}"); a(f"ds_write_b128 v{vDGA}, {vr(vA1,4)} offset:{base+16}")
        a("s_mov_b64 exec, -1")
    def gemv_reduce(base, tmp):
        for p in range(8): a(f"ds_read_b128 {vr(tmp+4*p,4)}, v{vVO} offset:{base+256*p}")
        for step in (16, 8, 4):
            if step == 16: a("s_waitcnt lgkmcnt(0)")
            for r in range(step): a(f"v_add_f32 v{tmp+r}, v{tmp+r}, v{tmp+step+r}")
        rowreduce("v_add_f32", [tmp+r for r in range(4)], (8,))
    def timeout(lbl):
        a(f"s_sub_u32 s{sTMO}, s{sTMO}, 1"); a(f"s_cmp_gt_i32 s{sTMO}, 0"); a(f"s_cbranch_scc1 {lbl}")

    a(f"{NAME}_kernel:")
    stamp()
    a(f"s_load_dwordx2 {sr(rV,2)}, s[0:1], 16"); a(f"s_load_dwordx2 {sr(rK,2)}, s[0:1], 8")
    a("s_load_dwordx16 s[4:19], s[0:1], 0"); a("s_load_dwordx8 s[20:27], s[0:1], 64")
    a("s_cmpk_ge_u32 s2, 256"); a("s_cbranch_scc1 L_done")
    a(f"s_and_b32 s{sX7}, s2, 7"); a(f"s_lshr_b32 s{sJ}, s2, 3")
    a(f"s_lshl_b32 s{sOFK}, s{sX7}, 24"); a(f"s_lshl_b32 s{sTMP}, s{sJ}, 19"); a(f"s_or_b32 s{sOFK}, s{sOFK}, s{sTMP}"); a(f"s_mov_b32 s{sOFV}, s{sOFK}")
    a(f"v_lshrrev_b32 v{vT2}, 6, v0"); a(f"v_and_b32 v{vL}, 63, v0")
    a(f"v_lshlrev_b32 v{vVO}, 4, v{vL}"); a(f"v_lshl_add_u32 v{vVW}, v{vT2}, 12, v{vVO}")
    a(f"s_lshl_b32 s{rV+2}, 1, 27"); a(f"s_mov_b32 s{rV+3}, 0x20000")
    def setup1():
        a(f"v_readfirstlane_b32 s{sW}, v{vT2}")
        a(f"s_lshl_b32 s{rK+2}, 1, 27"); a(f"s_mov_b32 s{rK+3}, 0x20000")
        a(f"v_lshrrev_b32 v{vSL}, 4, v{vL}"); a(f"v_and_b32 v{vE}, 3, v{vL}"); a(f"v_bfe_u32 v{vBK}, v{vL}, 2, 2"); a(f"v_and_b32 v{vN}, 15, v{vL}")
        a(f"v_lshlrev_b32 v{vT}, 12, v{vT2}"); a(f"v_lshl_add_u32 v{vT}, v{vSL}, 4, v{vT}")
        a(f"v_lshl_add_u32 v{vKO}, v{vE}, 2, v{vBK}"); a(f"v_lshl_add_u32 v{vKO}, v{vKO}, 8, v{vT}")
        a(f"v_lshl_add_u32 v{vKP}, v{vN}, 6, v{vT}")
    def setup2():
        if codepf:
            a(f"s_getpc_b64 {sr(sPC,2)}")
            a("L_pc:")
            a(f"v_and_b32 v{vT}, 7, v0"); a(f"v_lshl_add_u32 v{vT}, s{sJ}, 3, v{vT}"); a(f"v_lshlrev_b32 v{vT}, 7, v{vT}")
            a(f"v_min_u32 v{vT}, L_codeend-L_pc-4, v{vT}")
            vm("pf", f"global_load_dword v{vT2}, v{vT}, {sr(sPC,2)}")
        a(f"s_mov_b32 s{sKVH}, s{sX7}")
        a(f"s_mul_i32 s{sCB}, s{sX7}, 30"); a(f"s_add_u32 s{sCB}, s{sCB}, s{sJ}")
        a(f"s_movk_i32 s{sCOL}, 184"); a(f"s_cmp_lt_u32 s{sCB}, s{sCOL}"); a(f"s_cselect_b32 s{sCOL}, 128, s{sCOL}")
        a(f"s_cmp_lt_u32 s{sCB}, 128"); a(f"s_cselect_b32 s{sCOL}, 0, s{sCOL}")
        a(f"s_movk_i32 s{sSTR}, 3584"); a(f"s_cselect_b32 s{sSTR}, 8192, s{sSTR}")
        a(f"s_sub_u32 s{sCOL}, s{sCB}, s{sCOL}"); a(f"s_lshl_b32 s{sCOL}, s{sCOL}, 6")
        a(f"s_lshl_b32 s{sTMP}, s{sW}, 7"); a(f"s_mul_i32 s{sTMP}, s{sTMP}, s{sSTR}"); a(f"s_add_u32 s{sCOL}, s{sCOL}, s{sTMP}")
        a(f"v_lshrrev_b32 v{vT}, 2, v{vL}")
        a(f"s_lshl_b32 s{sTMP}, s{sW}, 8"); a(f"v_lshl_add_u32 v{vGO}, v{vT}, 4, s{sTMP}")
        a(f"s_lshl_b32 s{sTMP}, s{sSTR}, 3")
        a(f"v_mul_u32_u24 v{vGM}, s{sTMP}, v{vT}"); a(f"v_lshl_add_u32 v{vGM}, v{vE}, 4, v{vGM}")
        a(f"v_mov_b32 v{vNM}, {E_OFF}")
        a(f"s_mov_b32 s{rW1+3}, 0x20000")
        a(f"s_lshl_b32 s{rW1+2}, s{sSTR}, 9"); a(f"s_cmp_lt_u32 s{sJ}, 30"); a(f"s_cselect_b32 s{rW1+2}, s{rW1+2}, 0")
    if faststart:
        a("s_waitcnt lgkmcnt(0)"); stamp()
        issueV(0); setup1(); setup2()
    else:
        setup1(); setup2()
        a("s_waitcnt lgkmcnt(0)"); stamp()
    vm("x", f"global_load_dword v{vNM}, v{vNM}, {sr(sWS,2)} sc1")
    vm("x", f"global_load_dwordx4 {vr(vSS,4)}, v{vVO}, {sr(sX,2)}")
    vm("x", f"global_load_dwordx4 {vr(vTT,4)}, v{vGO}, {sr(sX,2)}")
    if D:
        a(f"s_and_b32 s{sTMP}, s{sCB}, 0x8f"); a(f"s_or_b32 s{sTMP}, s{sTMP}, s{sW}"); a(f"s_cmp_lg_u32 s{sTMP}, 0"); a("s_cbranch_scc1 L_noinit")
        a(f"s_cmp_ge_u32 s{sJ}, 30"); a("s_cbranch_scc1 L_noinit")
        a(f"s_mul_i32 s{sTMP}, s{sCB}, {4352//16}"); a(f"s_add_u32 s{sTMP}, s{sTMP}, {C_OFF}")
        a(f"v_mov_b32 v{vA0}, s{sTMP}"); a(f"v_mov_b32 v{vA0+1}, 0")
        a("s_mov_b64 exec, 1"); a(f"global_store_dword v{vA0}, v{vA0+1}, {sr(sWS,2)} sc1"); a("s_mov_b64 exec, -1")
        a("L_noinit:")
    a(f"s_cmp_lt_u32 s{sCB}, 184"); a(f"s_cselect_b64 {sr(rW1,2)}, {sr(sG,2)}, {sr(sU,2)}")
    a(f"s_cmp_lt_u32 s{sCB}, 128"); a(f"s_cselect_b64 {sr(rW1,2)}, {sr(sWQ,2)}, {sr(rW1,2)}")
    for i in range(8):
        vm(("w1", i), f"buffer_load_dwordx4 {vr(vW+4*i,4)}, v{vGM}, {sr(rW1,4)}, s{sCOL} offen {wflags}")
        if i < 7: a(f"s_add_u32 s{sCOL}, s{sCOL}, s{sSTR}")
    issueK(0)
    if not faststart: issueV(0)
    for k, m in ((sM1, 0x22222222), (sM2, 0x44444444), (sM3, 0x88888888)):
        a(f"s_mov_b32 s{k}, {m:#x}"); a(f"s_mov_b32 s{k+1}, s{k}")
    a(f"s_mov_b32 s{sHI}, 0xffff0000"); a(f"s_mov_b32 s{sSC}, {f2u(128**-0.5):#x}"); a(f"s_mov_b32 s{sL2E}, {f2u(L2E):#x}")
    a(f"s_mov_b32 s{sTHR}, {f2u(thr):#x}"); a(f"s_mov_b32 s{sTMO}, {tmo}")
    a(f"s_mov_b64 {sr(rWS,2)}, {sr(sWS,2)}"); a(f"s_mov_b32 s{rWS+2}, {WS_BYTES:#x}"); a(f"s_mov_b32 s{rWS+3}, 0x20000")
    a(f"s_mov_b32 s{sDG}, 0x00f0000f"); a(f"s_mov_b32 s{sDG+1}, 0xf0000f00")
    a(f"v_and_b32 v{vT}, 1, v{vL}"); a(f"v_lshlrev_b32 v{vT}, 4, v{vT}"); a(f"v_mov_b32 v{vM1}, 0xffff")
    wait("x")
    a(f"v_lshlrev_b32 v{vT2}, v{vT}, v{vM1}")
    a(f"v_cmp_gt_u32 vcc, 2, v{vE}"); a(f"v_cndmask_b32 v{vM0}, 0, v{vT2}, vcc"); a(f"v_xor_b32 v{vM1}, v{vT2}, v{vM0}")
    a(f"v_bfe_u32 v{vT}, v{vL}, 1, 2")
    for t in range(4):
        a(f"v_cmp_eq_u32 vcc, {t}, v{vT}"); a(f"v_cndmask_b32 v{vMK+t}, 0, v{vT2}, vcc")
    a(f"v_readfirstlane_b32 s{sT}, v{vNM}")
    F = vF
    unpack(F, vSS, 4)
    a(f"v_add_f32 v{vA0}, v{F}, v{F+1}")
    for i in range(2, 8): a(f"v_add_f32 v{vA0}, v{vA0}, v{F+i}")
    rowreduce("v_add_f32", (vA0,)); allreduce_rows("v_add_f32", vA0, vT)
    a(f"v_mul_f32 v{vA0}, {f2u(1/512):#x}, v{vA0}")
    for i in range(8): a(f"v_sub_f32 v{F+i}, v{F+i}, v{vA0}")
    a(f"v_mul_f32 v{vA1}, v{F}, v{F}")
    for i in range(1, 8): a(f"v_fmac_f32 v{vA1}, v{F+i}, v{F+i}")
    rowreduce("v_add_f32", (vA1,)); allreduce_rows("v_add_f32", vA1, vT)
    a(f"v_mul_f32 v{vA1}, {f2u(1/512):#x}, v{vA1}")
    a(f"v_cvt_pk_bf16_f32 v{vA0}, v{vA0}, v{vA1}")
    a(f"v_and_b32 v{vA1}, s{sHI}, v{vA0}"); a(f"v_lshlrev_b32 v{vA0}, 16, v{vA0}")
    a(f"v_add_f32 v{vA1}, {f2u(1e-5):#x}, v{vA1}")
    a(f"v_cvt_pk_bf16_f32 v{vA1}, v{vA1}, v{vA1}"); a(f"v_and_b32 v{vA1}, s{sHI}, v{vA1}")
    a(f"v_sqrt_f32 v{vA1}, v{vA1}")
    a(f"v_cvt_pk_bf16_f32 v{vA1}, v{vA1}, v{vA1}"); a(f"v_and_b32 v{vA1}, s{sHI}, v{vA1}")
    a(f"v_rcp_f32 v{vA1}, v{vA1}")
    unpack(F, vTT, 4)
    for i in range(8): a(f"v_sub_f32 v{F+i}, v{F+i}, v{vA0}")
    for i in range(4): a(f"v_cvt_pk_bf16_f32 v{vTT+i}, v{F+2*i}, v{F+2*i+1}")
    unpack(F, vTT, 4)
    for i in range(8): a(f"v_mul_f32 v{F+i}, v{F+i}, v{vA1}")
    for i in range(8): a(f"v_cvt_pk_bf16_f32 v{F+i}, v{F+i}, v{F+i}")
    for i in range(8):
        a(f"v_and_b32 v{vQ+2*i}, v{F+i}, v{vM0}"); a(f"v_and_b32 v{vQ+2*i+1}, v{F+i}, v{vM1}")
    for t in range(1, pre): issueK(t); issueV(t)
    gemv(vQ, vW, 8, "w1")
    a(f"s_add_u32 s{sT}, s{sT}, 0x01010101")
    a(f"s_and_b32 s{sTLO}, s{sT}, 0xffff"); a(f"s_lshr_b32 s{sTHI}, s{sT}, 16")
    for k in range(4): a(f"s_bfe_u32 s{sTB+k}, s{sT}, {(8<<16)|(8*k):#x}")
    a(f"s_lshl_b32 s{sTMP}, s{sW}, 9"); a(f"v_lshl_add_u32 v{vDGA}, v{vSL}, 7, s{sTMP}"); a(f"v_lshl_add_u32 v{vDGA}, v{vE}, 5, v{vDGA}")
    a(f"v_mov_b32 v{vT}, 0"); a(f"v_mov_b32 v{vT2}, -1"); a(f"ds_write_b32 v{vT}, v{vT} offset:{L_CNT}"); a(f"ds_write_b32 v{vT}, v{vT2} offset:{L_CNT+4}")
    gemv_store(L_S1)
    a("s_waitcnt lgkmcnt(0)")
    a("s_barrier")
    a(f"s_cmp_lg_u32 s{sW}, 0"); a("s_cbranch_scc1 L_pub1_done")
    a(f"s_cmp_eq_u32 s{rW1+2}, 0"); a("s_cbranch_scc1 L_pub1_done")
    a("s_mov_b64 exec, 0xffff")
    a(f"s_lshl_b32 s{sTMP}, s{sCB}, 7"); a(f"s_add_u32 s{sTMP}, s{sTMP}, {A1_OFF}")
    a(f"v_mov_b32 v{vT}, s{sHI}")
    gemv_reduce(L_S1, vW)
    a(f"v_cvt_pk_bf16_f32 v{vW+1}, v{vW}, v{vW+1}"); a(f"v_cvt_pk_bf16_f32 v{vW+3}, v{vW+2}, v{vW+3}")
    a(f"v_lshl_or_b32 v{vA0}, v{vW+1}, 16, s{sTLO}"); a(f"v_and_or_b32 v{vA0+1}, v{vW+1}, v{vT}, s{sTHI}")
    a(f"v_lshl_or_b32 v{vA0+2}, v{vW+3}, 16, s{sTLO}"); a(f"v_and_or_b32 v{vA0+3}, v{vW+3}, v{vT}, s{sTHI}")
    a("s_mov_b64 exec, 0xff")
    a(f"buffer_store_dwordx4 {vr(vA0,4)}, v{vVO}, {sr(rWS,4)}, s{sTMP} offen sc1")
    a("s_mov_b64 exec, -1")
    a("L_pub1_done:")
    a(f"s_getreg_b32 s{sTMP}, hwreg(HW_REG_XCC_ID, 0, 4)"); a(f"s_lshl_b32 s{sXV}, s{sT}, 4"); a(f"s_or_b32 s{sXV}, s{sXV}, s{sTMP}")
    a(f"s_cmp_lg_u32 s{sW}, 1"); a("s_cbranch_scc1 L_nox")
    a(f"s_lshl_b32 s{sTMP}, s{sKVH}, 8"); a(f"s_lshl_b32 s{sTMP2}, s{sJ}, 2"); a(f"s_add_u32 s{sTMP}, s{sTMP}, s{sTMP2}"); a(f"s_add_u32 s{sTMP}, s{sTMP}, {X_OFF}")
    a(f"v_mov_b32 v{vT}, s{sXV}")
    a("s_mov_b64 exec, 1"); a(f"buffer_store_dword v{vT}, v{vVO}, {sr(rWS,4)}, s{sTMP} offen sc1"); a("s_mov_b64 exec, -1")
    a("L_nox:")
    stamp()
    issueK(pre); issueV(pre)
    a(f"s_lshr_b32 s{sTMP}, s2, 7"); a(f"s_lshl_b32 s{sRG}, s{sTMP}, 3"); a(f"s_add_u32 s{sRG}, s{sRG}, s{sX7}")
    a(f"s_mov_b64 {sr(rDN,2)}, {sr(sDN,2)}"); a(f"s_mov_b32 s{rDN+2}, {1792*1024}"); a(f"s_mov_b32 s{rDN+3}, 0x20000")
    a(f"s_bfe_u32 s{sCOL}, s2, {(4<<16)|3:#x}")
    a(f"s_lshl_b32 s{sTMP}, s{sRG}, 2"); a(f"s_add_u32 s{sSTR}, s{sTMP}, s{sW}")
    a(f"s_lshl_b32 s{sTMP}, s{sSTR}, 15"); a(f"s_lshl_b32 s{sTMP2}, s{sCOL}, 6"); a(f"s_add_u32 s{sTMP}, s{sTMP}, s{sTMP2}")
    a(f"v_lshrrev_b32 v{vT2}, 2, v{vL}"); a(f"v_lshlrev_b32 v{vT}, 11, v{vT2}"); a(f"v_lshl_add_u32 v{vT}, v{vE}, 4, v{vT}")
    for i in range(2): vm(("dn", i), f"buffer_load_dwordx4 {vr(vD+4*i,4)}, v{vT}, {sr(rDN,4)}, s{sTMP} offen offset:{1024*i} {wflags}")
    a(f"v_mov_b32 v{vFF}, 0xff")
    a(f"v_and_b32 v{vT}, 7, v{vL}"); a(f"v_xor_b32 v{vT}, v{vT}, v{vSL}"); a(f"v_lshlrev_b32 v{vT}, 4, v{vT}")
    a(f"v_lshl_add_u32 v{vOAW}, v{vN}, 7, v{vT}"); a(f"s_lshl_b32 s{sTMP}, s{sW}, 11"); a(f"v_add_u32 v{vOAW}, s{sTMP}, v{vOAW}")
    a(f"v_lshrrev_b32 v{vT}, 3, v{vL}"); a(f"v_xor_b32 v{vOAR}, v{vT}, v{vL}"); a(f"v_and_b32 v{vOAR}, 7, v{vOAR}"); a(f"v_lshlrev_b32 v{vOAR}, 4, v{vOAR}")
    a(f"v_lshl_add_u32 v{vOAR}, v{vT}, 7, v{vOAR}"); a(f"s_and_b32 s{sTMP}, s{sW}, 1"); a(f"s_lshl_b32 s{sTMP}, s{sTMP}, 10"); a(f"v_add_u32 v{vOAR}, s{sTMP}, v{vOAR}")
    a(f"s_lshl_b32 s{sPM}, s{sKVH}, 5"); a(f"s_add_u32 s{sPM}, s{sPM}, s{sJ}")
    a(f"s_lshl_b32 s{sPP}, s{sPM}, 11"); a(f"s_add_u32 s{sPP}, s{sPP}, s{sTMP}"); a(f"s_add_u32 s{sPP}, s{sPP}, {P_OFF}")
    a(f"s_lshl_b32 s{sPM}, s{sPM}, 6"); a(f"s_add_u32 s{sPM}, s{sPM}, {ML_OFF}")
    a(f"s_lshl_b32 s{sTMP}, s{sW}, 2"); a(f"v_lshl_add_u32 v{vMLW}, v{vBK}, 4, s{sTMP}"); a(f"v_lshlrev_b32 v{vMLR}, 4, v{vE}")
    a(f"v_lshl_add_u32 v{vSRW}, v{vN}, 1, v{vSL}"); a(f"v_lshlrev_b32 v{vSRW}, 4, v{vSRW}"); a(f"s_lshl_b32 s{sTMP}, s{sW}, 9"); a(f"v_add_u32 v{vSRW}, s{sTMP}, v{vSRW}")
    a(f"v_lshlrev_b32 v{vL2K}, 11, v{vL}")
    a(f"v_lshlrev_b32 v{vWOO}, 4, v{vN}"); a(f"v_lshl_add_u32 v{vWOO}, v{vSL}, 17, v{vWOO}")
    a(f"s_lshl_b32 s{sTMP}, s{sW}, 1"); a(f"s_lshl_b32 s{sPC}, 3, s{sTMP}"); a(f"s_mov_b32 s{sPC+1}, 0")
    a(f"s_lshr_b32 s{sTMP}, s2, 3"); a(f"s_lshl_b32 s{sF}, s{sX7}, 4"); a(f"s_add_u32 s{sF}, s{sF}, s{sTMP}")
    a(f"s_cmp_lt_u32 s{sTMP}, 16"); a(f"s_cselect_b32 s{sF}, s{sF}, 999")
    a(f"s_cmp_eq_u32 s{sW}, 2"); a(f"s_cselect_b32 s{sF}, s{sF}, 999")
    for t in range(pre+1, qpos): issueK(t); issueV(t)
    a(f"v_lshlrev_b32 v{vGO}, 9, v{vBK}"); a(f"v_lshl_add_u32 v{vGO}, v{vSL}, 5, v{vGO}")
    a(f"s_lshl_b32 s{sCB}, s{sKVH}, 11"); a(f"s_add_u32 s{sCB}, s{sCB}, {A1_OFF}")
    a(f"v_lshlrev_b32 v{vGM}, 3, v{vT2}")
    a(f"s_min_u32 s{sSTR}, s{sSTR}, 55")
    a(f"s_lshl_b32 s{sGO0}, s{sSTR}, 7"); a(f"s_add_u32 s{sGO0}, s{sGO0}, {A1_OFF + 4096*4}"); a(f"s_add_u32 s{sGO1}, s{sGO0}, {1792*4}")
    def qloads(fl, cnt):
        e = vm if cnt else (lambda tag, text: a(text))
        for jj in range(4):
            for h in range(2): e("q", f"buffer_load_dwordx4 {vr(vW+8*jj+4*h,4)}, v{vGO}, {sr(rWS,4)}, s{sCB} offen offset:{128*jj+16*h} {fl}")
        e("q", f"buffer_load_dwordx2 {vr(vGU,2)}, v{vGM}, {sr(rWS,4)}, s{sGO0} offen {fl}")
        e("q", f"buffer_load_dwordx2 {vr(vGU+2,2)}, v{vGM}, {sr(rWS,4)}, s{sGO1} offen {fl}")
    qloads(q1, True)
    for t in range(qpos, NS): issueK(t); issueV(t)
    a(f"s_mov_b32 s{sTMP}, 0x05040100"); a(f"s_mov_b32 s{sTMP2}, 0x07060302")
    wait("q")
    a("L_qchk:")
    a(f"v_perm_b32 v{vA0}, v{vGU+1}, v{vGU}, s{sTMP}"); a(f"v_perm_b32 v{vA0+1}, v{vGU+3}, v{vGU+2}, s{sTMP}")
    a(f"v_xor_b32 v{vA0}, s{sT}, v{vA0}"); a(f"v_xor_b32 v{vA0+1}, s{sT}, v{vA0+1}"); a(f"v_or_b32 v{vT}, v{vA0}, v{vA0+1}")
    for p in range(0, 16, 2):
        a(f"v_perm_b32 v{vA0}, v{vW+2*p+1}, v{vW+2*p}, s{sTMP}"); a(f"v_perm_b32 v{vA0+1}, v{vW+2*p+3}, v{vW+2*p+2}, s{sTMP}")
        a(f"v_xor_b32 v{vA0}, s{sT}, v{vA0}"); a(f"v_xor_b32 v{vA0+1}, s{sT}, v{vA0+1}")
        a(f"v_or3_b32 v{vT}, v{vT}, v{vA0}, v{vA0+1}")
    a(f"v_cmp_ne_u32 vcc, 0, v{vT}"); a("s_cbranch_vccnz L_qretry")
    a("L_qok:")
    for i in range(4): a(f"v_and_b32 v{vGU+i}, s{sHI}, v{vGU+i}")
    for i in range(2): a(f"v_mul_f32 v{vGU+i}, {f2u(-L2E):#x}, v{vGU+i}")
    for i in range(2): a(f"v_exp_f32 v{vGU+i}, v{vGU+i}")
    for i in range(2): a(f"v_add_f32 v{vGU+i}, 1.0, v{vGU+i}")
    for i in range(2): a(f"v_rcp_f32 v{vGU+i}, v{vGU+i}")
    for i in range(2): a(f"v_cvt_pk_bf16_f32 v{vGU+i}, v{vGU+i}, v{vGU+i}")
    for i in range(2): a(f"v_and_b32 v{vGU+i}, s{sHI}, v{vGU+i}")
    for i in range(2): a(f"v_mul_f32 v{vGU+i}, v{vGU+i}, v{vGU+2+i}")
    for i in range(2): a(f"v_cvt_pk_bf16_f32 v{vGU+i}, v{vGU+i}, v{vGU+i}")
    for i in range(2):
        a(f"v_and_b32 v{vXX+2*i}, v{vGU+i}, v{vM0}"); a(f"v_and_b32 v{vXX+2*i+1}, v{vGU+i}, v{vM1}")
    gemv(vXX, vD, 2, "dn")
    for p in range(16): a(f"v_perm_b32 v{vQ+p}, v{vW+2*p+1}, v{vW+2*p}, s{sTMP2}")
    gemv_store(L_Y)
    if "p" in kseq + kdyn:
        for t in range(4):
            a(f"v_cndmask_b32 v{vQP+t}, v{vQ+t}, v{vQ+4+t}, {sr(sM1,2)}"); a(f"v_cndmask_b32 v{vQP+t}, v{vQP+t}, v{vQ+8+t}, {sr(sM2,2)}"); a(f"v_cndmask_b32 v{vQP+t}, v{vQP+t}, v{vQ+12+t}, {sr(sM3,2)}")
    a(f"v_mov_b32 v{vT}, 0"); a(f"v_mov_b32 v{vT2}, 1")
    a("s_mov_b64 exec, 1"); a(f"ds_add_u32 v{vT}, v{vT2} offset:{L_CNT}"); a("s_mov_b64 exec, -1")
    if cx: a(f"s_xor_b32 s{sKVH}, s{sKVH}, {cx}")
    a(f"v_lshlrev_b32 v{vGO}, 11, v{vN}"); a(f"v_lshl_add_u32 v{vGO}, v{vSL}, 4, v{vGO}")
    a(f"v_lshlrev_b32 v{vGM}, 6, v{vN}"); a(f"v_lshl_add_u32 v{vGM}, v{vSL}, 4, v{vGM}")
    a(f"s_and_b32 s{sTMP}, s{sJ}, 28"); a(f"s_add_u32 s{sSTR}, s{sTMP}, s{sW}")
    a(f"s_lshl_b32 s{sTMP}, s{sKVH}, 16"); a(f"s_lshl_b32 s{sTMP2}, s{sSTR}, 6"); a(f"s_add_u32 s{sGO0}, s{sTMP}, s{sTMP2}")
    a(f"s_add_u32 s{sGO0}, s{sGO0}, {P_OFF}"); a(f"s_add_u32 s{sGO1}, s{sGO0}, 0x8000")
    a(f"s_lshl_b32 s{sGM}, s{sKVH}, 11"); a(f"s_add_u32 s{sGM}, s{sGM}, {ML_OFF}")
    a(f"s_lshl_b32 s{sTMP}, s{sKVH}, 5"); a(f"s_add_u32 s{sTMP}, s{sTMP}, s{sJ}"); a(f"s_lshl_b32 s{sPS}, s{sTMP}, 9")
    if slay != "prod":
        a(f"s_lshr_b32 s{sTMP}, s{sTMP}, 2"); a(f"s_lshl_b32 s{sTMP}, s{sTMP}, 4"); a(f"s_and_b32 s{sPS}, s{sJ}, 3"); a(f"s_lshl_b32 s{sPS}, s{sPS}, 15"); a(f"s_add_u32 s{sPS}, s{sPS}, s{sTMP}")
    a(f"s_add_u32 s{sPS}, s{sPS}, {S_OFF}")
    a(f"s_lshl_b32 s{sTMP}, s{sKVH}, 19"); a(f"s_lshl_b32 s{sTMP2}, s{sSTR}, 12"); a(f"s_add_u32 s{sCB}, s{sTMP}, s{sTMP2}")
    a(f"s_and_b32 s{sTMP}, s{sJ}, 3"); a(f"s_lshl_b32 s{sTMP}, s{sTMP}, 8"); a(f"s_add_u32 s{sCB}, s{sCB}, s{sTMP}")
    a(f"s_mov_b64 {sr(rDN,2)}, {sr(sWO,2)}"); a(f"s_mov_b32 s{rDN+2}, {4096*1024}")
    def woloads():
        for r in range(4): vm("wo", f"buffer_load_dwordx4 {vr(vWO+4*r,4)}, v{vWOO}, {sr(rDN,4)}, s{sCB} offen offset:{1024*r} {wflags}")
    a("s_waitcnt lgkmcnt(0)")
    for r in range(8): a(f"v_mov_b32 v{vA0+r}, 0")
    a(f"v_mov_b32 v{vNM}, {f2u(3e38):#x}"); a(f"v_mov_b32 v{vLS}, 0")
    stamp()
    tramps = []
    def tile(lbl, sk, sv, pat, wk, wv, afterK=None, afterV=None, last=False):
        kb = 32*sk; vb = 32*sv + 16
        wk()
        for jj in range(4):
            if pat == "r": a(f"v_mfma_f32_16x16x32_bf16 {vr(vSS,4)}, {ar(kb+4*jj,4)}, {vr(vQ+4*jj,4)}, {'0' if jj == 0 else vr(vSS,4)}")
            else: a(f"v_mfma_f32_16x16x32_bf16 {vr(vP+4*jj,4)}, {ar(kb+4*jj,4)}, {vr(vQP,4)}, 0")
        if afterK: afterK()
        if pat == "p":
            for i in range(4):
                a(f"v_cndmask_b32 v{vSS+i}, v{vP+4*i}, v{vP+4*i+1}, {sr(sM1,2)}"); a(f"v_cndmask_b32 v{vSS+i}, v{vSS+i}, v{vP+4*i+2}, {sr(sM2,2)}"); a(f"v_cndmask_b32 v{vSS+i}, v{vSS+i}, v{vP+4*i+3}, {sr(sM3,2)}")
            for qp in ("[1,0,3,2]", "[2,3,0,1]"):
                for i in range(4): a(f"v_add_f32_dpp v{vSS+i}, v{vSS+i}, v{vSS+i} quad_perm:{qp} row_mask:0xf bank_mask:0xf")
        a(f"v_cvt_pk_bf16_f32 v{vSS}, v{vSS}, v{vSS+1}"); a(f"v_cvt_pk_bf16_f32 v{vSS+1}, v{vSS+2}, v{vSS+3}")
        unpack(vTT, vSS, 2)
        for i in range(4): a(f"v_mul_f32 v{vTT+i}, s{sSC}, v{vTT+i}")
        a(f"v_cvt_pk_bf16_f32 v{vTT}, v{vTT}, v{vTT+1}"); a(f"v_cvt_pk_bf16_f32 v{vTT+1}, v{vTT+2}, v{vTT+3}")
        unpack(vSS, vTT, 2)
        for i in range(4): a(f"v_fma_f32 v{vTT+i}, v{vSS+i}, s{sL2E}, v{vNM}")
        a(f"v_max3_f32 v{vT}, v{vTT}, v{vTT+1}, v{vTT+2}"); a(f"v_max_f32 v{vT}, v{vT}, v{vTT+3}")
        a(f"v_cmp_lt_f32 vcc, s{sTHR}, v{vT}"); a(f"s_cbranch_vccnz L_resc{lbl}")
        a(f"L_back{lbl}:"); tramps.append(lbl)
        for i in range(4): a(f"v_exp_f32 v{vTT+i}, v{vTT+i}")
        for i in range(4): a(f"v_cvt_pk_bf16_f32 v{vSS+i}, v{vTT+i}, v{vTT+i}")
        for i in range(4):
            a(f"v_and_b32 v{vXX+2*i}, v{vSS+i}, v{vM0}"); a(f"v_and_b32 v{vXX+2*i+1}, v{vSS+i}, v{vM1}")
        a(f"v_add_f32 v{vTT}, v{vTT}, v{vTT+1}"); a(f"v_add_f32 v{vTT+2}, v{vTT+2}, v{vTT+3}")
        a(f"v_add_f32 v{vLS}, v{vLS}, v{vTT}"); a(f"v_add_f32 v{vLS}, v{vLS}, v{vTT+2}")
        if last:
            allreduce_rows("v_add_f32", vLS, vT)
            a(f"ds_write2_b32 v{vMLW}, v{vNM}, v{vLS} offset0:0 offset1:16")
        for i in range(4):
            if last or i == 0: wv(i)
            a(f"v_mfma_f32_16x16x16_bf16 {vr(vA0,4)}, {vr(vXX+2*i,2)}, {ar(vb+4*i,2)}, {vr(vA0,4)}")
            a(f"v_mfma_f32_16x16x16_bf16 {vr(vA1,4)}, {vr(vXX+2*i,2)}, {ar(vb+4*i+2,2)}, {vr(vA1,4)}")
        if afterV: afterV()
    nxt = [NS, NS]; skip = NS - R
    kseq = kseq[:NST-2] + kdyn*2 if D else kseq
    for t in range(NST - R):
        doiss = not (skip > 0 and t % 2 == 1)
        if not doiss: skip -= 1
        def aK():
            freeK.append(slotK[t])
            if doiss: issueK(nxt[0]); nxt[0] += 1
        def aV():
            freeV.append(slotV[t])
            if doiss: issueV(nxt[1]); nxt[1] += 1
        tile(t, slotK[t], slotV[t], kseq[t], lambda: wait(("K", t)), lambda i: wait(("V", t)), aK, aV)
        if t == 0: a(f"v_add_u32 v{vMLW}, {L_ML}, v{vMLW}")
        if t == ypub:
            a(f"s_cmp_lg_u32 s{sW}, 3"); a("s_cbranch_scc1 L_noypub")
            a(f"s_cmp_ge_u32 s{sRG}, 14"); a("s_cbranch_scc1 L_noypub")
            a(f"v_mov_b32 v{vT}, 0")
            a("L_ycnt:")
            a(f"ds_read_b32 v{vT2}, v{vT} offset:{L_CNT}"); a("s_waitcnt lgkmcnt(0)")
            a(f"v_cmp_ne_u32 vcc, 4, v{vT2}"); a("s_cbranch_vccz L_ycntok"); timeout("L_ycnt")
            a("L_ycntok:")
            a("s_mov_b64 exec, 0xffff")
            a(f"s_lshl_b32 s{sTMP}, s{sRG}, 11"); a(f"s_lshl_b32 s{sTMP2}, s{sCOL}, 7"); a(f"s_add_u32 s{sTMP}, s{sTMP}, s{sTMP2}"); a(f"s_add_u32 s{sTMP}, s{sTMP}, {Y_OFF}")
            gemv_reduce(L_Y, vW)
            for r in range(4): a(f"v_bfi_b32 v{vW+r}, v{vFF}, s{sTB+r}, v{vW+r}")
            a("s_mov_b64 exec, 0xff")
            a(f"buffer_store_dwordx4 {vr(vW,4)}, v{vVO}, {sr(rWS,4)}, s{sTMP} offen sc1")
            a("s_mov_b64 exec, -1")
            a("L_noypub:")
        if t == yget:
            a(f"v_lshrrev_b32 v{vT}, 5, v{vL}"); a(f"v_and_b32 v{vT2}, 1, v{vSL}"); a(f"v_lshl_add_u32 v{vT}, v{vT2}, 1, v{vT}")
            a(f"s_and_b32 s{sTMP}, s{sF}, 127"); a(f"s_lshl_b32 s{sTMP}, s{sTMP}, 2"); a(f"v_add_lshl_u32 v{vXO+1}, v{vT}, s{sTMP}, 1")
            a(f"s_cmp_ge_u32 s{sF}, 128"); a("s_cbranch_scc1 L_noyget")
            a(f"global_load_ushort v{vXO}, v{vXO+1}, {sr(sX,2)}")
            a(f"s_lshl_b32 s{sRG}, s{sF}, 4"); a(f"s_add_u32 s{sRG}, s{sRG}, {Y_OFF}")
            for r in range(4): a(f"v_mov_b32 v{vGS+r}, 0")
            a("s_mov_b64 exec, 0x3fff")
            a(f"buffer_load_dwordx4 {vr(vGS,4)}, v{vL2K}, {sr(rWS,4)}, s{sRG} offen sc1")
            a("s_mov_b64 exec, -1")
            a("L_noyget:")
            ymark = len(Q)
        if t == yget + R + 1:
            assert done[0] > ymark
            a(f"s_cmp_ge_u32 s{sF}, 128"); a("s_cbranch_scc1 L_nog")
            a("s_mov_b64 exec, 0x3fff")
            a("L_gchk:")
            for r in range(4): a(f"v_xor_b32 v{vGS+r}, s{sTB+r}, v{vGS+r}")
            a(f"v_or3_b32 v{vT}, v{vGS}, v{vGS+1}, v{vGS+2}"); a(f"v_or_b32 v{vT}, v{vT}, v{vGS+3}"); a(f"v_and_b32 v{vT}, v{vFF}, v{vT}")
            a(f"v_cmp_ne_u32 vcc, 0, v{vT}"); a("s_cbranch_vccnz L_gretry")
            a("L_gok:")
            a("s_mov_b64 exec, -1")
            a(f"v_permlane32_swap_b32 v{vGS}, v{vGS+1}"); a(f"v_permlane32_swap_b32 v{vGS+2}, v{vGS+3}")
            a(f"v_add_f32 v{vGS}, v{vGS}, v{vGS+1}"); a(f"v_add_f32 v{vGS+2}, v{vGS+2}, v{vGS+3}")
            a(f"v_permlane16_swap_b32 v{vGS}, v{vGS+2}"); a(f"v_add_f32 v{vGS}, v{vGS}, v{vGS+2}")
            rowreduce("v_add_f32", (vGS,))
            a(f"v_cvt_pk_bf16_f32 v{vGS}, v{vGS}, v{vGS}"); a(f"v_and_b32 v{vGS}, s{sHI}, v{vGS}")
            a(f"v_mul_f32 v{vT}, {f2u(-L2E):#x}, v{vGS}"); a(f"v_exp_f32 v{vT}, v{vT}"); a(f"v_add_f32 v{vT}, 1.0, v{vT}"); a(f"v_rcp_f32 v{vT}, v{vT}")
            a(f"v_mul_f32 v{vGS}, v{vGS}, v{vT}"); a(f"v_cvt_pk_bf16_f32 v{vGS}, v{vGS}, v{vGS}"); a(f"v_and_b32 v{vGS}, s{sHI}, v{vGS}")
            a(f"v_lshlrev_b32 v{vXO}, 16, v{vXO}")
            a(f"s_lshl_b32 s{sRG}, s{sF}, {4 if slay == 'prod' else 10}"); a(f"s_add_u32 s{sRG}, s{sRG}, {S_OFF}")
            a("L_nog:")
        if t == xget:
            a(f"s_lshl_b32 s{sTMP}, s{sKVH}, 8"); a(f"s_add_u32 s{sTMP}, s{sTMP}, {X_OFF}")
            a(f"v_and_b32 v{vT}, 31, v{vL}"); a(f"v_lshlrev_b32 v{vT}, 2, v{vT}")
            vm("xg", f"buffer_load_dword v{vXG}, v{vT}, {sr(rWS,4)}, s{sTMP} offen sc1")
        if t == xget + R + 1:
            wait("xg")
            a(f"v_cmp_ne_u32 vcc, s{sXV}, v{vXG}"); a("s_cmp_eq_u64 vcc, 0"); a(f"s_cselect_b32 s{sFAST}, 1, 0")
            if force is not None: a(f"s_mov_b32 s{sFAST}, {force}")
            a(f"s_and_b32 s{sTMP}, s{sJ}, 3"); a(f"s_lshr_b32 s{sTMP2}, s{sKVH}, 1"); a(f"s_cmp_eq_u32 s{sTMP}, s{sTMP2}"); a(f"s_cselect_b32 s{sLOC}, s{sFAST}, 0")
            a(f"s_mul_i32 s{sLOC}, s{sLOC}, 0xffff"); a(f"s_and_b32 s{sTMP}, s{sKVH}, 1"); a(f"s_lshl_b32 s{sTMP}, s{sTMP}, 4"); a(f"s_lshl_b32 s{sLOC}, s{sLOC}, s{sTMP}")
        if touch and t == touch:
            a(f"s_cmp_ge_u32 s{sW}, 2"); a("s_cbranch_scc1 L_notouch")
            a(f"v_lshlrev_b32 v{vT}, 7, v{vL}")
            a("s_mov_b64 exec, 0xff"); a(f"buffer_load_dword v{vXG}, v{vT}, {sr(rWS,4)}, s{sPP} offen sc1")
            a("s_mov_b64 exec, 1"); a(f"buffer_load_dword v{vXG}, v{vT}, {sr(rWS,4)}, s{sPM} offen sc1")
            a("s_mov_b64 exec, -1")
            a("L_notouch:")
            if touchs:
                assert touch > yget + R + 1
                a(f"s_cmp_ge_u32 s{sF}, 128"); a("s_cbranch_scc1 L_notouch2")
                a(f"s_lshl_b32 s{sTMP}, s{sKVH}, 3"); a(f"s_bfm_b64 exec, 8, s{sTMP}")
                a(f"buffer_load_dword v{vXG}, v{vL2K}, {sr(rWS,4)}, s{sRG} offen sc1")
                a("s_mov_b64 exec, -1")
                a("L_notouch2:")
        if D and t == TD:
            a(f"s_cmp_lg_u32 s{sW}, 0"); a("s_cbranch_scc1 L_nodraw")
            a(f"s_mul_i32 s{sTMP}, s{sKVH}, 4352"); a(f"s_add_u32 s{sTMP}, s{sTMP}, {C_OFF}")
            a(f"s_mov_b32 s{sG0}, 1"); a(f"s_atomic_add s{sG0}, {sr(sWS,2)}, s{sTMP} glc")
            a("L_nodraw:")
        if D and t == TD + 1:
            a(f"s_cmp_lg_u32 s{sW}, 0"); a("s_cbranch_scc1 L_nodraw2")
            a("s_waitcnt lgkmcnt(0)"); a(f"v_mov_b32 v{vT}, 0"); a(f"v_mov_b32 v{vT2}, s{sG0}"); a(f"ds_write_b32 v{vT}, v{vT2} offset:{L_CNT+4}")
            a("L_nodraw2:")
        if D and t == NST - R - 2:
            assert TD + 1 <= t
            a(f"s_getpc_b64 {sr(sTAB,2)}"); a("L_pc2:"); a(f"s_add_u32 s{sTAB}, s{sTAB}, L_tab-L_pc2"); a(f"s_addc_u32 s{sTAB+1}, s{sTAB+1}, 0")
            a(f"v_mov_b32 v{vT}, 0")
            a("L_rk:")
            a(f"ds_read_b32 v{vT2}, v{vT} offset:{L_CNT+4}"); a("s_waitcnt lgkmcnt(0)"); a(f"v_readfirstlane_b32 s{sTMP}, v{vT2}")
            a(f"s_cmp_lt_u32 s{sTMP}, 32"); a("s_cbranch_scc1 L_rkok"); timeout("L_rk")
            a("L_rkok:")
            if stamps: a(f"v_writelane_b32 v{vTS}, s{sTMP}, 14")
            a(f"s_and_b32 s{sTMP}, s{sTMP}, 31"); a(f"s_lshl_b32 s{sTMP}, s{sTMP}, 2"); a(f"s_load_dwordx2 {sr(sG0,2)}, {sr(sTAB,2)}, s{sTMP}")
    assert nxt == [NST, NST]
    sa = (slotK[NST-2], slotV[NST-2]); sb = (slotK[NST-1], slotV[NST-1])
    assert Q[-16:] == [("K", NST-2)]*4 + [("V", NST-2)]*4 + [("K", NST-1)]*4 + [("V", NST-1)]*4
    W_ = lambda n: (lambda *i: a(f"s_waitcnt vmcnt({n})"))
    def drain(lbl, x, y, px, py):
        woloads()
        tile(lbl+"0", x[0], x[1], px, W_(16), W_(12))
        tile(lbl+"1", y[0], y[1], py, W_(8), lambda i: a(f"s_waitcnt vmcnt({7-i})"), last=True)
    if D:
        lg = D.bit_length() - 1; assert D == 1 << lg
        a("s_waitcnt lgkmcnt(0)")
        a(f"s_sub_u32 s{sTMP}, 3, s{sW}")
        for g in (sG0, sG1): a(f"s_add_u32 s{g}, s{g}, s{sTMP}"); a(f"s_lshr_b32 s{g}, s{g}, 2")
        a(f"s_lshl_b32 s{sOFV}, s{sKVH}, 24"); a(f"s_add_u32 s{sOFV}, s{sOFV}, {NST << 14}")
        a("L_dyn:")
        for ph, x in (("a", sa), ("b", sb)):
            a(f"s_cmp_ge_u32 s{sG0}, s{sG1}"); a(f"s_cbranch_scc1 L_drain{ph}")
            a(f"s_lshr_b32 s{sTMP}, s{sG0}, {lg}"); a(f"s_lshl_b32 s{sTMP}, s{sTMP}, 19"); a(f"s_and_b32 s{sTMP2}, s{sG0}, {D-1}"); a(f"s_lshl_b32 s{sTMP2}, s{sTMP2}, 14")
            a(f"s_add_u32 s{sOFK}, s{sOFV}, s{sTMP}"); a(f"s_add_u32 s{sOFK}, s{sOFK}, s{sTMP2}"); a(f"s_add_u32 s{sG0}, s{sG0}, 1")
            tile("d"+ph, x[0], x[1], kdyn, W_(12), W_(12), lambda: ldK(x[0], kdyn, sOFK, "dyn"), lambda: ldV(x[1], sOFK, "dyn"))
        a("s_branch L_dyn")
        a("L_drainb:")
        drain("eb", sb, sa, kdyn, kdyn)
        a("s_branch L_end")
        a("L_draina:")
    drain("ea", sa, sb, kseq[NST-2], kseq[NST-1])
    a("s_nop 0")
    a("L_end:")
    stamp()
    if notail:
        for k in range(5, 9): a(f"s_memrealtime s[{sST+2*k}:{sST+2*k+1}]")
        a("s_branch L_fin")
    O0, O1, M0, M1 = vW, vW+4, vW+8, vW+12
    def gather():
        a(f"buffer_load_dwordx4 {vr(M0,4)}, v{vGM}, {sr(rWS,4)}, s{sGM} offen sc1")
        a(f"buffer_load_dwordx4 {vr(M1,4)}, v{vGM}, {sr(rWS,4)}, s{sGM} offen offset:1024 sc1")
        a(f"buffer_load_dwordx4 {vr(O0,4)}, v{vGO}, {sr(rWS,4)}, s{sGO0} offen sc1")
        a(f"buffer_load_dwordx4 {vr(O1,4)}, v{vGO}, {sr(rWS,4)}, s{sGO1} offen sc1")
    if early: gather()
    else: a("s_nop 3")
    a(f"v_xor_b32 v{vT}, 64, v{vOAW}")
    a("s_nop 1")
    a(f"ds_write_b128 v{vOAW}, {vr(vA0,4)} offset:{L_OA}"); a(f"ds_write_b128 v{vT}, {vr(vA1,4)} offset:{L_OA}")
    a("s_waitcnt lgkmcnt(0)")
    a("s_barrier")
    a(f"s_cmp_ge_u32 s{sW}, 2"); a("s_cbranch_scc1 L_pubdone")
    a(f"ds_read_b128 {vr(vSS,4)}, v{vMLR} offset:{L_ML}")
    for w in range(4): a(f"ds_read_b128 {vr(vQ+4*w,4)}, v{vOAR} offset:{L_OA+2048*w}")
    a(f"ds_read_b128 {vr(vTT,4)}, v{vMLR} offset:{L_ML+64}")
    a(f"v_mov_b32 v{vA1+2}, s{sT}"); a(f"v_mov_b32 v{vA1+3}, s{sT}")
    a("s_waitcnt lgkmcnt(5)")
    a(f"v_min3_f32 v{vA1}, v{vSS}, v{vSS+1}, v{vSS+2}"); a(f"v_min_f32 v{vA1}, v{vA1}, v{vSS+3}")
    for w in range(4): a(f"v_sub_f32 v{vSS+w}, v{vA1}, v{vSS+w}")
    for w in range(4): a(f"v_exp_f32 v{vSS+w}, v{vSS+w}")
    for w in range(4):
        a(f"s_waitcnt lgkmcnt({4-w})")
        for r in range(4): a(f"{'v_mul_f32' if w == 0 else 'v_fmac_f32'} v{vA0+r}, v{vSS+w}, v{vQ+4*w+r}")
    a("s_waitcnt lgkmcnt(0)")
    a(f"v_mul_f32 v{vA1+1}, v{vSS}, v{vTT}")
    for w in range(1, 4): a(f"v_fmac_f32 v{vA1+1}, v{vSS+w}, v{vTT+w}")
    for r in range(4): a(f"v_bfi_b32 v{vA0+r}, v{vFF}, s{sTB+r}, v{vA0+r}")
    def publish(fl):
        a(f"buffer_store_dwordx4 {vr(vA0,4)}, v{vVO}, {sr(rWS,4)}, s{sPP} offen {fl}")
        a(f"s_mov_b64 exec, {sr(sPC,2)}")
        a(f"buffer_store_dwordx4 {vr(vA1,4)}, v{vVO}, {sr(rWS,4)}, s{sPM} offen {fl}")
        a("s_mov_b64 exec, -1")
    a(f"s_cmp_eq_u32 s{sFAST}, 0"); a("s_cbranch_scc1 L_pubslow")
    publish("")
    a("L_pubdone:")
    stamp()
    if early: a("s_branch L_achk")
    a("L_apoll:")
    gather()
    a("L_achk:")
    a("s_waitcnt vmcnt(0)")
    a(f"v_xor_b32 v{vT}, s{sT}, v{M0+2}"); a(f"v_xor_b32 v{vT2}, s{sT}, v{M1+2}")
    for i in range(8): a(f"v_xor_b32 v{vW+i}, s{sTB+(i&3)}, v{vW+i}")
    a(f"v_or_b32 v{vT2}, v{vT}, v{vT2}")
    a(f"v_or3_b32 v{vT}, v{vW}, v{vW+1}, v{vW+2}"); a(f"v_or3_b32 v{vW+11}, v{vW+3}, v{vW+4}, v{vW+5}"); a(f"v_or3_b32 v{vT}, v{vT}, v{vW+6}, v{vW+7}")
    a(f"v_or_b32 v{vT}, v{vT}, v{vW+11}"); a(f"v_and_or_b32 v{vT}, v{vT}, v{vFF}, v{vT2}")
    a(f"v_cmp_ne_u32 vcc, 0, v{vT}"); a("s_cbranch_vccz L_aok")
    a("s_mov_b64 exec, vcc")
    if pa: a(f"s_sleep {pa}")
    timeout("L_apoll")
    a("L_aok:")
    a("s_mov_b64 exec, -1")
    stamp()
    a(f"v_min_f32 v{vT}, v{M0}, v{M1}")
    rowreduce("v_min_f32", (vT,))
    a(f"v_sub_f32 v{M0}, v{vT}, v{M0}"); a(f"v_sub_f32 v{M1}, v{vT}, v{M1}")
    a(f"v_exp_f32 v{M0}, v{M0}"); a(f"v_exp_f32 v{M1}, v{M1}")
    a(f"v_mul_f32 v{vT}, v{M0}, v{M0+1}"); a(f"v_fmac_f32 v{vT}, v{M1}, v{M1+1}")
    for r in range(4): a(f"v_mul_f32 v{O0+r}, v{O0+r}, v{M0}")
    for r in range(4): a(f"v_fmac_f32 v{O0+r}, v{O1+r}, v{M1}")
    rowreduce("v_add_f32", [vT] + [O0+r for r in range(4)])
    a(f"v_rcp_f32 v{vT}, v{vT}")
    for r in range(4): a(f"v_mul_f32 v{O0+r}, v{O0+r}, v{vT}")
    for r in range(4): a(f"v_cvt_pk_bf16_f32 v{O0+r}, v{O0+r}, v{O0+r}")
    for r in range(4):
        for t in range(4): a(f"v_and_b32 v{vQ+4*r+t}, v{O0+r}, v{vMK+t}")
        if r > 0: a(f"v_mfma_f32_16x16x32_bf16 {vr(vA0,4)}, {vr(vQ+4*(r-1),4)}, {vr(vWO+4*(r-1),4)}, {'0' if r == 1 else vr(vA0,4)}")
    a(f"v_mfma_f32_16x16x32_bf16 {vr(vA0,4)}, {vr(vQ+12,4)}, {vr(vWO+12,4)}, {vr(vA0,4)}")
    a("s_mov_b32 exec_hi, 0")
    a(f"ds_write_b128 v{vSRW}, {vr(vA0,4)} offset:{L_SR}")
    a("s_waitcnt lgkmcnt(0)")
    a("s_barrier")
    a(f"s_cmp_lg_u32 s{sW}, 0"); a("s_cbranch_scc1 L_nopub")
    for w in range(4): a(f"ds_read_b128 {vr(vQ+4*w,4)}, v{vVO} offset:{L_SR+512*w}")
    a("s_waitcnt lgkmcnt(2)")
    for r in range(4): a(f"v_add_f32 v{vQ+r}, v{vQ+r}, v{vQ+4+r}")
    a("s_waitcnt lgkmcnt(0)")
    for r in range(4): a(f"v_add_f32 v{vQ+8+r}, v{vQ+8+r}, v{vQ+12+r}")
    for r in range(4): a(f"v_add_f32 v{vQ+r}, v{vQ+r}, v{vQ+8+r}")
    for r in range(4): a(f"v_bfi_b32 v{vQ+r}, v{vFF}, s{sTB+r}, v{vQ+r}")
    a(f"s_not_b32 exec_lo, s{sLOC}")
    a(f"buffer_store_dwordx4 {vr(vQ,4)}, v{vVO}, {sr(rWS,4)}, s{sPS} offen sc1")
    a(f"s_cmp_eq_u32 s{sLOC}, 0"); a("s_cbranch_scc1 L_nopub")
    a(f"s_mov_b32 exec_lo, s{sLOC}")
    a(f"buffer_store_dwordx4 {vr(vQ,4)}, v{vVO}, {sr(rWS,4)}, s{sPS} offen")
    a("L_nopub:")
    if fine: stamp(); a(f"s_memrealtime s[{sST+2*nst[0]}:{sST+2*nst[0]+1}]"); a(f"s_mov_b32 s{sTMO}, 65536")
    a("s_mov_b64 exec, -1")
    a(f"s_cmp_ge_u32 s{sF}, 128"); a("s_cbranch_scc1 L_fin")
    if bdelay: a(f"s_sleep {bdelay}")
    a("L_bpoll:")
    a(f"buffer_load_dwordx4 {vr(vSS,4)}, v{vL2K}, {sr(rWS,4)}, s{sRG} offen sc1")
    a("s_waitcnt vmcnt(0)")
    for r in range(4): a(f"v_xor_b32 v{vSS+r}, s{sTB+r}, v{vSS+r}")
    a(f"v_or3_b32 v{vT}, v{vSS}, v{vSS+1}, v{vSS+2}"); a(f"v_or_b32 v{vT}, v{vT}, v{vSS+3}"); a(f"v_and_b32 v{vT}, v{vFF}, v{vT}")
    a(f"v_cmp_ne_u32 vcc, 0, v{vT}"); a("s_cbranch_vccz L_bok")
    a("s_mov_b64 exec, vcc")
    if pb: a(f"s_sleep {pb}")
    timeout("L_bpoll")
    a("L_bok:")
    if fine: a("s_waitcnt lgkmcnt(0)"); stamp()
    a("s_mov_b64 exec, -1"); a("s_nop 0")
    a(f"v_permlane32_swap_b32 v{vSS}, v{vSS+1}"); a(f"v_permlane32_swap_b32 v{vSS+2}, v{vSS+3}")
    a(f"v_add_f32 v{vSS}, v{vSS}, v{vSS+1}"); a(f"v_add_f32 v{vSS+2}, v{vSS+2}, v{vSS+3}")
    a(f"v_permlane16_swap_b32 v{vSS}, v{vSS+2}"); a(f"v_add_f32 v{vSS}, v{vSS}, v{vSS+2}")
    rowreduce("v_add_f32", (vSS,))
    a(f"v_cvt_pk_bf16_f32 v{vSS}, v{vSS}, v{vSS}"); a(f"v_and_b32 v{vSS}, s{sHI}, v{vSS}")
    a(f"v_mul_f32 v{vSS}, v{vSS}, v{vGS}")
    a(f"v_cvt_pk_bf16_f32 v{vSS}, v{vSS}, v{vSS}"); a(f"v_and_b32 v{vSS}, s{sHI}, v{vSS}")
    a(f"v_add_f32 v{vSS}, v{vSS}, v{vXO}")
    a(f"v_cvt_pk_bf16_f32 v{vSS}, v{vSS}, v{vSS}")
    a("s_mov_b32 exec_lo, 0x00010001"); a("s_mov_b32 exec_hi, 0x00010001")
    a(f"global_store_short v{vXO+1}, v{vSS}, {sr(sOUT,2)}")
    a(f"s_cmp_lg_u32 s{sF}, 0"); a("s_cbranch_scc1 L_fin")
    a("s_mov_b64 exec, 1")
    a(f"v_mov_b32 v{vT}, s{sT}"); a(f"s_mov_b32 s{sTMP}, {E_OFF}")
    a(f"buffer_store_dword v{vT}, v{vVO}, {sr(rWS,4)}, s{sTMP} offen sc1")
    a("L_fin:")
    if stamps:
        stamp()
        a("s_mov_b64 exec, -1")
        a("s_waitcnt lgkmcnt(0)")
        for i in range(nst[0]): a(f"v_writelane_b32 v{vTS}, s{sST+2*i}, {i}")
        a(f"v_writelane_b32 v{vTS}, s{sTMO}, 15")
        a(f"s_lshl_b32 s{sTMP}, s2, 2"); a(f"s_add_u32 s{sTMP}, s{sTMP}, s{sW}"); a(f"s_lshl_b32 s{sTMP}, s{sTMP}, 8"); a(f"s_add_u32 s{sTMP}, s{sTMP}, {ST_OFF}")
        a(f"v_lshlrev_b32 v{vTT}, 2, v{vL}")
        a(f"buffer_store_dword v{vTS}, v{vTT}, {sr(rWS,4)}, s{sTMP} offen")
    a("L_done:")
    a("s_endpgm")
    a("L_pubslow:")
    publish("sc1")
    a("s_branch L_pubdone")
    a("L_qretry:")
    a(f"s_sub_u32 s{sTMO}, s{sTMO}, 1"); a(f"s_cmp_le_i32 s{sTMO}, 0"); a("s_cbranch_scc1 L_qok")
    qloads("sc1", False)
    a("s_waitcnt vmcnt(0)")
    a("s_branch L_qchk")
    a("L_gretry:")
    a(f"s_sub_u32 s{sTMO}, s{sTMO}, 1"); a(f"s_cmp_le_i32 s{sTMO}, 0"); a("s_cbranch_scc1 L_gok")
    a(f"buffer_load_dwordx4 {vr(vGS,4)}, v{vL2K}, {sr(rWS,4)}, s{sRG} offen sc1")
    a("s_waitcnt vmcnt(0)")
    a("s_branch L_gchk")
    a("L_resc:")
    a(f"v_max3_f32 v{vT}, v{vSS}, v{vSS+1}, v{vSS+2}"); a(f"v_max_f32 v{vT}, v{vT}, v{vSS+3}")
    a(f"v_mul_f32 v{vT}, {f2u(-L2E):#x}, v{vT}")
    allreduce_rows("v_min_f32", vT, vXX)
    a(f"v_min_f32 v{vT}, v{vT}, v{vNM}")
    a(f"v_sub_f32 v{vXX}, v{vT}, v{vNM}")
    a(f"v_mov_b32 v{vNM}, v{vT}")
    a(f"v_exp_f32 v{vXX}, v{vXX}")
    for i in range(4): a(f"v_fma_f32 v{vTT+i}, v{vSS+i}, s{sL2E}, v{vNM}")
    a(f"v_mul_f32 v{vLS}, v{vLS}, v{vXX}")
    for R_ in range(4): a(f"v_mov_b32_dpp v{vXX+1}, v{vXX} row_newbcast:{4*R_} row_mask:{1<<R_:#x} bank_mask:0xf")
    for r in range(8): a(f"v_mul_f32 v{vA0+r}, v{vA0+r}, v{vXX+1}")
    a(f"s_setpc_b64 {sr(sRET,2)}")
    for t in tramps:
        a(f"L_resc{t}:"); a(f"s_call_b64 {sr(sRET,2)}, L_resc"); a(f"s_branch L_back{t}")
    body = a.finish()
    txt = HEADER + f"; @launch grid=(256,1,1) block=(256,1,1) lds={lds}\n"
    txt += f'.amdgcn_target "amdgcn-amd-amdhsa--gfx950"\n.text\n.globl {NAME}_kernel\n.p2align 8\n.type {NAME}_kernel,@function\n'
    txt += body
    if D:
        tb = table or rank_table(D, sig)
        txt += "L_tab:\n  .long " + ", ".join(map(str, tb)) + "\n"
    txt += "L_codeend:\n"
    txt += f'''.section .rodata,"a"
.p2align 6
.amdhsa_kernel {NAME}_kernel
  .amdhsa_next_free_vgpr {max(NV + 32*NS, 264)}
  .amdhsa_next_free_sgpr 102
  .amdhsa_accum_offset {NV}
  .amdhsa_group_segment_fixed_size 0
  .amdhsa_kernarg_size 96
  .amdhsa_user_sgpr_count 2
  .amdhsa_user_sgpr_kernarg_segment_ptr 1
  .amdhsa_system_sgpr_workgroup_id_x 1
  .amdhsa_float_denorm_mode_32 3
.end_amdhsa_kernel
'''
    return txt

if __name__ == "__main__":
    kw = {}
    for x in sys.argv[2:]:
        k, v = x.split("=", 1)
        try: v = eval(v)
        except Exception: pass
        kw[k] = v
    open(sys.argv[1], "w").write(gen(**kw))
```

```python
import sys, struct
from asmlib import Asm
NAME = "recurrent_scan__gqa_block_cached__glu_gated_glu__decode"
def f2u(x): return struct.unpack("<I", struct.pack("<f", x))[0]
HEADER = open("cdna_kernels/%s.s.ref" % NAME).read().split("; Override launch")[0]
L2E = 1.4426950408889634

def gen(NS=16, RD=6, RV=8, pre=4, qpos=10, mpos=9, lds=20480, kvflags="nt", wflags="nt", wsbase=0, stamps=False,
        codepf=True, tmo=1<<16, q1="", m1="", yget=18, xget=18, tstamps=False, notail=False,
        pa=0, pb=0, bdelay=0, kseq="h"*8+"rh"*12, vseq="cccc"+"sc"*10+"c"*8, fine=False, force=None, win=0, winlo=16, winhi=58,
        kskip=3, vskip=2, comment=True, pbar=True, yt=4, abits=4, yfull=True):
    mlbar = ybar = True; stprobe = False; dw1 = None; ypub = -1
    NT = 32
    a = Asm()
    def C(text):
        if comment: a("; " + text)
    E_OFF, A1_OFF, Y_OFF, ML_OFF, X_OFF, S_OFF, P_OFF, ST_OFF = [wsbase + x for x in (0, 0x1000, 0x10000, 0x20000, 0x30000, 0x40000, 0x80000, 0x100000)]
    WS_BYTES = 0x20000000
    L_S1, L_Y, L_CNT, L_ML, L_OA, L_SR, L_Q = 0, 2048, 4096, 4224, 4608, 12800, 14848
    assert L_Q + 4096 <= lds
    HALF = 7680*4
    sX, sWQ, sWO, sG, sU, sDN, sOUT, sWS = 4, 10, 12, 16, 18, 20, 22, 26
    rK, rV, rW1, rWS, rDN = 28, 32, 36, 40, 44
    sW, sKVH, sJ, sOF, sOF0, sCB, sSTR, sT, sTMP, sTMP2 = 48, 49, 50, 51, 52, 53, 54, 55, 56, 57
    sTLO, sTHI, sSC, sL2E = 60, 61, 62, 63
    sTB = 64
    sHI, sTMO, sCOL, sRG, sF, sPP, sPM, sPS = 68, 70, 72, 73, 74, 75, 76, 77
    sPC = 78
    sDG, sM1, sM2, sM3, sMO = 14, 16, 18, 10, 6
    sGO0, sGO1, sGM = 24, 25, 3
    sFAST, sXV, sLOC = 58, 59, 69
    sST = 80
    sTN = (8, 9, 71, 79)
    AM = (1 << abits) - 1
    vL, vKO, vVO, vM0, vM1, vNM, vLS, vT = 0, 1, 2, 3, 4, 5, 6, 7
    vA0, vA1, vSS, vTT, vXX, vQ = 8, 12, 16, 20, 24, 32
    vSL, vE, vBK, vN, vFF, vOAW, vOAR, vMLW, vMLR, vGO, vGM, vSRW, vL2K, vWOO, vDGA, vT2 = range(48, 64)
    vW, vD, vGU0, vWO, vMK, vGS, vXO, vF = 64, 96, 104, 108, 124, 128, 132, 136
    vTS, vVW, vKH, vXG, vQH, vS, vOAW1, vTA, vTB_ = 144, 145, 146, 147, 148, 156, 188, 189, 190
    NV = 192
    vGU = vF
    def vr(b, n): return f"v[{b}:{b+n-1}]"
    def ar(b, n): return f"a[{b}:{b+n-1}]"
    def sr(b, n): return f"s[{b}:{b+n-1}]"
    nst = [0]
    def stamp():
        if stamps:
            a(f"s_memrealtime s[{sST+2*nst[0]}:{sST+2*nst[0]+1}]"); nst[0] += 1
    Q = []; done = [0]
    def vm(tag, text): a(text); Q.append(tag)
    def wait(tag):
        idx = max(i for i, t in enumerate(Q) if t == tag)
        if idx < done[0]: return
        n = min(len(Q) - 1 - idx, 63)
        a(f"s_waitcnt vmcnt({n})"); done[0] = len(Q) - n
    def allreduce_rows(op, v, t):
        a(f"v_mov_b32 v{t}, v{v}"); a(f"v_permlane16_swap_b32 v{v}, v{t}"); a(f"{op} v{v}, v{v}, v{t}")
        a(f"v_mov_b32 v{t}, v{v}"); a(f"v_permlane32_swap_b32 v{v}, v{t}"); a(f"{op} v{v}, v{v}, v{t}")
    def allreduce_quad(op, v):
        for qp in ("[1,0,3,2]", "[2,3,0,1]"): a(f"{op}_dpp v{v}, v{v}, v{v} quad_perm:{qp} row_mask:0xf bank_mask:0xf")
    def rowreduce(op, vs, steps=(8, 4, 2, 1)):
        for st in steps:
            for v in vs: a(f"{op}_dpp v{v}, v{v}, v{v} row_ror:{st} row_mask:0xf bank_mask:0xf")
    def unpack(dst, src, n):
        for i in range(n):
            a(f"v_lshlrev_b32 v{dst+2*i}, 16, v{src+i}"); a(f"v_and_b32 v{dst+2*i+1}, s{sHI}, v{src+i}")
    def sel4(dst, x0, x1, x2, x3):
        a(f"v_cndmask_b32 v{dst}, v{x0}, v{x1}, {sr(sM1,2)}"); a(f"v_cndmask_b32 v{dst}, v{dst}, v{x2}, {sr(sM2,2)}"); a(f"v_cndmask_b32 v{dst}, v{dst}, v{x3}, {sr(sM3,2)}")
    free = list(range(NS)); slot = {}; nxt = [0]
    def issue():
        h = nxt[0]; nxt[0] += 1
        s = slot[h] = free.pop(0); b = 16*s
        pat = (kseq + vseq)[h]
        if h == NT: a(f"s_mov_b32 s{sOF}, s{sOF0}")
        for i in range(4):
            if win and winlo <= h < winhi:
                a(f"s_waitcnt vmcnt({win-1})"); done[0] = max(done[0], len(Q) - (win-1))
            if pat == "r": vm((h, i), f"buffer_load_dwordx4 {ar(b+4*i,4)}, v{vKO}, {sr(rK,4)}, s{sOF} offen offset:{64*i} {kvflags}")
            elif pat == "h": vm((h, i), f"buffer_load_dwordx4 {ar(b+4*i,4)}, v{vKH}, {sr(rK,4)}, s{sOF} offen offset:{2048*(i>>1)+128*(i&1)} {kvflags}")
            elif pat == "c": vm((h, i), f"buffer_load_dwordx4 {ar(b+4*i,4)}, v{vVW}, {sr(rV,4)}, s{sOF} offen offset:{1024*i} {kvflags}")
            else:
                for k in range(2): vm((h, i), f"buffer_load_dwordx2 {ar(b+4*i+2*k,2)}, v{vVW}, {sr(rV,4)}, s{sOF} offen offset:{1024*i+8*k} {kvflags}")
        if h % NT < NT-1: a(f"s_add_u32 s{sOF}, s{sOF}, 0x4000")
        if tstamps and h % 2 == 1:
            a("s_memrealtime s[100:101]"); a("s_waitcnt lgkmcnt(0)"); a(f"v_writelane_b32 v{vTS}, s100, {16+h//2}")
        if h == 2*NT-1: woloads()
    def gemv(vAop, vB, n, tag):
        for i in range(n):
            wait((tag, i))
            c0 = "0" if i == 0 else vr(vA0,4); c1 = "0" if i == 0 else vr(vA1,4)
            a(f"v_mfma_f32_16x16x16_bf16 {vr(vA0,4)}, {vr(vAop+2*i,2)}, {vr(vB+4*i,2)}, {c0}")
            a(f"v_mfma_f32_16x16x16_bf16 {vr(vA1,4)}, {vr(vAop+2*i,2)}, {vr(vB+4*i+2,2)}, {c1}")
    def gemv_store(base):
        a(f"s_mov_b64 exec, {sr(sDG,2)}")
        a(f"ds_write_b128 v{vDGA}, {vr(vA0,4)} offset:{base}"); a(f"ds_write_b128 v{vDGA}, {vr(vA1,4)} offset:{base+16}")
        a("s_mov_b64 exec, -1")
    def gemv_reduce(base, tmp, fold=True):
        for p in range(8): a(f"ds_read_b128 {vr(tmp+4*p,4)}, v{vVO} offset:{base+256*p}")
        for step in (16, 8, 4):
            if step == 16: a("s_waitcnt lgkmcnt(0)")
            for r in range(step): a(f"v_add_f32 v{tmp+r}, v{tmp+r}, v{tmp+step+r}")
        if fold: rowreduce("v_add_f32", [tmp+r for r in range(4)], (8,))
    def timeout(lbl):
        a(f"s_sub_u32 s{sTMO}, s{sTMO}, 1"); a(f"s_cmp_gt_i32 s{sTMO}, 0"); a(f"s_cbranch_scc1 {lbl}")
    def woloads():
        for r in range(4): vm("wo", f"buffer_load_dwordx4 {vr(vWO+4*r,4)}, v{vWOO}, {sr(rDN,4)}, s{sCB} offen offset:{1024*r} {wflags}")

    a(f"{NAME}_kernel:")
    stamp()
    C("workgroup wg: kv head = wg&7, key split j = wg>>3 (2048 keys); wave w takes 16-key tiles w, w+4, ...")
    a(f"s_load_dwordx2 {sr(rK,2)}, s[0:1], 8"); a(f"s_load_dwordx2 {sr(rV,2)}, s[0:1], 16")
    a("s_load_dwordx16 s[4:19], s[0:1], 0"); a("s_load_dwordx8 s[20:27], s[0:1], 64")
    a("s_cmpk_ge_u32 s2, 256"); a("s_cbranch_scc1 L_done")
    a(f"s_and_b32 s{sKVH}, s2, 7"); a(f"s_lshr_b32 s{sJ}, s2, 3")
    a(f"s_lshl_b32 s{sOF}, s{sKVH}, 24"); a(f"s_lshl_b32 s{sTMP}, s{sJ}, 19"); a(f"s_or_b32 s{sOF}, s{sOF}, s{sTMP}"); a(f"s_mov_b32 s{sOF0}, s{sOF}")
    a(f"v_lshrrev_b32 v{vT2}, 6, v0"); a(f"v_and_b32 v{vL}, 63, v0")
    a(f"v_lshrrev_b32 v{vSL}, 4, v{vL}"); a(f"v_bfe_u32 v{vBK}, v{vL}, 2, 2")
    a(f"v_lshlrev_b32 v{vT}, 12, v{vT2}"); a(f"v_lshl_add_u32 v{vT}, v{vSL}, 4, v{vT}"); a(f"v_lshl_add_u32 v{vT}, v{vBK}, 8, v{vT}")
    a(f"v_and_b32 v{vKH}, 1, v{vL}"); a(f"v_lshl_add_u32 v{vKH}, v{vKH}, 6, v{vT}"); a(f"v_and_b32 v{vE}, 2, v{vL}"); a(f"v_lshl_add_u32 v{vKH}, v{vE}, 9, v{vKH}")
    a(f"s_lshl_b32 s{rK+2}, 1, 27"); a(f"s_mov_b32 s{rK+3}, 0x20000")
    assert kseq[0] == "h"
    a("s_waitcnt lgkmcnt(0)"); stamp()
    issue()
    a(f"v_readfirstlane_b32 s{sW}, v{vT2}")
    a(f"s_lshl_b32 s{rV+2}, 1, 27"); a(f"s_mov_b32 s{rV+3}, 0x20000")
    a(f"v_and_b32 v{vE}, 3, v{vL}"); a(f"v_and_b32 v{vN}, 15, v{vL}")
    a(f"v_lshl_add_u32 v{vKO}, v{vE}, 10, v{vT}")
    a(f"v_lshlrev_b32 v{vVO}, 4, v{vL}"); a(f"v_lshl_add_u32 v{vVW}, v{vT2}, 12, v{vVO}")
    if codepf:
        C("pull this kernel's code into L2 (each workgroup touches 8 lines)")
        a(f"s_getpc_b64 {sr(sPC,2)}")
        a("L_pc:")
        a(f"v_and_b32 v{vT}, 7, v0"); a(f"v_lshl_add_u32 v{vT}, s{sJ}, 3, v{vT}"); a(f"v_lshlrev_b32 v{vT}, 7, v{vT}")
        a(f"v_min_u32 v{vT}, L_codeend-L_pc-4, v{vT}")
        vm("pf", f"global_load_dword v{vT2}, v{vT}, {sr(sPC,2)}")
    C("stage 1: xn @ [wq | w_gate | w_up]: 120 blocks of 64 columns x 2 row halves; cb = (wg&7)*30 + j for j < 30, block cb>>1, half cb&1")
    a(f"s_mul_i32 s{sCB}, s{sKVH}, 30"); a(f"s_add_u32 s{sCB}, s{sCB}, s{sJ}")
    a(f"s_movk_i32 s{sCOL}, 184"); a(f"s_cmp_lt_u32 s{sCB}, s{sCOL}"); a(f"s_cselect_b32 s{sCOL}, 128, s{sCOL}")
    a(f"s_cselect_b64 {sr(rW1,2)}, {sr(sG,2)}, {sr(sU,2)}")
    a(f"s_cmp_lt_u32 s{sCB}, 128"); a(f"s_cselect_b32 s{sCOL}, 0, s{sCOL}")
    a(f"s_cselect_b64 {sr(rW1,2)}, {sr(sWQ,2)}, {sr(rW1,2)}")
    a(f"s_movk_i32 s{sSTR}, 3584"); a(f"s_cselect_b32 s{sSTR}, 8192, s{sSTR}")
    a(f"s_sub_u32 s{sCOL}, s{sCB}, s{sCOL}"); a(f"s_lshr_b32 s{sCOL}, s{sCOL}, 1"); a(f"s_lshl_b32 s{sCOL}, s{sCOL}, 7")
    a(f"s_and_b32 s{sTMP2}, s{sCB}, 1"); a(f"s_lshl_b32 s{sTMP2}, s{sTMP2}, 2"); a(f"s_add_u32 s{sTMP2}, s{sTMP2}, s{sW}"); a(f"s_lshl_b32 s{sTMP2}, s{sTMP2}, 6")
    a(f"s_mul_i32 s{sTMP}, s{sTMP2}, s{sSTR}"); a(f"s_add_u32 s{sCOL}, s{sCOL}, s{sTMP}")
    a(f"v_lshrrev_b32 v{vT}, 3, v{vL}")
    a(f"s_lshl_b32 s{sTMP2}, s{sTMP2}, 1"); a(f"v_lshl_add_u32 v{vGO}, v{vT}, 4, s{sTMP2}")
    a(f"s_lshl_b32 s{sTMP}, s{sSTR}, 3")
    a(f"v_mul_u32_u24 v{vGM}, s{sTMP}, v{vT}"); a(f"v_and_b32 v{vT}, 7, v{vL}"); a(f"v_lshl_add_u32 v{vGM}, v{vT}, 4, v{vGM}")
    if dw1 == "full":
        a(f"v_lshrrev_b32 v{vT}, 3, v{vL}"); a(f"v_mul_u32_u24 v{vGM}, s{sTMP}, v{vT}"); a(f"v_and_b32 v{vT}, 7, v{vL}"); a(f"v_lshl_add_u32 v{vGM}, v{vT}, 4, v{vGM}")
        a(f"s_and_b32 s{sTMP}, s{sCOL}, 64"); a(f"s_sub_u32 s{sCOL}, s{sCOL}, s{sTMP}"); a(f"s_mul_i32 s{sTMP}, s{sTMP}, s{sSTR}"); a(f"s_add_u32 s{sCOL}, s{sCOL}, s{sTMP}")
    if dw1 == "consec":
        a(f"v_lshrrev_b32 v{vT}, 2, v{vL}"); a(f"v_mul_u32_u24 v{vGM}, s{sSTR}, v{vT}"); a(f"v_lshl_add_u32 v{vGM}, v{vE}, 4, v{vGM}")
    a(f"v_mov_b32 v{vNM}, {E_OFF}")
    a(f"s_mov_b32 s{rW1+3}, 0x20000")
    a(f"s_lshl_b32 s{rW1+2}, s{sSTR}, 9"); a(f"s_cmp_lt_u32 s{sJ}, 30"); a(f"s_cselect_b32 s{rW1+2}, s{rW1+2}, 0")
    if dw1 == "none": a(f"s_min_u32 s{rW1+2}, s{rW1+2}, 1")
    if dw1 == "consec": a(f"s_lshl_b32 s{sSTR}, s{sSTR}, 4")
    vm("x", f"global_load_dword v{vNM}, v{vNM}, {sr(sWS,2)} sc1")
    vm("x", f"global_load_dwordx4 {vr(vSS,4)}, v{vVO}, {sr(sX,2)}")
    vm("x", f"global_load_dwordx4 {vr(vTT,4)}, v{vGO}, {sr(sX,2)}")
    for i in range(8):
        vm(("w1", i), f"buffer_load_dwordx4 {vr(vW+4*i,4)}, v{vGM}, {sr(rW1,4)}, s{sCOL} offen {wflags}")
        if i < 7: a(f"s_add_u32 s{sCOL}, s{sCOL}, s{sSTR}")
    issue()
    for k, m in ((sM1, 0x22222222), (sM2, 0x44444444), (sM3, 0x88888888), (sMO, 0xaaaaaaaa)):
        a(f"s_mov_b32 s{k}, {m:#x}"); a(f"s_mov_b32 s{k+1}, s{k}")
    a(f"s_mov_b32 s{sHI}, 0xffff0000"); a(f"s_mov_b32 s{sSC}, {f2u(128**-0.5):#x}"); a(f"s_mov_b32 s{sL2E}, {f2u(L2E):#x}")
    a(f"s_mov_b32 s{sTMO}, {tmo}")
    a(f"s_mov_b64 {sr(rWS,2)}, {sr(sWS,2)}"); a(f"s_mov_b32 s{rWS+2}, {WS_BYTES:#x}"); a(f"s_mov_b32 s{rWS+3}, 0x20000")
    a(f"s_mov_b32 s{sDG}, 0x00f0000f"); a(f"s_mov_b32 s{sDG+1}, 0xf0000f00")
    C("masks that place one bf16 at element l&3 (K=16 MFMA) / l&7 (K=32 MFMA) of an A operand")
    a(f"v_and_b32 v{vT}, 1, v{vL}"); a(f"v_lshlrev_b32 v{vT}, 4, v{vT}"); a(f"v_mov_b32 v{vM1}, 0xffff")
    wait("x")
    a(f"v_lshlrev_b32 v{vT2}, v{vT}, v{vM1}")
    a(f"v_cmp_gt_u32 vcc, 2, v{vE}"); a(f"v_cndmask_b32 v{vM0}, 0, v{vT2}, vcc"); a(f"v_xor_b32 v{vM1}, v{vT2}, v{vM0}")
    a(f"v_bfe_u32 v{vT}, v{vL}, 1, 2")
    for t in range(4):
        a(f"v_cmp_eq_u32 vcc, {t}, v{vT}"); a(f"v_cndmask_b32 v{vMK+t}, 0, v{vT2}, vcc")
    a(f"v_readfirstlane_b32 s{sT}, v{vNM}")
    C("LayerNorm (bf16 rounding after every step, as the reference does)")
    F = vF
    unpack(F, vSS, 4)
    a(f"v_add_f32 v{vA0}, v{F}, v{F+1}")
    for i in range(2, 8): a(f"v_add_f32 v{vA0}, v{vA0}, v{F+i}")
    rowreduce("v_add_f32", (vA0,)); allreduce_rows("v_add_f32", vA0, vT)
    a(f"v_mul_f32 v{vA0}, {f2u(1/512):#x}, v{vA0}")
    for i in range(8): a(f"v_sub_f32 v{F+i}, v{F+i}, v{vA0}")
    a(f"v_mul_f32 v{vA1}, v{F}, v{F}")
    for i in range(1, 8): a(f"v_fmac_f32 v{vA1}, v{F+i}, v{F+i}")
    rowreduce("v_add_f32", (vA1,)); allreduce_rows("v_add_f32", vA1, vT)
    a(f"v_mul_f32 v{vA1}, {f2u(1/512):#x}, v{vA1}")
    a(f"v_cvt_pk_bf16_f32 v{vA0}, v{vA0}, v{vA1}")
    a(f"v_and_b32 v{vA1}, s{sHI}, v{vA0}"); a(f"v_lshlrev_b32 v{vA0}, 16, v{vA0}")
    a(f"v_add_f32 v{vA1}, {f2u(1e-5):#x}, v{vA1}")
    a(f"v_cvt_pk_bf16_f32 v{vA1}, v{vA1}, v{vA1}"); a(f"v_and_b32 v{vA1}, s{sHI}, v{vA1}")
    a(f"v_sqrt_f32 v{vA1}, v{vA1}")
    a(f"v_cvt_pk_bf16_f32 v{vA1}, v{vA1}, v{vA1}"); a(f"v_and_b32 v{vA1}, s{sHI}, v{vA1}")
    a(f"v_rcp_f32 v{vA1}, v{vA1}")
    unpack(F, vTT, 4)
    for i in range(8): a(f"v_sub_f32 v{F+i}, v{F+i}, v{vA0}")
    for i in range(4): a(f"v_cvt_pk_bf16_f32 v{vTT+i}, v{F+2*i}, v{F+2*i+1}")
    unpack(F, vTT, 4)
    for i in range(8): a(f"v_mul_f32 v{F+i}, v{F+i}, v{vA1}")
    for i in range(8): a(f"v_cvt_pk_bf16_f32 v{F+i}, v{F+i}, v{F+i}")
    for i in range(8):
        for t in range(4): a(f"v_and_b32 v{vS+4*i+t}, v{F+i}, v{vMK+t}")
    while nxt[0] < pre: issue()
    C("stage-1 GEMV: 64 rows x 64 columns per wave")
    for i in range(8):
        wait(("w1", i))
        a(f"v_mfma_f32_16x16x32_bf16 {vr(vA0,4)}, {vr(vS+4*i,4)}, {vr(vW+4*i,4)}, {'0' if i == 0 else vr(vA0,4)}")
    C("hand-off tag of this launch = epoch word + 0x01010101 (every byte differs from the previous launch's tag)")
    a(f"s_add_u32 s{sT}, s{sT}, 0x01010101")
    for k in range(4): a(f"s_bfe_u32 s{sTB+k}, s{sT}, {(8<<16)|(8*k):#x}")
    for k in range(4): a(f"s_and_b32 s{sTN[k]}, s{sTB+k}, {AM}")
    a(f"s_lshl_b32 s{sTMP}, s{sW}, 9"); a(f"v_lshl_add_u32 v{vDGA}, v{vSL}, 7, s{sTMP}"); a(f"v_lshl_add_u32 v{vDGA}, v{vE}, 5, v{vDGA}")
    a(f"v_mov_b32 v{vFF}, 0xff")
    C("lanes with (l>>5) == ((l>>3)&1) hold columns 8*(l&7) + 4*((l>>4)&1) + r of row group l>>5")
    a(f"v_and_b32 v{vT}, 7, v{vL}"); a(f"v_lshl_add_u32 v{vT}, v{vT}, 5, s{sTMP}"); a(f"v_and_b32 v{vT2}, 16, v{vL}"); a(f"v_add_u32 v{vT}, v{vT}, v{vT2}")
    a(f"v_and_b32 v{vT2}, 32, v{vL}"); a(f"v_lshl_add_u32 v{vT}, v{vT2}, 3, v{vT}")
    if yfull: a(f"v_mov_b32 v{vDGA}, v{vT}")
    a("s_mov_b32 exec_lo, 0x00ff00ff"); a("s_mov_b32 exec_hi, 0xff00ff00")
    a(f"ds_write_b128 v{vT}, {vr(vA0,4)} offset:{L_S1}")
    a("s_mov_b64 exec, -1")
    a("s_waitcnt lgkmcnt(0)")
    a("s_barrier")
    a(f"s_cmp_lg_u32 s{sW}, 0"); a("s_cbranch_scc1 L_pub1_done")
    a(f"s_cmp_eq_u32 s{rW1+2}, 0"); a("s_cbranch_scc1 L_pub1_done")
    a("s_mov_b64 exec, 0xffff")
    a(f"s_lshr_b32 s{sTMP}, s{sCB}, 1"); a(f"s_lshl_b32 s{sTMP}, s{sTMP}, 8"); a(f"s_and_b32 s{sTMP2}, s{sCB}, 1"); a(f"s_mul_i32 s{sTMP2}, s{sTMP2}, {HALF}")
    a(f"s_add_u32 s{sTMP}, s{sTMP}, s{sTMP2}"); a(f"s_add_u32 s{sTMP}, s{sTMP}, {A1_OFF}")
    gemv_reduce(L_S1, vW, False)
    a(f"v_mov_b32 v{vT}, {AM}")
    for r in range(4): a(f"v_add_u32 v{vW+r}, {(AM+1)//2}, v{vW+r}")
    for r in range(4): a(f"v_bfi_b32 v{vA0+r}, v{vT}, s{sTB+r}, v{vW+r}")
    a(f"buffer_store_dwordx4 {vr(vA0,4)}, v{vVO}, {sr(rWS,4)}, s{sTMP} offen sc1")
    a("s_mov_b64 exec, -1")
    a("L_pub1_done:")
    C("wave 1 posts {tag, XCD id}; a workgroup that later reads its own value from all 32 members of its kv-head group")
    C("knows that they share one L2 and may hand data over with plain stores; otherwise it writes through (sc1)")
    a(f"s_getreg_b32 s{sTMP}, hwreg(HW_REG_XCC_ID, 0, 4)"); a(f"s_lshl_b32 s{sXV}, s{sT}, 4"); a(f"s_or_b32 s{sXV}, s{sXV}, s{sTMP}")
    a(f"s_cmp_lg_u32 s{sW}, 1"); a("s_cbranch_scc1 L_nox")
    a(f"s_lshl_b32 s{sTMP}, s{sKVH}, 8"); a(f"s_lshl_b32 s{sTMP2}, s{sJ}, 2"); a(f"s_add_u32 s{sTMP}, s{sTMP}, s{sTMP2}"); a(f"s_add_u32 s{sTMP}, s{sTMP}, {X_OFF}")
    a(f"v_mov_b32 v{vT}, s{sXV}")
    a("s_mov_b64 exec, 1"); a(f"buffer_store_dword v{vT}, v{vVO}, {sr(rWS,4)}, s{sTMP} offen"); a("s_mov_b64 exec, -1")
    a("L_nox:")
    if pbar: a("s_barrier")
    stamp()
    issue(); issue()
    NRG = 28 if yfull else 14
    if yfull:
        C("w_down tile: rows rg*64 + 16w + 2*(l>>3) + i, columns cg*64 + 8*(l&7); rg = j (>= 28 lies outside the buffer and reads 0), cg = wg&7")
        a(f"s_mov_b32 s{sRG}, s{sJ}"); a(f"s_mov_b32 s{sCOL}, s{sKVH}")
        a(f"s_mov_b64 {sr(rDN,2)}, {sr(sDN,2)}"); a(f"s_mov_b32 s{rDN+2}, {1792*1024}"); a(f"s_mov_b32 s{rDN+3}, 0x20000")
        a(f"s_lshl_b32 s{sTMP}, s{sRG}, 2"); a(f"s_add_u32 s{sSTR}, s{sTMP}, s{sW}")
        a(f"s_lshl_b32 s{sTMP}, s{sSTR}, 14"); a(f"s_lshl_b32 s{sTMP2}, s{sCOL}, 7"); a(f"s_add_u32 s{sTMP}, s{sTMP}, s{sTMP2}")
        a(f"v_lshrrev_b32 v{vT2}, 3, v{vL}"); a(f"v_and_b32 v{vT}, 7, v{vL}"); a(f"v_lshlrev_b32 v{vT}, 4, v{vT}"); a(f"v_lshl_add_u32 v{vT}, v{vT2}, 11, v{vT}")
        for i in range(2): vm(("dn", i), f"buffer_load_dwordx4 {vr(vD+4*i,4)}, v{vT}, {sr(rDN,4)}, s{sTMP} offen offset:{1024*i} {wflags}")
    else:
        C("w_down tile: rows rg*128 + 32w + 2*(l>>2) + i, columns cg*32 + 8*(l&3); rg >= 14 lies outside the buffer and reads 0")
        a(f"s_lshr_b32 s{sTMP}, s2, 7"); a(f"s_lshl_b32 s{sRG}, s{sTMP}, 3"); a(f"s_add_u32 s{sRG}, s{sRG}, s{sKVH}")
        a(f"s_mov_b64 {sr(rDN,2)}, {sr(sDN,2)}"); a(f"s_mov_b32 s{rDN+2}, {1792*1024}"); a(f"s_mov_b32 s{rDN+3}, 0x20000")
        a(f"s_and_b32 s{sCOL}, s{sJ}, 15")
        a(f"s_lshl_b32 s{sTMP}, s{sRG}, 2"); a(f"s_add_u32 s{sSTR}, s{sTMP}, s{sW}")
        a(f"s_lshl_b32 s{sTMP}, s{sSTR}, 15"); a(f"s_lshl_b32 s{sTMP2}, s{sCOL}, 6"); a(f"s_add_u32 s{sTMP}, s{sTMP}, s{sTMP2}")
        a(f"v_lshrrev_b32 v{vT2}, 2, v{vL}"); a(f"v_lshlrev_b32 v{vT}, 11, v{vT2}"); a(f"v_lshl_add_u32 v{vT}, v{vE}, 4, v{vT}")
        for i in range(2): vm(("dn", i), f"buffer_load_dwordx4 {vr(vD+4*i,4)}, v{vT}, {sr(rDN,4)}, s{sTMP} offen offset:{1024*i} {wflags}")
    C("addresses used by the later hand-offs")
    a(f"v_and_b32 v{vT}, 7, v{vL}"); a(f"v_xor_b32 v{vT}, v{vT}, v{vSL}"); a(f"v_lshlrev_b32 v{vT}, 4, v{vT}")
    a(f"v_lshl_add_u32 v{vOAW}, v{vN}, 7, v{vT}"); a(f"s_lshl_b32 s{sTMP}, s{sW}, 11"); a(f"v_add_u32 v{vOAW}, s{sTMP}, v{vOAW}"); a(f"v_xor_b32 v{vOAW1}, 64, v{vOAW}")
    a(f"v_lshrrev_b32 v{vT}, 3, v{vL}"); a(f"v_xor_b32 v{vOAR}, v{vT}, v{vL}"); a(f"v_and_b32 v{vOAR}, 7, v{vOAR}"); a(f"v_lshlrev_b32 v{vOAR}, 4, v{vOAR}")
    a(f"v_lshl_add_u32 v{vOAR}, v{vT}, 7, v{vOAR}"); a(f"s_and_b32 s{sTMP}, s{sW}, 1"); a(f"s_lshl_b32 s{sTMP}, s{sTMP}, 10"); a(f"v_add_u32 v{vOAR}, s{sTMP}, v{vOAR}")
    a(f"s_lshl_b32 s{sPM}, s{sKVH}, 5"); a(f"s_add_u32 s{sPM}, s{sPM}, s{sJ}")
    a(f"s_lshl_b32 s{sPP}, s{sPM}, 11"); a(f"s_add_u32 s{sPP}, s{sPP}, s{sTMP}"); a(f"s_add_u32 s{sPP}, s{sPP}, {P_OFF}")
    a(f"s_lshl_b32 s{sPS}, s{sPM}, 9"); a(f"s_add_u32 s{sPS}, s{sPS}, {S_OFF}")
    a(f"s_lshl_b32 s{sPM}, s{sPM}, 6"); a(f"s_add_u32 s{sPM}, s{sPM}, {ML_OFF}")
    a(f"s_lshl_b32 s{sTMP}, s{sW}, 2"); a(f"s_add_u32 s{sTMP}, s{sTMP}, {L_ML}"); a(f"v_lshl_add_u32 v{vMLW}, v{vBK}, 4, s{sTMP}"); a(f"v_lshlrev_b32 v{vMLR}, 4, v{vE}")
    a(f"v_lshl_add_u32 v{vSRW}, v{vN}, 1, v{vSL}"); a(f"v_lshlrev_b32 v{vSRW}, 4, v{vSRW}"); a(f"s_lshl_b32 s{sTMP}, s{sW}, 9"); a(f"v_add_u32 v{vSRW}, s{sTMP}, v{vSRW}")
    a(f"v_lshlrev_b32 v{vL2K}, 11, v{vL}")
    a(f"v_lshlrev_b32 v{vWOO}, 4, v{vN}"); a(f"v_lshl_add_u32 v{vWOO}, v{vSL}, 17, v{vWOO}")
    C("final-stage role: wave 2 of workgroups with j < 16 owns output columns 4f..4f+3, f = (wg&7)*16 + j")
    a(f"s_lshl_b32 s{sF}, s{sKVH}, 4"); a(f"s_add_u32 s{sF}, s{sF}, s{sJ}")
    a(f"s_cmp_lt_u32 s{sJ}, 16"); a(f"s_cselect_b32 s{sF}, s{sF}, 999")
    a(f"s_cmp_eq_u32 s{sW}, 2"); a(f"s_cselect_b32 s{sF}, s{sF}, 999")
    while nxt[0] < qpos: issue()
    C("gather: wave w sums, rounds and shares dims 32w..32w+31 of q (MFMA B layout, head = (l>>2)&3); plus this wave's g / u rows")
    a(f"v_lshlrev_b32 v{vGO}, 9, v{vBK}"); a(f"v_lshl_add_u32 v{vGO}, v{vSL}, 5, v{vGO}")
    a(f"s_lshl_b32 s{sCB}, s{sKVH}, 11"); a(f"s_lshl_b32 s{sTMP}, s{sW}, 7"); a(f"s_add_u32 s{sCB}, s{sCB}, s{sTMP}"); a(f"s_add_u32 s{sCB}, s{sCB}, {A1_OFF}"); a(f"s_add_u32 s{sGM}, s{sCB}, {HALF}")
    a(f"v_lshlrev_b32 v{vGM}, 3, v{vT2}")
    a(f"s_min_u32 s{sSTR}, s{sSTR}, {NRG*4-1}")
    a(f"s_lshl_b32 s{sGO0}, s{sSTR}, {6 if yfull else 7}"); a(f"s_add_u32 s{sGO0}, s{sGO0}, {A1_OFF + 4096*4}"); a(f"s_add_u32 s{sGO1}, s{sGO0}, {1792*4}")
    a(f"s_add_u32 s{sTLO}, s{sGO0}, {HALF}"); a(f"s_add_u32 s{sTHI}, s{sGO1}, {HALF}")
    def qloads(fl, cnt):
        e = vm if cnt else (lambda tag, text: a(text))
        for half, so in enumerate((sCB, sGM)):
            for h in range(2): e("q", f"buffer_load_dwordx4 {vr(vW+8*half+4*h,4)}, v{vGO}, {sr(rWS,4)}, s{so} offen offset:{16*h} {fl}")
        for k, so in enumerate((sGO0, sGO1, sTLO, sTHI)): e("q", f"buffer_load_dwordx2 {vr(vGU+2*k,2)}, v{vGM}, {sr(rWS,4)}, s{so} offen {fl}")
    qloads(q1, True)
    while nxt[0] < NS: issue()
    a(f"v_and_b32 v{vT}, {8 if yfull else 4}, v{vL}"); a(f"v_lshlrev_b32 v{vT}, {1 if yfull else 2}, v{vT}"); a(f"v_lshrrev_b32 v{vT}, v{vT}, s{sT}")
    a(f"v_and_b32 v{vTA}, {AM}, v{vT}"); a(f"v_bfe_u32 v{vTB_}, v{vT}, 8, {abits}")
    a(f"s_lshl_b32 s{sTMP}, s{sW}, 10"); a(f"v_add_u32 v{vXG}, s{sTMP}, v{vVO}")
    wait("q")
    a("L_qchk:")
    for i in range(16): a(f"v_xor_b32 v{vW+i}, s{sTN[i&3]}, v{vW+i}")
    for i in range(8): a(f"v_xor_b32 v{vGU+i}, v{vTB_ if i&1 else vTA}, v{vGU+i}")
    a(f"v_or_b32 v{vT}, v{vW}, v{vW+1}")
    for i in range(2, 16, 2): a(f"v_or3_b32 v{vT}, v{vT}, v{vW+i}, v{vW+i+1}")
    for i in range(0, 8, 2): a(f"v_or3_b32 v{vT}, v{vT}, v{vGU+i}, v{vGU+i+1}")
    a(f"v_and_b32 v{vT}, {AM}, v{vT}")
    a(f"v_cmp_ne_u32 vcc, 0, v{vT}"); a("s_cbranch_vccnz L_qretry")
    a("L_qok:")
    for i in range(8): a(f"v_add_f32 v{vW+i}, v{vW+i}, v{vW+8+i}")
    for i in range(4): a(f"v_cvt_pk_bf16_f32 v{vW+i}, v{vW+2*i}, v{vW+2*i+1}")
    a(f"ds_write_b128 v{vXG}, {vr(vW,4)} offset:{L_Q}")
    for i in range(4): a(f"v_add_f32 v{vGU+i}, v{vGU+i}, v{vGU+4+i}")
    for i in range(4): a(f"v_cvt_pk_bf16_f32 v{vGU+i}, v{vGU+i}, v{vGU+i}")
    a("s_waitcnt lgkmcnt(0)"); a("s_barrier")
    for jj in range(4): a(f"ds_read_b128 {vr(vQ+4*jj,4)}, v{vVO} offset:{L_Q+1024*jj}")
    a("s_waitcnt lgkmcnt(0)")
    for b in range(2):
        for t in range(4): a(f"v_cndmask_b32 v{vQH+4*b+t}, v{vQ+8*b+t}, v{vQ+8*b+4+t}, {sr(sMO,2)}")
    stamp()
    def ystage():
        C("GLU: h = bf16(bf16(sigmoid(g)) * u), partial y = h @ w_down tile")
        for i in range(4): a(f"v_and_b32 v{vGU+i}, s{sHI}, v{vGU+i}")
        for i in range(2): a(f"v_mul_f32 v{vGU+i}, {f2u(-L2E):#x}, v{vGU+i}")
        for i in range(2): a(f"v_exp_f32 v{vGU+i}, v{vGU+i}")
        for i in range(2): a(f"v_add_f32 v{vGU+i}, 1.0, v{vGU+i}")
        for i in range(2): a(f"v_rcp_f32 v{vGU+i}, v{vGU+i}")
        for i in range(2): a(f"v_cvt_pk_bf16_f32 v{vGU+i}, v{vGU+i}, v{vGU+i}")
        for i in range(2): a(f"v_and_b32 v{vGU+i}, s{sHI}, v{vGU+i}")
        for i in range(2): a(f"v_mul_f32 v{vGU+i}, v{vGU+i}, v{vGU+2+i}")
        for i in range(2): a(f"v_cvt_pk_bf16_f32 v{vGU+i}, v{vGU+i}, v{vGU+i}")
        if yfull:
            for i in range(2):
                for t in range(4): a(f"v_and_b32 v{vXX+4*i+t}, v{vGU+i}, v{vMK+t}")
            for i in range(2):
                wait(("dn", i)); a(f"v_mfma_f32_16x16x32_bf16 {vr(vA0,4)}, {vr(vXX+4*i,4)}, {vr(vD+4*i,4)}, {'0' if i == 0 else vr(vA0,4)}")
        else:
            for i in range(2):
                a(f"v_and_b32 v{vXX+2*i}, v{vGU+i}, v{vM0}"); a(f"v_and_b32 v{vXX+2*i+1}, v{vGU+i}, v{vM1}")
            gemv(vXX, vD, 2, "dn")
        C("gather addresses: (m,l) lane = (producer 4*(l>>4)+(l&3), head (l>>2)&3); o lane = (producer l&15, head l>>4)")
        a(f"v_lshlrev_b32 v{vGO}, 11, v{vN}"); a(f"v_lshl_add_u32 v{vGO}, v{vSL}, 4, v{vGO}")
        a(f"v_lshlrev_b32 v{vGM}, 4, v{vBK}"); a(f"v_lshl_add_u32 v{vGM}, v{vE}, 6, v{vGM}"); a(f"v_lshl_add_u32 v{vGM}, v{vSL}, 8, v{vGM}")
        a(f"s_and_b32 s{sTMP}, s{sJ}, 28"); a(f"s_add_u32 s{sSTR}, s{sTMP}, s{sW}")
        a(f"s_lshl_b32 s{sTMP}, s{sKVH}, 16"); a(f"s_lshl_b32 s{sTMP2}, s{sSTR}, 6"); a(f"s_add_u32 s{sGO0}, s{sTMP}, s{sTMP2}")
        a(f"s_add_u32 s{sGO0}, s{sGO0}, {P_OFF}"); a(f"s_add_u32 s{sGO1}, s{sGO0}, 0x8000")
        a(f"s_lshl_b32 s{sGM}, s{sKVH}, 11"); a(f"s_add_u32 s{sGM}, s{sGM}, {ML_OFF}")
        a(f"s_lshl_b32 s{sTMP}, s{sKVH}, 19"); a(f"s_lshl_b32 s{sTMP2}, s{sSTR}, 12"); a(f"s_add_u32 s{sCB}, s{sTMP}, s{sTMP2}")
        a(f"s_and_b32 s{sTMP}, s{sJ}, 3"); a(f"s_lshl_b32 s{sTMP}, s{sTMP}, 8"); a(f"s_add_u32 s{sCB}, s{sCB}, s{sTMP}")
        a(f"s_mov_b64 {sr(rDN,2)}, {sr(sWO,2)}"); a(f"s_mov_b32 s{rDN+2}, {4096*1024}")
        if yfull:
            a("s_mov_b32 exec_lo, 0x00ff00ff"); a("s_mov_b32 exec_hi, 0xff00ff00")
            a(f"ds_write_b128 v{vDGA}, {vr(vA0,4)} offset:{L_Y}"); a("s_mov_b64 exec, -1")
        else: gemv_store(L_Y)
    def ypublish(cnt):
        C("wave 3 publishes this workgroup's y partial")
        a(f"s_cmp_lg_u32 s{sW}, 3"); a("s_cbranch_scc1 L_noypub")
        a(f"s_cmp_ge_u32 s{sRG}, {NRG}"); a("s_cbranch_scc1 L_noypub")
        if cnt:
            a(f"v_mov_b32 v{vT}, 0")
            a("L_ycnt:")
            a(f"ds_read_b32 v{vT2}, v{vT} offset:{L_CNT}"); a("s_waitcnt lgkmcnt(0)")
            a(f"v_cmp_ne_u32 vcc, 4, v{vT2}"); a("s_cbranch_vccz L_ycntok"); timeout("L_ycnt")
            a("L_ycntok:")
        a("s_mov_b64 exec, 0xffff")
        a(f"s_lshl_b32 s{sTMP}, s{sRG}, 11"); a(f"s_lshl_b32 s{sTMP2}, s{sCOL}, {8 if yfull else 7}"); a(f"s_add_u32 s{sTMP}, s{sTMP}, s{sTMP2}"); a(f"s_add_u32 s{sTMP}, s{sTMP}, {Y_OFF}")
        gemv_reduce(L_Y, vW, not yfull)
        for r in range(4): a(f"v_add_u32 v{vW+r}, 0x80, v{vW+r}")
        for r in range(4): a(f"v_bfi_b32 v{vW+r}, v{vFF}, s{sTB+r}, v{vW+r}")
        if yfull:
            C("the consumers of column group wg&7 are members of this group")
            a(f"s_cmp_eq_u32 s{sFAST}, 0"); a("s_cbranch_scc1 L_yslow")
            a(f"buffer_store_dwordx4 {vr(vW,4)}, v{vVO}, {sr(rWS,4)}, s{sTMP} offen")
            a("L_ydone:")
        else:
            a("s_mov_b64 exec, 0xff")
            a(f"buffer_store_dwordx4 {vr(vW,4)}, v{vVO}, {sr(rWS,4)}, s{sTMP} offen sc1")
        a("s_mov_b64 exec, -1")
        a("L_noypub:")
    C("pass 1: scores.  lane l keeps s[key 4*(l&3) + (l>>4) of the tile][head (l>>2)&3], one register per tile")
    for t in range(NT):
        b = 16*slot[t]
        wait((t, 3))
        if kseq[t] == "r":
            for i in range(4): a(f"v_mfma_f32_16x16x32_bf16 {vr(vSS,4)}, {ar(b+4*i,4)}, {vr(vQ+4*i,4)}, {'0' if i == 0 else vr(vSS,4)}")
        else:
            for i in (0, 2, 1, 3): a(f"v_mfma_f32_16x16x32_bf16 {vr(vSS+4*(i>>1),4)}, {ar(b+4*i,4)}, {vr(vQH+4*(i&1),4)}, {'0' if i&1 == 0 else vr(vSS+4*(i>>1),4)}")
        free.append(slot[t])
        depth = nxt[0] - (t+1)
        if depth < RD or (t % (kskip+1) == 0): issue()
        x = vS + t
        if kseq[t] == "r": sel4(x, vSS, vSS+1, vSS+2, vSS+3)
        else:
            sel4(vT, vSS+2, vSS+1, vSS+6, vSS+5); sel4(x, vSS, vSS+3, vSS+4, vSS+7)
            a(f"v_add_f32_dpp v{x}, v{vT}, v{x} quad_perm:[1,0,3,2] row_mask:0xf bank_mask:0xf")
        a(f"v_cvt_pk_bf16_f32 v{x}, v{x}, v{x}"); a(f"v_and_b32 v{x}, s{sHI}, v{x}"); a(f"v_mul_f32 v{x}, s{sSC}, v{x}")
        a(f"v_cvt_pk_bf16_f32 v{x}, v{x}, v{x}"); a(f"v_and_b32 v{x}, s{sHI}, v{x}")
        if t == 1: a(f"v_max_f32 v{vNM}, v{x-1}, v{x}")
        elif t % 2 == 1: a(f"v_max3_f32 v{vNM}, v{vNM}, v{x-1}, v{x}")
        if t == yt: ystage()
        if t == ypub and not ybar: ypublish(True)
        if t == xget:
            a(f"s_lshl_b32 s{sTMP}, s{sKVH}, 8"); a(f"s_add_u32 s{sTMP}, s{sTMP}, {X_OFF}")
            a(f"v_and_b32 v{vT}, 31, v{vL}"); a(f"v_lshlrev_b32 v{vT}, 2, v{vT}")
            vm("xg", f"buffer_load_dword v{vXG}, v{vT}, {sr(rWS,4)}, s{sTMP} offen sc1")
        if t == xget + RD + 1:
            wait("xg")
            a(f"v_cmp_ne_u32 vcc, s{sXV}, v{vXG}"); a("s_cmp_eq_u64 vcc, 0"); a(f"s_cselect_b32 s{sFAST}, 1, 0")
            if force is not None: a(f"s_mov_b32 s{sFAST}, {force}")
            C("lanes of the s-partial store whose consumers are members of this (proven local) group")
            a(f"s_and_b32 s{sTMP}, s{sJ}, 3"); a(f"s_lshr_b32 s{sTMP2}, s{sKVH}, 1"); a(f"s_cmp_eq_u32 s{sTMP}, s{sTMP2}"); a(f"s_cselect_b32 s{sLOC}, s{sFAST}, 0")
            a(f"s_mul_i32 s{sLOC}, s{sLOC}, 0xffff"); a(f"s_and_b32 s{sTMP}, s{sKVH}, 1"); a(f"s_lshl_b32 s{sTMP}, s{sTMP}, 4"); a(f"s_lshl_b32 s{sLOC}, s{sLOC}, s{sTMP}")
    C("wave max per head, e = exp(s - max), wave sum")
    allreduce_quad("v_max_f32", vNM); allreduce_rows("v_max_f32", vNM, vT)
    a(f"v_mul_f32 v{vNM}, {f2u(-L2E):#x}, v{vNM}")
    for t0 in range(0, NT, 4):
        for t in range(t0, t0+4): a(f"v_fma_f32 v{vS+t}, v{vS+t}, s{sL2E}, v{vNM}")
        for t in range(t0, t0+4): a(f"v_exp_f32 v{vS+t}, v{vS+t}")
        if t0 == 0: a(f"v_add_f32 v{vLS}, v{vS}, v{vS+1}"); a(f"v_add_f32 v{vT2}, v{vS+2}, v{vS+3}")
        else:
            for t in range(t0, t0+4): a(f"v_add_f32 v{vLS if t&1 else vT2}, v{vLS if t&1 else vT2}, v{vS+t}")
    a(f"v_add_f32 v{vLS}, v{vLS}, v{vT2}")
    allreduce_quad("v_add_f32", vLS); allreduce_rows("v_add_f32", vLS, vT)
    if mlbar:
        C("wave 0 merges the four (max, sum) pairs and publishes them; the others hold their loads until the store is out")
        a(f"ds_write2_b32 v{vMLW}, v{vNM}, v{vLS} offset0:0 offset1:16")
        a("s_waitcnt lgkmcnt(0)"); a("s_barrier")
        if ybar: ypublish(False)
        a(f"s_cmp_lg_u32 s{sW}, 0"); a("s_cbranch_scc1 L_nomlpub")
        a(f"ds_read_b128 {vr(vSS,4)}, v{vMLR} offset:{L_ML}"); a(f"ds_read_b128 {vr(vTT,4)}, v{vMLR} offset:{L_ML+64}")
        a("s_waitcnt lgkmcnt(0)")
    else:
        C("the wave that arrives last merges the four (max, sum) pairs and publishes them")
        a(f"ds_write2_b32 v{vMLW}, v{vNM}, v{vLS} offset0:0 offset1:16")
        a(f"v_mov_b32 v{vT}, 0"); a(f"v_mov_b32 v{vT2}, 1")
        a("s_mov_b64 exec, 1"); a(f"ds_add_rtn_u32 v{vT2}, v{vT}, v{vT2} offset:{L_CNT+4}"); a("s_mov_b64 exec, -1")
        a(f"ds_read_b128 {vr(vSS,4)}, v{vMLR} offset:{L_ML}"); a(f"ds_read_b128 {vr(vTT,4)}, v{vMLR} offset:{L_ML+64}")
        a("s_waitcnt lgkmcnt(0)")
        a(f"v_readfirstlane_b32 s{sTMP}, v{vT2}"); a(f"s_cmp_lg_u32 s{sTMP}, 3"); a("s_cbranch_scc1 L_nomlpub")
    if stprobe: a(f"s_memrealtime s[{sST+2}:{sST+3}]")
    a(f"v_min3_f32 v{vA1}, v{vSS}, v{vSS+1}, v{vSS+2}"); a(f"v_min_f32 v{vA1}, v{vA1}, v{vSS+3}")
    for w in range(4): a(f"v_sub_f32 v{vSS+w}, v{vA1}, v{vSS+w}")
    for w in range(4): a(f"v_exp_f32 v{vSS+w}, v{vSS+w}")
    a(f"v_mov_b32 v{vA1+2}, s{sT}"); a(f"v_mov_b32 v{vA1+3}, s{sT}")
    a(f"v_mul_f32 v{vA1+1}, v{vSS}, v{vTT}")
    for w in range(1, 4): a(f"v_fmac_f32 v{vA1+1}, v{vSS+w}, v{vTT+w}")
    a("s_mov_b64 exec, 0xf")
    a(f"s_cmp_eq_u32 s{sFAST}, 0"); a("s_cbranch_scc1 L_mlslow")
    a(f"buffer_store_dwordx4 {vr(vA1,4)}, v{vVO}, {sr(rWS,4)}, s{sPM} offen")
    a("L_mldone:")
    a("s_mov_b64 exec, -1")
    a("L_nomlpub:")
    if mlbar: a("s_barrier")
    if fine: stamp()
    while nxt[0] < NT + mpos: issue()
    def mloads(fl, cnt):
        e = vm if cnt else (lambda tag, text: a(text))
        e("m", f"buffer_load_dwordx4 {vr(vW,4)}, v{vGM}, {sr(rWS,4)}, s{sGM} offen {fl}")
        e("m", f"buffer_load_dwordx4 {vr(vW+4,4)}, v{vGM}, {sr(rWS,4)}, s{sGM} offen offset:1024 {fl}")
    mloads(m1, True)
    while nxt[0] < NT + NS: issue()
    wait("m")
    a("L_mchk:")
    a(f"v_xor_b32 v{vT}, s{sT}, v{vW+2}"); a(f"v_xor_b32 v{vT2}, s{sT}, v{vW+6}"); a(f"v_or_b32 v{vT}, v{vT}, v{vT2}")
    a(f"v_cmp_ne_u32 vcc, 0, v{vT}"); a("s_cbranch_vccnz L_mretry")
    a("L_mok:")
    C("row max M and row sum L over all 65536 keys; p = bf16(e * exp(m_wave - M) / L)")
    a(f"v_min_f32 v{vT2}, v{vW}, v{vW+4}")
    allreduce_quad("v_min_f32", vT2); allreduce_rows("v_min_f32", vT2, vT)
    a(f"v_sub_f32 v{vW}, v{vT2}, v{vW}"); a(f"v_sub_f32 v{vW+4}, v{vT2}, v{vW+4}"); a(f"v_sub_f32 v{vNM}, v{vT2}, v{vNM}")
    a(f"v_exp_f32 v{vW}, v{vW}"); a(f"v_exp_f32 v{vW+4}, v{vW+4}"); a(f"v_exp_f32 v{vNM}, v{vNM}")
    a(f"v_mul_f32 v{vLS}, v{vW}, v{vW+1}"); a(f"v_fmac_f32 v{vLS}, v{vW+4}, v{vW+5}")
    allreduce_quad("v_add_f32", vLS); allreduce_rows("v_add_f32", vLS, vT)
    a(f"v_rcp_f32 v{vLS}, v{vLS}")
    a(f"v_mul_f32 v{vNM}, v{vNM}, v{vLS}")
    if fine: stamp()
    C("pass 2: o[head l>>4][d = 8*(l&15) + 4a + r] += p * V  (A operand holds p at element l&3 of row 4*head + (l&3))")
    def pprep(t): a(f"v_mul_f32 v{vS+t}, v{vS+t}, v{vNM}"); a(f"v_cvt_pk_bf16_f32 v{vS+t}, v{vS+t}, v{vS+t}")
    pprep(0)
    for t in range(NT):
        h = NT + t; b = 16*slot[h]
        if t+1 < NT: pprep(t+1)
        for i in range(4):
            a(f"v_and_b32_dpp v{vXX+2*i}, v{vS+t}, v{vM0} quad_perm:[{i},{i},{i},{i}] row_mask:0xf bank_mask:0xf")
            a(f"v_and_b32_dpp v{vXX+2*i+1}, v{vS+t}, v{vM1} quad_perm:[{i},{i},{i},{i}] row_mask:0xf bank_mask:0xf")
        for i in range(4):
            wait((h, i if t == NT-1 else 3))
            a(f"v_mfma_f32_16x16x16_bf16 {vr(vA0,4)}, {vr(vXX+2*i,2)}, {ar(b+4*i,2)}, {'0' if t+i == 0 else vr(vA0,4)}")
            a(f"v_mfma_f32_16x16x16_bf16 {vr(vA1,4)}, {vr(vXX+2*i,2)}, {ar(b+4*i+2,2)}, {'0' if t+i == 0 else vr(vA1,4)}")
        free.append(slot[h])
        depth = nxt[0] - (h+1)
        if nxt[0] < 2*NT and (depth < RV or (t % (vskip+1) == 0)): issue()
        if t == yget:
            a(f"v_lshrrev_b32 v{vT}, 5, v{vL}"); a(f"v_and_b32 v{vT2}, 1, v{vSL}"); a(f"v_lshl_add_u32 v{vT}, v{vT2}, 1, v{vT}")
            a(f"s_and_b32 s{sTMP}, s{sF}, 127"); a(f"s_lshl_b32 s{sTMP}, s{sTMP}, 2"); a(f"v_add_lshl_u32 v{vXO+1}, v{vT}, s{sTMP}, 1")
            a(f"s_cmp_ge_u32 s{sF}, 128"); a("s_cbranch_scc1 L_noyget")
            a(f"global_load_ushort v{vXO}, v{vXO+1}, {sr(sX,2)}")
            a(f"s_lshl_b32 s{sRG}, s{sF}, 4"); a(f"s_add_u32 s{sRG}, s{sRG}, {Y_OFF}")
            for r in range(4): a(f"v_mov_b32 v{vGS+r}, 0")
            a(f"s_mov_b64 exec, {(1<<NRG)-1:#x}")
            a(f"buffer_load_dwordx4 {vr(vGS,4)}, v{vL2K}, {sr(rWS,4)}, s{sRG} offen sc1")
            a("s_mov_b64 exec, -1")
            a("L_noyget:")
            ymark = len(Q); ydone = False
        if t > yget and not ydone and done[0] > ymark:
            ydone = True
            C("final-stage wave: y = sum of the row-group partials, g = bf16(silu(bf16(y))); rows of 16 lanes hold columns (0,2,1,3)")
            a(f"s_cmp_ge_u32 s{sF}, 128"); a("s_cbranch_scc1 L_nog")
            a(f"s_mov_b64 exec, {(1<<NRG)-1:#x}")
            a("L_gchk:")
            for r in range(4): a(f"v_xor_b32 v{vGS+r}, s{sTB+r}, v{vGS+r}")
            a(f"v_or3_b32 v{vT}, v{vGS}, v{vGS+1}, v{vGS+2}"); a(f"v_or_b32 v{vT}, v{vT}, v{vGS+3}"); a(f"v_and_b32 v{vT}, v{vFF}, v{vT}")
            a(f"v_cmp_ne_u32 vcc, 0, v{vT}"); a("s_cbranch_vccnz L_gretry")
            a("L_gok:")
            a("s_mov_b64 exec, -1")
            a(f"v_permlane32_swap_b32 v{vGS}, v{vGS+1}"); a(f"v_permlane32_swap_b32 v{vGS+2}, v{vGS+3}")
            a(f"v_add_f32 v{vGS}, v{vGS}, v{vGS+1}"); a(f"v_add_f32 v{vGS+2}, v{vGS+2}, v{vGS+3}")
            a(f"v_permlane16_swap_b32 v{vGS}, v{vGS+2}"); a(f"v_add_f32 v{vGS}, v{vGS}, v{vGS+2}")
            rowreduce("v_add_f32", (vGS,))
            a(f"v_cvt_pk_bf16_f32 v{vGS}, v{vGS}, v{vGS}"); a(f"v_and_b32 v{vGS}, s{sHI}, v{vGS}")
            a(f"v_mul_f32 v{vT}, {f2u(-L2E):#x}, v{vGS}"); a(f"v_exp_f32 v{vT}, v{vT}"); a(f"v_add_f32 v{vT}, 1.0, v{vT}"); a(f"v_rcp_f32 v{vT}, v{vT}")
            a(f"v_mul_f32 v{vGS}, v{vGS}, v{vT}"); a(f"v_cvt_pk_bf16_f32 v{vGS}, v{vGS}, v{vGS}"); a(f"v_and_b32 v{vGS}, s{sHI}, v{vGS}")
            a(f"v_lshlrev_b32 v{vXO}, 16, v{vXO}")
            a(f"s_lshl_b32 s{sRG}, s{sF}, 4"); a(f"s_add_u32 s{sRG}, s{sRG}, {S_OFF}")
            a("L_nog:")
    assert ydone and nxt[0] == 2*NT
    stamp()
    if notail:
        for k in range(nst[0], nst[0]+4): a(f"s_memrealtime s[{sST+2*k}:{sST+2*k+1}]")
        a("s_branch L_fin")
    C("sum the four waves' partial o and publish it (128 granules of 4 d-values)")
    a(f"ds_write_b128 v{vOAW}, {vr(vA0,4)} offset:{L_OA}"); a(f"ds_write_b128 v{vOAW1}, {vr(vA1,4)} offset:{L_OA}")
    a("s_waitcnt lgkmcnt(0)")
    a("s_barrier")
    a(f"s_cmp_ge_u32 s{sW}, 2"); a("s_cbranch_scc1 L_pubdone")
    for w in range(4): a(f"ds_read_b128 {vr(vQ+4*w,4)}, v{vOAR} offset:{L_OA+2048*w}")
    a(f"s_cmp_eq_u32 s{sFAST}, 0")
    a("s_waitcnt lgkmcnt(2)")
    for r in range(4): a(f"v_add_f32 v{vQ+r}, v{vQ+r}, v{vQ+4+r}")
    a("s_waitcnt lgkmcnt(1)")
    for r in range(4): a(f"v_add_f32 v{vQ+r}, v{vQ+r}, v{vQ+8+r}")
    a("s_waitcnt lgkmcnt(0)")
    for r in range(4): a(f"v_add_f32 v{vQ+r}, v{vQ+r}, v{vQ+12+r}")
    for r in range(4): a(f"v_bfi_b32 v{vA0+r}, v{vFF}, s{sTB+r}, v{vQ+r}")
    a("s_cbranch_scc1 L_pubslow")
    a(f"buffer_store_dwordx4 {vr(vA0,4)}, v{vVO}, {sr(rWS,4)}, s{sPP} offen")
    a("L_pubdone:")
    stamp()
    C("gather 4 heads x 4 d-values from the 32 splits, multiply with the wo tile (16 rows x 128 columns per wave)")
    O0, O1 = vW, vW+4
    a("L_apoll:")
    a(f"buffer_load_dwordx4 {vr(O0,4)}, v{vGO}, {sr(rWS,4)}, s{sGO0} offen sc1")
    a(f"buffer_load_dwordx4 {vr(O1,4)}, v{vGO}, {sr(rWS,4)}, s{sGO1} offen sc1")
    a("s_waitcnt vmcnt(1)")
    for i in range(4): a(f"v_xor_b32 v{O0+i}, s{sTB+i}, v{O0+i}")
    a(f"v_or3_b32 v{vT}, v{O0}, v{O0+1}, v{O0+2}")
    a("s_waitcnt vmcnt(0)")
    for i in range(4): a(f"v_xor_b32 v{O1+i}, s{sTB+i}, v{O1+i}")
    a(f"v_or3_b32 v{vT}, v{vT}, v{O0+3}, v{O1}"); a(f"v_or3_b32 v{vT2}, v{O1+1}, v{O1+2}, v{O1+3}")
    a(f"v_or_b32 v{vT}, v{vT}, v{vT2}"); a(f"v_and_b32 v{vT}, v{vFF}, v{vT}")
    a(f"v_cmp_ne_u32 vcc, 0, v{vT}"); a("s_cbranch_vccz L_aok")
    a("s_mov_b64 exec, vcc")
    if pa: a(f"s_sleep {pa}")
    timeout("L_apoll")
    a("L_aok:")
    a("s_mov_b64 exec, -1")
    stamp()
    for r in range(4): a(f"v_add_f32 v{O0+r}, v{O0+r}, v{O1+r}")
    rowreduce("v_add_f32", [O0+r for r in range(4)])
    for r in range(4): a(f"v_cvt_pk_bf16_f32 v{O0+r}, v{O0+r}, v{O0+r}")
    for r in range(4):
        for t in range(4): a(f"v_and_b32 v{vQ+4*r+t}, v{O0+r}, v{vMK+t}")
        if r > 0: a(f"v_mfma_f32_16x16x32_bf16 {vr(vA0,4)}, {vr(vQ+4*(r-1),4)}, {vr(vWO+4*(r-1),4)}, {'0' if r == 1 else vr(vA0,4)}")
    a(f"v_mfma_f32_16x16x32_bf16 {vr(vA0,4)}, {vr(vQ+12,4)}, {vr(vWO+12,4)}, {vr(vA0,4)}")
    a("s_mov_b32 exec_hi, 0")
    a(f"ds_write_b128 v{vSRW}, {vr(vA0,4)} offset:{L_SR}")
    a("s_waitcnt lgkmcnt(0)")
    a("s_barrier")
    a(f"s_cmp_lg_u32 s{sW}, 0"); a("s_cbranch_scc1 L_nopub")
    for w in range(4): a(f"ds_read_b128 {vr(vQ+4*w,4)}, v{vVO} offset:{L_SR+512*w}")
    a("s_waitcnt lgkmcnt(2)")
    for r in range(4): a(f"v_add_f32 v{vQ+r}, v{vQ+r}, v{vQ+4+r}")
    a("s_waitcnt lgkmcnt(1)")
    for r in range(4): a(f"v_add_f32 v{vQ+r}, v{vQ+r}, v{vQ+8+r}")
    a("s_waitcnt lgkmcnt(0)")
    for r in range(4): a(f"v_add_f32 v{vQ+r}, v{vQ+r}, v{vQ+12+r}")
    for r in range(4): a(f"v_bfi_b32 v{vQ+r}, v{vFF}, s{sTB+r}, v{vQ+r}")
    a(f"s_not_b32 exec_lo, s{sLOC}")
    a(f"buffer_store_dwordx4 {vr(vQ,4)}, v{vVO}, {sr(rWS,4)}, s{sPS} offen sc1")
    a(f"s_cmp_eq_u32 s{sLOC}, 0"); a("s_cbranch_scc1 L_nopub")
    a(f"s_mov_b32 exec_lo, s{sLOC}")
    a(f"buffer_store_dwordx4 {vr(vQ,4)}, v{vVO}, {sr(rWS,4)}, s{sPS} offen")
    a("L_nopub:")
    if fine: stamp()
    a("s_mov_b64 exec, -1")
    a(f"s_cmp_ge_u32 s{sF}, 128"); a("s_cbranch_scc1 L_fin")
    C("final stage: s = sum of 64 partials, out = bf16(x + bf16(bf16(s) * g))")
    if bdelay: a(f"s_sleep {bdelay}")
    a("L_bpoll:")
    a(f"buffer_load_dwordx4 {vr(vSS,4)}, v{vL2K}, {sr(rWS,4)}, s{sRG} offen sc1")
    a("s_waitcnt vmcnt(0)")
    for r in range(4): a(f"v_xor_b32 v{vSS+r}, s{sTB+r}, v{vSS+r}")
    a(f"v_or3_b32 v{vT}, v{vSS}, v{vSS+1}, v{vSS+2}"); a(f"v_or_b32 v{vT}, v{vT}, v{vSS+3}"); a(f"v_and_b32 v{vT}, v{vFF}, v{vT}")
    a(f"v_cmp_ne_u32 vcc, 0, v{vT}"); a("s_cbranch_vccz L_bok")
    a("s_mov_b64 exec, vcc")
    if pb: a(f"s_sleep {pb}")
    timeout("L_bpoll")
    a("L_bok:")
    a("s_mov_b64 exec, -1")
    a(f"v_permlane32_swap_b32 v{vSS}, v{vSS+1}"); a(f"v_permlane32_swap_b32 v{vSS+2}, v{vSS+3}")
    a(f"v_add_f32 v{vSS}, v{vSS}, v{vSS+1}"); a(f"v_add_f32 v{vSS+2}, v{vSS+2}, v{vSS+3}")
    a(f"v_permlane16_swap_b32 v{vSS}, v{vSS+2}"); a(f"v_add_f32 v{vSS}, v{vSS}, v{vSS+2}")
    rowreduce("v_add_f32", (vSS,))
    a(f"v_cvt_pk_bf16_f32 v{vSS}, v{vSS}, v{vSS}"); a(f"v_and_b32 v{vSS}, s{sHI}, v{vSS}")
    a(f"v_mul_f32 v{vSS}, v{vSS}, v{vGS}")
    a(f"v_cvt_pk_bf16_f32 v{vSS}, v{vSS}, v{vSS}"); a(f"v_and_b32 v{vSS}, s{sHI}, v{vSS}")
    a(f"v_add_f32 v{vSS}, v{vSS}, v{vXO}")
    a(f"v_cvt_pk_bf16_f32 v{vSS}, v{vSS}, v{vSS}")
    a("s_mov_b32 exec_lo, 0x00010001"); a("s_mov_b32 exec_hi, 0x00010001")
    a(f"global_store_short v{vXO+1}, v{vSS}, {sr(sOUT,2)}")
    C("every workgroup has read the epoch word by now (all of them fed this sum): advance it")
    a(f"s_cmp_lg_u32 s{sF}, 0"); a("s_cbranch_scc1 L_fin")
    a("s_mov_b64 exec, 1")
    a(f"v_mov_b32 v{vT}, s{sT}"); a(f"s_mov_b32 s{sTMP}, {E_OFF}")
    a(f"buffer_store_dword v{vT}, v{vVO}, {sr(rWS,4)}, s{sTMP} offen sc1")
    a("L_fin:")
    if stamps:
        a("s_memrealtime s[100:101]")
        a("s_mov_b64 exec, -1")
        a("s_waitcnt lgkmcnt(0)")
        for i in range(nst[0]): a(f"v_writelane_b32 v{vTS}, s{sST+2*i}, {i}")
        a(f"v_writelane_b32 v{vTS}, s100, {nst[0]}")
        a(f"v_writelane_b32 v{vTS}, s{sTMO}, 15"); a(f"v_writelane_b32 v{vTS}, s{sFAST}, 14")
        a(f"s_lshl_b32 s{sTMP}, s2, 2"); a(f"s_add_u32 s{sTMP}, s{sTMP}, s{sW}"); a(f"s_lshl_b32 s{sTMP}, s{sTMP}, 8"); a(f"s_add_u32 s{sTMP}, s{sTMP}, {ST_OFF}")
        a(f"v_lshlrev_b32 v{vTT}, 2, v{vL}")
        a(f"buffer_store_dword v{vTS}, v{vTT}, {sr(rWS,4)}, s{sTMP} offen")
    a("L_done:")
    a("s_endpgm")
    C("out of line: write-through publishing and re-polls")
    a("L_pubslow:")
    a(f"buffer_store_dwordx4 {vr(vA0,4)}, v{vVO}, {sr(rWS,4)}, s{sPP} offen sc1")
    a("s_branch L_pubdone")
    if yfull:
        a("L_yslow:")
        a(f"buffer_store_dwordx4 {vr(vW,4)}, v{vVO}, {sr(rWS,4)}, s{sTMP} offen sc1")
        a("s_branch L_ydone")
    a("L_mlslow:")
    a(f"buffer_store_dwordx4 {vr(vA1,4)}, v{vVO}, {sr(rWS,4)}, s{sPM} offen sc1")
    a("s_branch L_mldone")
    def retry(lbl, ok, chk, loads):
        a(f"{lbl}:")
        a(f"s_sub_u32 s{sTMO}, s{sTMO}, 1"); a(f"s_cmp_le_i32 s{sTMO}, 0"); a(f"s_cbranch_scc1 {ok}")
        loads(); a("s_waitcnt vmcnt(0)"); a(f"s_branch {chk}")
    retry("L_qretry", "L_qok", "L_qchk", lambda: qloads("sc1", False))
    retry("L_mretry", "L_mok", "L_mchk", lambda: mloads("sc1", False))
    retry("L_gretry", "L_gok", "L_gchk", lambda: a(f"buffer_load_dwordx4 {vr(vGS,4)}, v{vL2K}, {sr(rWS,4)}, s{sRG} offen sc1"))
    body = a.finish()
    txt = HEADER + f"; @launch grid=(256,1,1) block=(256,1,1) lds={lds}\n"
    txt += f'.amdgcn_target "amdgcn-amd-amdhsa--gfx950"\n.text\n.globl {NAME}_kernel\n.p2align 8\n.type {NAME}_kernel,@function\n'
    txt += body + "L_codeend:\n"
    txt += f'''.section .rodata,"a"
.p2align 6
.amdhsa_kernel {NAME}_kernel
  .amdhsa_next_free_vgpr {NV + 16*NS}
  .amdhsa_next_free_sgpr 102
  .amdhsa_accum_offset {NV}
  .amdhsa_group_segment_fixed_size 0
  .amdhsa_kernarg_size 96
  .amdhsa_user_sgpr_count 2
  .amdhsa_user_sgpr_kernarg_segment_ptr 1
  .amdhsa_system_sgpr_workgroup_id_x 1
  .amdhsa_float_denorm_mode_32 3
.end_amdhsa_kernel
'''
    return txt

if __name__ == "__main__":
    kw = {}
    for x in sys.argv[2:]:
        k, v = x.split("=", 1)
        try: v = eval(v)
        except Exception: pass
        kw[k] = v
    open(sys.argv[1], "w").write(gen(**kw))
```

```python
import sys, struct
from asmlib import Asm
NAME = "recurrent_scan__gqa_block_cached__glu_gated_glu__decode"
def f2u(x): return struct.unpack("<I", struct.pack("<f", x))[0]
HEADER = open("cdna_kernels/%s.s.ref" % NAME).read().split("; Override launch")[0]
L2E = 1.4426950408889634

def gen(NS=16, RD=6, RV=8, pre=4, qpos=10, mpos=9, lds=20480, kvflags="nt", wflags="nt", wsbase=0, stamps=False,
        codepf=True, tmo=1<<16, q1="", m1="", yget=18, xget=18, tstamps=False, notail=False,
        pa=0, pb=0, bdelay=0, kseq="h"*8+"rh"*12, vseq="cccc"+"sc"*10+"c"*8, fine=False, force=None, win=0, winlo=16, winhi=58,
        kskip=3, vskip=2, comment=True, pbar=True, yt=4, abits=4, yfull=True, amp=None, pfearly=False):
    mlbar = ybar = True; stprobe = False; dw1 = None; ypub = -1
    NT = 32
    a = Asm()
    def C(text):
        if comment: a("; " + text)
    E_OFF, A1_OFF, Y_OFF, ML_OFF, X_OFF, S_OFF, P_OFF, ST_OFF = [wsbase + x for x in (0, 0x1000, 0x10000, 0x20000, 0x30000, 0x40000, 0x80000, 0x100000)]
    WS_BYTES = 0x20000000
    L_S1, L_Y, L_CNT, L_ML, L_OA, L_SR, L_Q = 0, 2048, 4096, 4224, 4608, 12800, 14848
    assert L_Q + 4096 <= lds
    HALF = 7680*4
    sX, sWQ, sWO, sG, sU, sDN, sOUT, sWS = 4, 10, 12, 16, 18, 20, 22, 26
    rK, rV, rW1, rWS, rDN = 28, 32, 36, 40, 44
    sW, sKVH, sJ, sOF, sOF0, sCB, sSTR, sT, sTMP, sTMP2 = 48, 49, 50, 51, 52, 53, 54, 55, 56, 57
    sTLO, sTHI, sSC, sL2E = 60, 61, 62, 63
    sTB = 64
    sHI, sTMO, sCOL, sRG, sF, sPP, sPM, sPS = 68, 70, 72, 73, 74, 75, 76, 77
    sPC = 78
    sDG, sM1, sM2, sM3, sMO = 14, 16, 18, 10, 6
    sGO0, sGO1, sGM = 24, 25, 3
    sFAST, sXV, sLOC = 58, 59, 69
    sST = 80
    sTN = (8, 9, 71, 79)
    AM = (1 << abits) - 1
    vL, vKO, vVO, vM0, vM1, vNM, vLS, vT = 0, 1, 2, 3, 4, 5, 6, 7
    vA0, vA1, vSS, vTT, vXX, vQ = 8, 12, 16, 20, 24, 32
    vSL, vE, vBK, vN, vFF, vOAW, vOAR, vMLW, vMLR, vGO, vGM, vSRW, vL2K, vWOO, vDGA, vT2 = range(48, 64)
    vW, vD, vGU0, vWO, vMK, vGS, vXO, vF = 64, 96, 104, 108, 124, 128, 132, 136
    vTS, vVW, vKH, vXG, vQH, vS, vOAW1, vTA, vTB_ = 144, 145, 146, 147, 148, 156, 188, 189, 190
    NV = 192
    vGU = vF
    def vr(b, n): return f"v[{b}:{b+n-1}]"
    def ar(b, n): return f"a[{b}:{b+n-1}]"
    def sr(b, n): return f"s[{b}:{b+n-1}]"
    nst = [0]
    def stamp():
        if stamps:
            a(f"s_memrealtime s[{sST+2*nst[0]}:{sST+2*nst[0]+1}]"); nst[0] += 1
    Q = []; done = [0]
    def vm(tag, text): a(text); Q.append(tag)
    def wait(tag):
        idx = max(i for i, t in enumerate(Q) if t == tag)
        if idx < done[0]: return
        n = min(len(Q) - 1 - idx, 63)
        a(f"s_waitcnt vmcnt({n})"); done[0] = len(Q) - n
    def allreduce_rows(op, v, t):
        a(f"v_mov_b32 v{t}, v{v}"); a(f"v_permlane16_swap_b32 v{v}, v{t}"); a(f"{op} v{v}, v{v}, v{t}")
        a(f"v_mov_b32 v{t}, v{v}"); a(f"v_permlane32_swap_b32 v{v}, v{t}"); a(f"{op} v{v}, v{v}, v{t}")
    def allreduce_quad(op, v):
        for qp in ("[1,0,3,2]", "[2,3,0,1]"): a(f"{op}_dpp v{v}, v{v}, v{v} quad_perm:{qp} row_mask:0xf bank_mask:0xf")
    def rowreduce(op, vs, steps=(8, 4, 2, 1)):
        for st in steps:
            for v in vs: a(f"{op}_dpp v{v}, v{v}, v{v} row_ror:{st} row_mask:0xf bank_mask:0xf")
    def unpack(dst, src, n):
        for i in range(n):
            a(f"v_lshlrev_b32 v{dst+2*i}, 16, v{src+i}"); a(f"v_and_b32 v{dst+2*i+1}, s{sHI}, v{src+i}")
    def sel4(dst, x0, x1, x2, x3):
        a(f"v_cndmask_b32 v{dst}, v{x0}, v{x1}, {sr(sM1,2)}"); a(f"v_cndmask_b32 v{dst}, v{dst}, v{x2}, {sr(sM2,2)}"); a(f"v_cndmask_b32 v{dst}, v{dst}, v{x3}, {sr(sM3,2)}")
    free = list(range(NS)); slot = {}; nxt = [0]
    def issue():
        h = nxt[0]; nxt[0] += 1
        s = slot[h] = free.pop(0); b = 16*s
        pat = (kseq + vseq)[h]
        if h == NT: a(f"s_mov_b32 s{sOF}, s{sOF0}")
        for i in range(4):
            if win and winlo <= h < winhi:
                a(f"s_waitcnt vmcnt({win-1})"); done[0] = max(done[0], len(Q) - (win-1))
            if pat == "r": vm((h, i), f"buffer_load_dwordx4 {ar(b+4*i,4)}, v{vKO}, {sr(rK,4)}, s{sOF} offen offset:{64*i} {kvflags}")
            elif pat == "h": vm((h, i), f"buffer_load_dwordx4 {ar(b+4*i,4)}, v{vKH}, {sr(rK,4)}, s{sOF} offen offset:{2048*(i>>1)+128*(i&1)} {kvflags}")
            elif pat == "c": vm((h, i), f"buffer_load_dwordx4 {ar(b+4*i,4)}, v{vVW}, {sr(rV,4)}, s{sOF} offen offset:{1024*i} {kvflags}")
            else:
                for k in range(2): vm((h, i), f"buffer_load_dwordx2 {ar(b+4*i+2*k,2)}, v{vVW}, {sr(rV,4)}, s{sOF} offen offset:{1024*i+8*k} {kvflags}")
        if h % NT < NT-1: a(f"s_add_u32 s{sOF}, s{sOF}, 0x4000")
        if tstamps and h % 2 == 1:
            a("s_memrealtime s[100:101]"); a("s_waitcnt lgkmcnt(0)"); a(f"v_writelane_b32 v{vTS}, s100, {16+h//2}")
        if h == 2*NT-1: woloads()
    def gemv(vAop, vB, n, tag):
        for i in range(n):
            wait((tag, i))
            c0 = "0" if i == 0 else vr(vA0,4); c1 = "0" if i == 0 else vr(vA1,4)
            a(f"v_mfma_f32_16x16x16_bf16 {vr(vA0,4)}, {vr(vAop+2*i,2)}, {vr(vB+4*i,2)}, {c0}")
            a(f"v_mfma_f32_16x16x16_bf16 {vr(vA1,4)}, {vr(vAop+2*i,2)}, {vr(vB+4*i+2,2)}, {c1}")
    def gemv_store(base):
        a(f"s_mov_b64 exec, {sr(sDG,2)}")
        a(f"ds_write_b128 v{vDGA}, {vr(vA0,4)} offset:{base}"); a(f"ds_write_b128 v{vDGA}, {vr(vA1,4)} offset:{base+16}")
        a("s_mov_b64 exec, -1")
    def gemv_reduce(base, tmp, fold=True):
        for p in range(8): a(f"ds_read_b128 {vr(tmp+4*p,4)}, v{vVO} offset:{base+256*p}")
        for step in (16, 8, 4):
            if step == 16: a("s_waitcnt lgkmcnt(0)")
            for r in range(step): a(f"v_add_f32 v{tmp+r}, v{tmp+r}, v{tmp+step+r}")
        if fold: rowreduce("v_add_f32", [tmp+r for r in range(4)], (8,))
    def timeout(lbl):
        a(f"s_sub_u32 s{sTMO}, s{sTMO}, 1"); a(f"s_cmp_gt_i32 s{sTMO}, 0"); a(f"s_cbranch_scc1 {lbl}")
    def woloads():
        for r in range(4): vm("wo", f"buffer_load_dwordx4 {vr(vWO+4*r,4)}, v{vWOO}, {sr(rDN,4)}, s{sCB} offen offset:{1024*r} {wflags}")

    def pfcode():
        if not codepf: return
        C("pull this kernel's code into L2 (each workgroup touches 8 lines)")
        a(f"s_getpc_b64 {sr(sPC,2)}")
        a("L_pc:")
        a(f"v_and_b32 v{vA0}, 7, v0"); a(f"v_lshl_add_u32 v{vA0}, s{sJ}, 3, v{vA0}"); a(f"v_lshlrev_b32 v{vA0}, 7, v{vA0}")
        a(f"v_min_u32 v{vA0}, L_codeend-L_pc-4, v{vA0}")
        vm("pf", f"global_load_dword v{vA0+1}, v{vA0}, {sr(sPC,2)}")
    a(f"{NAME}_kernel:")
    if amp: a("s_memrealtime s[96:97]")
    stamp()
    C("workgroup wg: kv head = wg&7, key split j = wg>>3 (2048 keys); wave w takes 16-key tiles w, w+4, ...")
    a(f"s_load_dwordx2 {sr(rK,2)}, s[0:1], 8"); a(f"s_load_dwordx2 {sr(rV,2)}, s[0:1], 16")
    a("s_load_dwordx16 s[4:19], s[0:1], 0"); a("s_load_dwordx8 s[20:27], s[0:1], 64")
    a("s_cmpk_ge_u32 s2, 256"); a("s_cbranch_scc1 L_done")
    a(f"s_and_b32 s{sKVH}, s2, 7"); a(f"s_lshr_b32 s{sJ}, s2, 3")
    if pfearly: pfcode()
    a(f"s_lshl_b32 s{sOF}, s{sKVH}, 24"); a(f"s_lshl_b32 s{sTMP}, s{sJ}, 19"); a(f"s_or_b32 s{sOF}, s{sOF}, s{sTMP}"); a(f"s_mov_b32 s{sOF0}, s{sOF}")
    a(f"v_lshrrev_b32 v{vT2}, 6, v0"); a(f"v_and_b32 v{vL}, 63, v0")
    a(f"v_lshrrev_b32 v{vSL}, 4, v{vL}"); a(f"v_bfe_u32 v{vBK}, v{vL}, 2, 2")
    a(f"v_lshlrev_b32 v{vT}, 12, v{vT2}"); a(f"v_lshl_add_u32 v{vT}, v{vSL}, 4, v{vT}"); a(f"v_lshl_add_u32 v{vT}, v{vBK}, 8, v{vT}")
    a(f"v_and_b32 v{vKH}, 1, v{vL}"); a(f"v_lshl_add_u32 v{vKH}, v{vKH}, 6, v{vT}"); a(f"v_and_b32 v{vE}, 2, v{vL}"); a(f"v_lshl_add_u32 v{vKH}, v{vE}, 9, v{vKH}")
    a(f"s_lshl_b32 s{rK+2}, 1, 27"); a(f"s_mov_b32 s{rK+3}, 0x20000")
    assert kseq[0] == "h"
    a("s_waitcnt lgkmcnt(0)"); stamp()
    issue()
    a(f"v_readfirstlane_b32 s{sW}, v{vT2}")
    a(f"s_lshl_b32 s{rV+2}, 1, 27"); a(f"s_mov_b32 s{rV+3}, 0x20000")
    a(f"v_and_b32 v{vE}, 3, v{vL}"); a(f"v_and_b32 v{vN}, 15, v{vL}")
    a(f"v_lshl_add_u32 v{vKO}, v{vE}, 10, v{vT}")
    a(f"v_lshlrev_b32 v{vVO}, 4, v{vL}"); a(f"v_lshl_add_u32 v{vVW}, v{vT2}, 12, v{vVO}")
    if not pfearly: pfcode()
    C("stage 1: xn @ [wq | w_gate | w_up]: 120 blocks of 64 columns x 2 row halves; cb = (wg&7)*30 + j for j < 30, block cb>>1, half cb&1")
    a(f"s_mul_i32 s{sCB}, s{sKVH}, 30"); a(f"s_add_u32 s{sCB}, s{sCB}, s{sJ}")
    a(f"s_movk_i32 s{sCOL}, 184"); a(f"s_cmp_lt_u32 s{sCB}, s{sCOL}"); a(f"s_cselect_b32 s{sCOL}, 128, s{sCOL}")
    a(f"s_cselect_b64 {sr(rW1,2)}, {sr(sG,2)}, {sr(sU,2)}")
    a(f"s_cmp_lt_u32 s{sCB}, 128"); a(f"s_cselect_b32 s{sCOL}, 0, s{sCOL}")
    a(f"s_cselect_b64 {sr(rW1,2)}, {sr(sWQ,2)}, {sr(rW1,2)}")
    a(f"s_movk_i32 s{sSTR}, 3584"); a(f"s_cselect_b32 s{sSTR}, 8192, s{sSTR}")
    a(f"s_sub_u32 s{sCOL}, s{sCB}, s{sCOL}"); a(f"s_lshr_b32 s{sCOL}, s{sCOL}, 1"); a(f"s_lshl_b32 s{sCOL}, s{sCOL}, 7")
    a(f"s_and_b32 s{sTMP2}, s{sCB}, 1"); a(f"s_lshl_b32 s{sTMP2}, s{sTMP2}, 2"); a(f"s_add_u32 s{sTMP2}, s{sTMP2}, s{sW}"); a(f"s_lshl_b32 s{sTMP2}, s{sTMP2}, 6")
    a(f"s_mul_i32 s{sTMP}, s{sTMP2}, s{sSTR}"); a(f"s_add_u32 s{sCOL}, s{sCOL}, s{sTMP}")
    a(f"v_lshrrev_b32 v{vT}, 3, v{vL}")
    a(f"s_lshl_b32 s{sTMP2}, s{sTMP2}, 1"); a(f"v_lshl_add_u32 v{vGO}, v{vT}, 4, s{sTMP2}")
    a(f"s_lshl_b32 s{sTMP}, s{sSTR}, 3")
    a(f"v_mul_u32_u24 v{vGM}, s{sTMP}, v{vT}"); a(f"v_and_b32 v{vT}, 7, v{vL}"); a(f"v_lshl_add_u32 v{vGM}, v{vT}, 4, v{vGM}")
    if dw1 == "full":
        a(f"v_lshrrev_b32 v{vT}, 3, v{vL}"); a(f"v_mul_u32_u24 v{vGM}, s{sTMP}, v{vT}"); a(f"v_and_b32 v{vT}, 7, v{vL}"); a(f"v_lshl_add_u32 v{vGM}, v{vT}, 4, v{vGM}")
        a(f"s_and_b32 s{sTMP}, s{sCOL}, 64"); a(f"s_sub_u32 s{sCOL}, s{sCOL}, s{sTMP}"); a(f"s_mul_i32 s{sTMP}, s{sTMP}, s{sSTR}"); a(f"s_add_u32 s{sCOL}, s{sCOL}, s{sTMP}")
    if dw1 == "consec":
        a(f"v_lshrrev_b32 v{vT}, 2, v{vL}"); a(f"v_mul_u32_u24 v{vGM}, s{sSTR}, v{vT}"); a(f"v_lshl_add_u32 v{vGM}, v{vE}, 4, v{vGM}")
    a(f"v_mov_b32 v{vNM}, {E_OFF}")
    a(f"s_mov_b32 s{rW1+3}, 0x20000")
    a(f"s_lshl_b32 s{rW1+2}, s{sSTR}, 9"); a(f"s_cmp_lt_u32 s{sJ}, 30"); a(f"s_cselect_b32 s{rW1+2}, s{rW1+2}, 0")
    if dw1 == "none": a(f"s_min_u32 s{rW1+2}, s{rW1+2}, 1")
    if dw1 == "consec": a(f"s_lshl_b32 s{sSTR}, s{sSTR}, 4")
    vm("x", f"global_load_dword v{vNM}, v{vNM}, {sr(sWS,2)} sc1")
    vm("x", f"global_load_dwordx4 {vr(vSS,4)}, v{vVO}, {sr(sX,2)}")
    vm("x", f"global_load_dwordx4 {vr(vTT,4)}, v{vGO}, {sr(sX,2)}")
    for i in range(8):
        vm(("w1", i), f"buffer_load_dwordx4 {vr(vW+4*i,4)}, v{vGM}, {sr(rW1,4)}, s{sCOL} offen {wflags}")
        if i < 7: a(f"s_add_u32 s{sCOL}, s{sCOL}, s{sSTR}")
    issue()
    for k, m in ((sM1, 0x22222222), (sM2, 0x44444444), (sM3, 0x88888888), (sMO, 0xaaaaaaaa)):
        a(f"s_mov_b32 s{k}, {m:#x}"); a(f"s_mov_b32 s{k+1}, s{k}")
    a(f"s_mov_b32 s{sHI}, 0xffff0000"); a(f"s_mov_b32 s{sSC}, {f2u(128**-0.5):#x}"); a(f"s_mov_b32 s{sL2E}, {f2u(L2E):#x}")
    a(f"s_mov_b32 s{sTMO}, {tmo}")
    a(f"s_mov_b64 {sr(rWS,2)}, {sr(sWS,2)}"); a(f"s_mov_b32 s{rWS+2}, {WS_BYTES:#x}"); a(f"s_mov_b32 s{rWS+3}, 0x20000")
    a(f"s_mov_b32 s{sDG}, 0x00f0000f"); a(f"s_mov_b32 s{sDG+1}, 0xf0000f00")
    C("masks that place one bf16 at element l&3 (K=16 MFMA) / l&7 (K=32 MFMA) of an A operand")
    a(f"v_and_b32 v{vT}, 1, v{vL}"); a(f"v_lshlrev_b32 v{vT}, 4, v{vT}"); a(f"v_mov_b32 v{vM1}, 0xffff")
    wait("x")
    a(f"v_lshlrev_b32 v{vT2}, v{vT}, v{vM1}")
    a(f"v_cmp_gt_u32 vcc, 2, v{vE}"); a(f"v_cndmask_b32 v{vM0}, 0, v{vT2}, vcc"); a(f"v_xor_b32 v{vM1}, v{vT2}, v{vM0}")
    a(f"v_bfe_u32 v{vT}, v{vL}, 1, 2")
    for t in range(4):
        a(f"v_cmp_eq_u32 vcc, {t}, v{vT}"); a(f"v_cndmask_b32 v{vMK+t}, 0, v{vT2}, vcc")
    a(f"v_readfirstlane_b32 s{sT}, v{vNM}")
    C("LayerNorm (bf16 rounding after every step, as the reference does)")
    F = vF
    unpack(F, vSS, 4)
    a(f"v_add_f32 v{vA0}, v{F}, v{F+1}")
    for i in range(2, 8): a(f"v_add_f32 v{vA0}, v{vA0}, v{F+i}")
    rowreduce("v_add_f32", (vA0,)); allreduce_rows("v_add_f32", vA0, vT)
    a(f"v_mul_f32 v{vA0}, {f2u(1/512):#x}, v{vA0}")
    for i in range(8): a(f"v_sub_f32 v{F+i}, v{F+i}, v{vA0}")
    a(f"v_mul_f32 v{vA1}, v{F}, v{F}")
    for i in range(1, 8): a(f"v_fmac_f32 v{vA1}, v{F+i}, v{F+i}")
    rowreduce("v_add_f32", (vA1,)); allreduce_rows("v_add_f32", vA1, vT)
    a(f"v_mul_f32 v{vA1}, {f2u(1/512):#x}, v{vA1}")
    a(f"v_cvt_pk_bf16_f32 v{vA0}, v{vA0}, v{vA1}")
    a(f"v_and_b32 v{vA1}, s{sHI}, v{vA0}"); a(f"v_lshlrev_b32 v{vA0}, 16, v{vA0}")
    a(f"v_add_f32 v{vA1}, {f2u(1e-5):#x}, v{vA1}")
    a(f"v_cvt_pk_bf16_f32 v{vA1}, v{vA1}, v{vA1}"); a(f"v_and_b32 v{vA1}, s{sHI}, v{vA1}")
    a(f"v_sqrt_f32 v{vA1}, v{vA1}")
    a(f"v_cvt_pk_bf16_f32 v{vA1}, v{vA1}, v{vA1}"); a(f"v_and_b32 v{vA1}, s{sHI}, v{vA1}")
    a(f"v_rcp_f32 v{vA1}, v{vA1}")
    unpack(F, vTT, 4)
    for i in range(8): a(f"v_sub_f32 v{F+i}, v{F+i}, v{vA0}")
    for i in range(4): a(f"v_cvt_pk_bf16_f32 v{vTT+i}, v{F+2*i}, v{F+2*i+1}")
    unpack(F, vTT, 4)
    for i in range(8): a(f"v_mul_f32 v{F+i}, v{F+i}, v{vA1}")
    for i in range(8): a(f"v_cvt_pk_bf16_f32 v{F+i}, v{F+i}, v{F+i}")
    for i in range(8):
        for t in range(4): a(f"v_and_b32 v{vS+4*i+t}, v{F+i}, v{vMK+t}")
    while nxt[0] < pre: issue()
    C("stage-1 GEMV: 64 rows x 64 columns per wave")
    for i in range(8):
        wait(("w1", i))
        a(f"v_mfma_f32_16x16x32_bf16 {vr(vA0,4)}, {vr(vS+4*i,4)}, {vr(vW+4*i,4)}, {'0' if i == 0 else vr(vA0,4)}")
    C("hand-off tag of this launch = epoch word + 0x01010101 (every byte differs from the previous launch's tag)")
    a(f"s_add_u32 s{sT}, s{sT}, 0x01010101")
    for k in range(4): a(f"s_bfe_u32 s{sTB+k}, s{sT}, {(8<<16)|(8*k):#x}")
    for k in range(4): a(f"s_and_b32 s{sTN[k]}, s{sTB+k}, {AM}")
    a(f"s_lshl_b32 s{sTMP}, s{sW}, 9"); a(f"v_lshl_add_u32 v{vDGA}, v{vSL}, 7, s{sTMP}"); a(f"v_lshl_add_u32 v{vDGA}, v{vE}, 5, v{vDGA}")
    a(f"v_mov_b32 v{vFF}, 0xff")
    C("lanes with (l>>5) == ((l>>3)&1) hold columns 8*(l&7) + 4*((l>>4)&1) + r of row group l>>5")
    a(f"v_and_b32 v{vT}, 7, v{vL}"); a(f"v_lshl_add_u32 v{vT}, v{vT}, 5, s{sTMP}"); a(f"v_and_b32 v{vT2}, 16, v{vL}"); a(f"v_add_u32 v{vT}, v{vT}, v{vT2}")
    a(f"v_and_b32 v{vT2}, 32, v{vL}"); a(f"v_lshl_add_u32 v{vT}, v{vT2}, 3, v{vT}")
    if yfull: a(f"v_mov_b32 v{vDGA}, v{vT}")
    a("s_mov_b32 exec_lo, 0x00ff00ff"); a("s_mov_b32 exec_hi, 0xff00ff00")
    a(f"ds_write_b128 v{vT}, {vr(vA0,4)} offset:{L_S1}")
    a("s_mov_b64 exec, -1")
    a("s_waitcnt lgkmcnt(0)")
    a("s_barrier")
    a(f"s_cmp_lg_u32 s{sW}, 0"); a("s_cbranch_scc1 L_pub1_done")
    a(f"s_cmp_eq_u32 s{rW1+2}, 0"); a("s_cbranch_scc1 L_pub1_done")
    a("s_mov_b64 exec, 0xffff")
    a(f"s_lshr_b32 s{sTMP}, s{sCB}, 1"); a(f"s_lshl_b32 s{sTMP}, s{sTMP}, 8"); a(f"s_and_b32 s{sTMP2}, s{sCB}, 1"); a(f"s_mul_i32 s{sTMP2}, s{sTMP2}, {HALF}")
    a(f"s_add_u32 s{sTMP}, s{sTMP}, s{sTMP2}"); a(f"s_add_u32 s{sTMP}, s{sTMP}, {A1_OFF}")
    gemv_reduce(L_S1, vW, False)
    a(f"v_mov_b32 v{vT}, {AM}")
    for r in range(4): a(f"v_add_u32 v{vW+r}, {(AM+1)//2}, v{vW+r}")
    for r in range(4): a(f"v_bfi_b32 v{vA0+r}, v{vT}, s{sTB+r}, v{vW+r}")
    a(f"buffer_store_dwordx4 {vr(vA0,4)}, v{vVO}, {sr(rWS,4)}, s{sTMP} offen sc1")
    a("s_mov_b64 exec, -1")
    a("L_pub1_done:")
    C("wave 1 posts {tag, XCD id}; a workgroup that later reads its own value from all 32 members of its kv-head group")
    C("knows that they share one L2 and may hand data over with plain stores; otherwise it writes through (sc1)")
    a(f"s_getreg_b32 s{sTMP}, hwreg(HW_REG_XCC_ID, 0, 4)"); a(f"s_lshl_b32 s{sXV}, s{sT}, 4"); a(f"s_or_b32 s{sXV}, s{sXV}, s{sTMP}")
    a(f"s_cmp_lg_u32 s{sW}, 1"); a("s_cbranch_scc1 L_nox")
    a(f"s_lshl_b32 s{sTMP}, s{sKVH}, 8"); a(f"s_lshl_b32 s{sTMP2}, s{sJ}, 2"); a(f"s_add_u32 s{sTMP}, s{sTMP}, s{sTMP2}"); a(f"s_add_u32 s{sTMP}, s{sTMP}, {X_OFF}")
    a(f"v_mov_b32 v{vT}, s{sXV}")
    a("s_mov_b64 exec, 1"); a(f"buffer_store_dword v{vT}, v{vVO}, {sr(rWS,4)}, s{sTMP} offen"); a("s_mov_b64 exec, -1")
    a("L_nox:")
    if pbar: a("s_barrier")
    stamp()
    issue(); issue()
    NRG = 28 if yfull else 14
    if yfull:
        C("w_down tile: rows rg*64 + 16w + 2*(l>>3) + i, columns cg*64 + 8*(l&7); rg = j (>= 28 lies outside the buffer and reads 0), cg = wg&7")
        a(f"s_mov_b32 s{sRG}, s{sJ}"); a(f"s_mov_b32 s{sCOL}, s{sKVH}")
        a(f"s_mov_b64 {sr(rDN,2)}, {sr(sDN,2)}"); a(f"s_mov_b32 s{rDN+2}, {1792*1024}"); a(f"s_mov_b32 s{rDN+3}, 0x20000")
        a(f"s_lshl_b32 s{sTMP}, s{sRG}, 2"); a(f"s_add_u32 s{sSTR}, s{sTMP}, s{sW}")
        a(f"s_lshl_b32 s{sTMP}, s{sSTR}, 14"); a(f"s_lshl_b32 s{sTMP2}, s{sCOL}, 7"); a(f"s_add_u32 s{sTMP}, s{sTMP}, s{sTMP2}")
        a(f"v_lshrrev_b32 v{vT2}, 3, v{vL}"); a(f"v_and_b32 v{vT}, 7, v{vL}"); a(f"v_lshlrev_b32 v{vT}, 4, v{vT}"); a(f"v_lshl_add_u32 v{vT}, v{vT2}, 11, v{vT}")
        for i in range(2): vm(("dn", i), f"buffer_load_dwordx4 {vr(vD+4*i,4)}, v{vT}, {sr(rDN,4)}, s{sTMP} offen offset:{1024*i} {wflags}")
    else:
        C("w_down tile: rows rg*128 + 32w + 2*(l>>2) + i, columns cg*32 + 8*(l&3); rg >= 14 lies outside the buffer and reads 0")
        a(f"s_lshr_b32 s{sTMP}, s2, 7"); a(f"s_lshl_b32 s{sRG}, s{sTMP}, 3"); a(f"s_add_u32 s{sRG}, s{sRG}, s{sKVH}")
        a(f"s_mov_b64 {sr(rDN,2)}, {sr(sDN,2)}"); a(f"s_mov_b32 s{rDN+2}, {1792*1024}"); a(f"s_mov_b32 s{rDN+3}, 0x20000")
        a(f"s_and_b32 s{sCOL}, s{sJ}, 15")
        a(f"s_lshl_b32 s{sTMP}, s{sRG}, 2"); a(f"s_add_u32 s{sSTR}, s{sTMP}, s{sW}")
        a(f"s_lshl_b32 s{sTMP}, s{sSTR}, 15"); a(f"s_lshl_b32 s{sTMP2}, s{sCOL}, 6"); a(f"s_add_u32 s{sTMP}, s{sTMP}, s{sTMP2}")
        a(f"v_lshrrev_b32 v{vT2}, 2, v{vL}"); a(f"v_lshlrev_b32 v{vT}, 11, v{vT2}"); a(f"v_lshl_add_u32 v{vT}, v{vE}, 4, v{vT}")
        for i in range(2): vm(("dn", i), f"buffer_load_dwordx4 {vr(vD+4*i,4)}, v{vT}, {sr(rDN,4)}, s{sTMP} offen offset:{1024*i} {wflags}")
    C("addresses used by the later hand-offs")
    a(f"v_and_b32 v{vT}, 7, v{vL}"); a(f"v_xor_b32 v{vT}, v{vT}, v{vSL}"); a(f"v_lshlrev_b32 v{vT}, 4, v{vT}")
    a(f"v_lshl_add_u32 v{vOAW}, v{vN}, 7, v{vT}"); a(f"s_lshl_b32 s{sTMP}, s{sW}, 11"); a(f"v_add_u32 v{vOAW}, s{sTMP}, v{vOAW}"); a(f"v_xor_b32 v{vOAW1}, 64, v{vOAW}")
    a(f"v_lshrrev_b32 v{vT}, 3, v{vL}"); a(f"v_xor_b32 v{vOAR}, v{vT}, v{vL}"); a(f"v_and_b32 v{vOAR}, 7, v{vOAR}"); a(f"v_lshlrev_b32 v{vOAR}, 4, v{vOAR}")
    a(f"v_lshl_add_u32 v{vOAR}, v{vT}, 7, v{vOAR}"); a(f"s_and_b32 s{sTMP}, s{sW}, 1"); a(f"s_lshl_b32 s{sTMP}, s{sTMP}, 10"); a(f"v_add_u32 v{vOAR}, s{sTMP}, v{vOAR}")
    a(f"s_lshl_b32 s{sPM}, s{sKVH}, 5"); a(f"s_add_u32 s{sPM}, s{sPM}, s{sJ}")
    a(f"s_lshl_b32 s{sPP}, s{sPM}, 11"); a(f"s_add_u32 s{sPP}, s{sPP}, s{sTMP}"); a(f"s_add_u32 s{sPP}, s{sPP}, {P_OFF}")
    a(f"s_lshl_b32 s{sPS}, s{sPM}, 9"); a(f"s_add_u32 s{sPS}, s{sPS}, {S_OFF}")
    a(f"s_lshl_b32 s{sPM}, s{sPM}, 6"); a(f"s_add_u32 s{sPM}, s{sPM}, {ML_OFF}")
    a(f"s_lshl_b32 s{sTMP}, s{sW}, 2"); a(f"s_add_u32 s{sTMP}, s{sTMP}, {L_ML}"); a(f"v_lshl_add_u32 v{vMLW}, v{vBK}, 4, s{sTMP}"); a(f"v_lshlrev_b32 v{vMLR}, 4, v{vE}")
    a(f"v_lshl_add_u32 v{vSRW}, v{vN}, 1, v{vSL}"); a(f"v_lshlrev_b32 v{vSRW}, 4, v{vSRW}"); a(f"s_lshl_b32 s{sTMP}, s{sW}, 9"); a(f"v_add_u32 v{vSRW}, s{sTMP}, v{vSRW}")
    a(f"v_lshlrev_b32 v{vL2K}, 11, v{vL}")
    a(f"v_lshlrev_b32 v{vWOO}, 4, v{vN}"); a(f"v_lshl_add_u32 v{vWOO}, v{vSL}, 17, v{vWOO}")
    C("final-stage role: wave 2 of workgroups with j < 16 owns output columns 4f..4f+3, f = (wg&7)*16 + j")
    a(f"s_lshl_b32 s{sF}, s{sKVH}, 4"); a(f"s_add_u32 s{sF}, s{sF}, s{sJ}")
    a(f"s_cmp_lt_u32 s{sJ}, 16"); a(f"s_cselect_b32 s{sF}, s{sF}, 999")
    a(f"s_cmp_eq_u32 s{sW}, 2"); a(f"s_cselect_b32 s{sF}, s{sF}, 999")
    while nxt[0] < qpos: issue()
    C("gather: wave w sums, rounds and shares dims 32w..32w+31 of q (MFMA B layout, head = (l>>2)&3); plus this wave's g / u rows")
    a(f"v_lshlrev_b32 v{vGO}, 9, v{vBK}"); a(f"v_lshl_add_u32 v{vGO}, v{vSL}, 5, v{vGO}")
    a(f"s_lshl_b32 s{sCB}, s{sKVH}, 11"); a(f"s_lshl_b32 s{sTMP}, s{sW}, 7"); a(f"s_add_u32 s{sCB}, s{sCB}, s{sTMP}"); a(f"s_add_u32 s{sCB}, s{sCB}, {A1_OFF}"); a(f"s_add_u32 s{sGM}, s{sCB}, {HALF}")
    a(f"v_lshlrev_b32 v{vGM}, 3, v{vT2}")
    a(f"s_min_u32 s{sSTR}, s{sSTR}, {NRG*4-1}")
    a(f"s_lshl_b32 s{sGO0}, s{sSTR}, {6 if yfull else 7}"); a(f"s_add_u32 s{sGO0}, s{sGO0}, {A1_OFF + 4096*4}"); a(f"s_add_u32 s{sGO1}, s{sGO0}, {1792*4}")
    a(f"s_add_u32 s{sTLO}, s{sGO0}, {HALF}"); a(f"s_add_u32 s{sTHI}, s{sGO1}, {HALF}")
    def qloads(fl, cnt):
        e = vm if cnt else (lambda tag, text: a(text))
        for half, so in enumerate((sCB, sGM)):
            for h in range(2): e("q", f"buffer_load_dwordx4 {vr(vW+8*half+4*h,4)}, v{vGO}, {sr(rWS,4)}, s{so} offen offset:{16*h} {fl}")
        for k, so in enumerate((sGO0, sGO1, sTLO, sTHI)): e("q", f"buffer_load_dwordx2 {vr(vGU+2*k,2)}, v{vGM}, {sr(rWS,4)}, s{so} offen {fl}")
    qloads(q1, True)
    while nxt[0] < NS: issue()
    a(f"v_and_b32 v{vT}, {8 if yfull else 4}, v{vL}"); a(f"v_lshlrev_b32 v{vT}, {1 if yfull else 2}, v{vT}"); a(f"v_lshrrev_b32 v{vT}, v{vT}, s{sT}")
    a(f"v_and_b32 v{vTA}, {AM}, v{vT}"); a(f"v_bfe_u32 v{vTB_}, v{vT}, 8, {abits}")
    a(f"s_lshl_b32 s{sTMP}, s{sW}, 10"); a(f"v_add_u32 v{vXG}, s{sTMP}, v{vVO}")
    wait("q")
    a("L_qchk:")
    for i in range(16): a(f"v_xor_b32 v{vW+i}, s{sTN[i&3]}, v{vW+i}")
    for i in range(8): a(f"v_xor_b32 v{vGU+i}, v{vTB_ if i&1 else vTA}, v{vGU+i}")
    a(f"v_or_b32 v{vT}, v{vW}, v{vW+1}")
    for i in range(2, 16, 2): a(f"v_or3_b32 v{vT}, v{vT}, v{vW+i}, v{vW+i+1}")
    for i in range(0, 8, 2): a(f"v_or3_b32 v{vT}, v{vT}, v{vGU+i}, v{vGU+i+1}")
    a(f"v_and_b32 v{vT}, {AM}, v{vT}")
    a(f"v_cmp_ne_u32 vcc, 0, v{vT}"); a("s_cbranch_vccnz L_qretry")
    a("L_qok:")
    for i in range(8): a(f"v_add_f32 v{vW+i}, v{vW+i}, v{vW+8+i}")
    for i in range(4): a(f"v_cvt_pk_bf16_f32 v{vW+i}, v{vW+2*i}, v{vW+2*i+1}")
    a(f"ds_write_b128 v{vXG}, {vr(vW,4)} offset:{L_Q}")
    for i in range(4): a(f"v_add_f32 v{vGU+i}, v{vGU+i}, v{vGU+4+i}")
    for i in range(4): a(f"v_cvt_pk_bf16_f32 v{vGU+i}, v{vGU+i}, v{vGU+i}")
    a("s_waitcnt lgkmcnt(0)"); a("s_barrier")
    for jj in range(4): a(f"ds_read_b128 {vr(vQ+4*jj,4)}, v{vVO} offset:{L_Q+1024*jj}")
    a("s_waitcnt lgkmcnt(0)")
    for b in range(2):
        for t in range(4): a(f"v_cndmask_b32 v{vQH+4*b+t}, v{vQ+8*b+t}, v{vQ+8*b+4+t}, {sr(sMO,2)}")
    stamp()
    def ystage():
        C("GLU: h = bf16(bf16(sigmoid(g)) * u), partial y = h @ w_down tile")
        for i in range(4): a(f"v_and_b32 v{vGU+i}, s{sHI}, v{vGU+i}")
        for i in range(2): a(f"v_mul_f32 v{vGU+i}, {f2u(-L2E):#x}, v{vGU+i}")
        for i in range(2): a(f"v_exp_f32 v{vGU+i}, v{vGU+i}")
        for i in range(2): a(f"v_add_f32 v{vGU+i}, 1.0, v{vGU+i}")
        for i in range(2): a(f"v_rcp_f32 v{vGU+i}, v{vGU+i}")
        for i in range(2): a(f"v_cvt_pk_bf16_f32 v{vGU+i}, v{vGU+i}, v{vGU+i}")
        for i in range(2): a(f"v_and_b32 v{vGU+i}, s{sHI}, v{vGU+i}")
        for i in range(2): a(f"v_mul_f32 v{vGU+i}, v{vGU+i}, v{vGU+2+i}")
        for i in range(2): a(f"v_cvt_pk_bf16_f32 v{vGU+i}, v{vGU+i}, v{vGU+i}")
        if yfull:
            for i in range(2):
                for t in range(4): a(f"v_and_b32 v{vXX+4*i+t}, v{vGU+i}, v{vMK+t}")
            for i in range(2):
                wait(("dn", i)); a(f"v_mfma_f32_16x16x32_bf16 {vr(vA0,4)}, {vr(vXX+4*i,4)}, {vr(vD+4*i,4)}, {'0' if i == 0 else vr(vA0,4)}")
        else:
            for i in range(2):
                a(f"v_and_b32 v{vXX+2*i}, v{vGU+i}, v{vM0}"); a(f"v_and_b32 v{vXX+2*i+1}, v{vGU+i}, v{vM1}")
            gemv(vXX, vD, 2, "dn")
        C("gather addresses: (m,l) lane = (producer 4*(l>>4)+(l&3), head (l>>2)&3); o lane = (producer l&15, head l>>4)")
        a(f"v_lshlrev_b32 v{vGO}, 11, v{vN}"); a(f"v_lshl_add_u32 v{vGO}, v{vSL}, 4, v{vGO}")
        a(f"v_lshlrev_b32 v{vGM}, 4, v{vBK}"); a(f"v_lshl_add_u32 v{vGM}, v{vE}, 6, v{vGM}"); a(f"v_lshl_add_u32 v{vGM}, v{vSL}, 8, v{vGM}")
        a(f"s_and_b32 s{sTMP}, s{sJ}, 28"); a(f"s_add_u32 s{sSTR}, s{sTMP}, s{sW}")
        a(f"s_lshl_b32 s{sTMP}, s{sKVH}, 16"); a(f"s_lshl_b32 s{sTMP2}, s{sSTR}, 6"); a(f"s_add_u32 s{sGO0}, s{sTMP}, s{sTMP2}")
        a(f"s_add_u32 s{sGO0}, s{sGO0}, {P_OFF}"); a(f"s_add_u32 s{sGO1}, s{sGO0}, 0x8000")
        a(f"s_lshl_b32 s{sGM}, s{sKVH}, 11"); a(f"s_add_u32 s{sGM}, s{sGM}, {ML_OFF}")
        a(f"s_lshl_b32 s{sTMP}, s{sKVH}, 19"); a(f"s_lshl_b32 s{sTMP2}, s{sSTR}, 12"); a(f"s_add_u32 s{sCB}, s{sTMP}, s{sTMP2}")
        a(f"s_and_b32 s{sTMP}, s{sJ}, 3"); a(f"s_lshl_b32 s{sTMP}, s{sTMP}, 8"); a(f"s_add_u32 s{sCB}, s{sCB}, s{sTMP}")
        a(f"s_mov_b64 {sr(rDN,2)}, {sr(sWO,2)}"); a(f"s_mov_b32 s{rDN+2}, {4096*1024}")
        if yfull:
            a("s_mov_b32 exec_lo, 0x00ff00ff"); a("s_mov_b32 exec_hi, 0xff00ff00")
            a(f"ds_write_b128 v{vDGA}, {vr(vA0,4)} offset:{L_Y}"); a("s_mov_b64 exec, -1")
        else: gemv_store(L_Y)
    def ypublish(cnt):
        C("wave 3 publishes this workgroup's y partial")
        a(f"s_cmp_lg_u32 s{sW}, 3"); a("s_cbranch_scc1 L_noypub")
        a(f"s_cmp_ge_u32 s{sRG}, {NRG}"); a("s_cbranch_scc1 L_noypub")
        if cnt:
            a(f"v_mov_b32 v{vT}, 0")
            a("L_ycnt:")
            a(f"ds_read_b32 v{vT2}, v{vT} offset:{L_CNT}"); a("s_waitcnt lgkmcnt(0)")
            a(f"v_cmp_ne_u32 vcc, 4, v{vT2}"); a("s_cbranch_vccz L_ycntok"); timeout("L_ycnt")
            a("L_ycntok:")
        a("s_mov_b64 exec, 0xffff")
        a(f"s_lshl_b32 s{sTMP}, s{sRG}, 11"); a(f"s_lshl_b32 s{sTMP2}, s{sCOL}, {8 if yfull else 7}"); a(f"s_add_u32 s{sTMP}, s{sTMP}, s{sTMP2}"); a(f"s_add_u32 s{sTMP}, s{sTMP}, {Y_OFF}")
        gemv_reduce(L_Y, vW, not yfull)
        for r in range(4): a(f"v_add_u32 v{vW+r}, 0x80, v{vW+r}")
        for r in range(4): a(f"v_bfi_b32 v{vW+r}, v{vFF}, s{sTB+r}, v{vW+r}")
        if yfull:
            C("the consumers of column group wg&7 are members of this group")
            a(f"s_cmp_eq_u32 s{sFAST}, 0"); a("s_cbranch_scc1 L_yslow")
            a(f"buffer_store_dwordx4 {vr(vW,4)}, v{vVO}, {sr(rWS,4)}, s{sTMP} offen")
            a("L_ydone:")
        else:
            a("s_mov_b64 exec, 0xff")
            a(f"buffer_store_dwordx4 {vr(vW,4)}, v{vVO}, {sr(rWS,4)}, s{sTMP} offen sc1")
        a("s_mov_b64 exec, -1")
        a("L_noypub:")
    C("pass 1: scores.  lane l keeps s[key 4*(l&3) + (l>>4) of the tile][head (l>>2)&3], one register per tile")
    for t in range(NT):
        b = 16*slot[t]
        wait((t, 3))
        if kseq[t] == "r":
            for i in range(4): a(f"v_mfma_f32_16x16x32_bf16 {vr(vSS,4)}, {ar(b+4*i,4)}, {vr(vQ+4*i,4)}, {'0' if i == 0 else vr(vSS,4)}")
        else:
            for i in (0, 2, 1, 3): a(f"v_mfma_f32_16x16x32_bf16 {vr(vSS+4*(i>>1),4)}, {ar(b+4*i,4)}, {vr(vQH+4*(i&1),4)}, {'0' if i&1 == 0 else vr(vSS+4*(i>>1),4)}")
        free.append(slot[t])
        depth = nxt[0] - (t+1)
        if depth < RD or (t % (kskip+1) == 0): issue()
        x = vS + t
        if kseq[t] == "r": sel4(x, vSS, vSS+1, vSS+2, vSS+3)
        else:
            sel4(vT, vSS+2, vSS+1, vSS+6, vSS+5); sel4(x, vSS, vSS+3, vSS+4, vSS+7)
            a(f"v_add_f32_dpp v{x}, v{vT}, v{x} quad_perm:[1,0,3,2] row_mask:0xf bank_mask:0xf")
        a(f"v_cvt_pk_bf16_f32 v{x}, v{x}, v{x}"); a(f"v_and_b32 v{x}, s{sHI}, v{x}"); a(f"v_mul_f32 v{x}, s{sSC}, v{x}")
        a(f"v_cvt_pk_bf16_f32 v{x}, v{x}, v{x}"); a(f"v_and_b32 v{x}, s{sHI}, v{x}")
        if t == 1: a(f"v_max_f32 v{vNM}, v{x-1}, v{x}")
        elif t % 2 == 1: a(f"v_max3_f32 v{vNM}, v{vNM}, v{x-1}, v{x}")
        if t == yt: ystage()
        if t == ypub and not ybar: ypublish(True)
        if t == xget:
            a(f"s_lshl_b32 s{sTMP}, s{sKVH}, 8"); a(f"s_add_u32 s{sTMP}, s{sTMP}, {X_OFF}")
            a(f"v_and_b32 v{vT}, 31, v{vL}"); a(f"v_lshlrev_b32 v{vT}, 2, v{vT}")
            vm("xg", f"buffer_load_dword v{vXG}, v{vT}, {sr(rWS,4)}, s{sTMP} offen sc1")
        if t == xget + RD + 1:
            wait("xg")
            a(f"v_cmp_ne_u32 vcc, s{sXV}, v{vXG}"); a("s_cmp_eq_u64 vcc, 0"); a(f"s_cselect_b32 s{sFAST}, 1, 0")
            if force is not None: a(f"s_mov_b32 s{sFAST}, {force}")
            C("lanes of the s-partial store whose consumers are members of this (proven local) group")
            a(f"s_and_b32 s{sTMP}, s{sJ}, 3"); a(f"s_lshr_b32 s{sTMP2}, s{sKVH}, 1"); a(f"s_cmp_eq_u32 s{sTMP}, s{sTMP2}"); a(f"s_cselect_b32 s{sLOC}, s{sFAST}, 0")
            a(f"s_mul_i32 s{sLOC}, s{sLOC}, 0xffff"); a(f"s_and_b32 s{sTMP}, s{sKVH}, 1"); a(f"s_lshl_b32 s{sTMP}, s{sTMP}, 4"); a(f"s_lshl_b32 s{sLOC}, s{sLOC}, s{sTMP}")
    C("wave max per head, e = exp(s - max), wave sum")
    allreduce_quad("v_max_f32", vNM); allreduce_rows("v_max_f32", vNM, vT)
    a(f"v_mul_f32 v{vNM}, {f2u(-L2E):#x}, v{vNM}")
    for t0 in range(0, NT, 4):
        for t in range(t0, t0+4): a(f"v_fma_f32 v{vS+t}, v{vS+t}, s{sL2E}, v{vNM}")
        for t in range(t0, t0+4): a(f"v_exp_f32 v{vS+t}, v{vS+t}")
        if t0 == 0: a(f"v_add_f32 v{vLS}, v{vS}, v{vS+1}"); a(f"v_add_f32 v{vT2}, v{vS+2}, v{vS+3}")
        else:
            for t in range(t0, t0+4): a(f"v_add_f32 v{vLS if t&1 else vT2}, v{vLS if t&1 else vT2}, v{vS+t}")
    a(f"v_add_f32 v{vLS}, v{vLS}, v{vT2}")
    allreduce_quad("v_add_f32", vLS); allreduce_rows("v_add_f32", vLS, vT)
    if mlbar:
        C("wave 0 merges the four (max, sum) pairs and publishes them; the others hold their loads until the store is out")
        a(f"ds_write2_b32 v{vMLW}, v{vNM}, v{vLS} offset0:0 offset1:16")
        a("s_waitcnt lgkmcnt(0)"); a("s_barrier")
        if ybar: ypublish(False)
        a(f"s_cmp_lg_u32 s{sW}, 0"); a("s_cbranch_scc1 L_nomlpub")
        a(f"ds_read_b128 {vr(vSS,4)}, v{vMLR} offset:{L_ML}"); a(f"ds_read_b128 {vr(vTT,4)}, v{vMLR} offset:{L_ML+64}")
        a("s_waitcnt lgkmcnt(0)")
    else:
        C("the wave that arrives last merges the four (max, sum) pairs and publishes them")
        a(f"ds_write2_b32 v{vMLW}, v{vNM}, v{vLS} offset0:0 offset1:16")
        a(f"v_mov_b32 v{vT}, 0"); a(f"v_mov_b32 v{vT2}, 1")
        a("s_mov_b64 exec, 1"); a(f"ds_add_rtn_u32 v{vT2}, v{vT}, v{vT2} offset:{L_CNT+4}"); a("s_mov_b64 exec, -1")
        a(f"ds_read_b128 {vr(vSS,4)}, v{vMLR} offset:{L_ML}"); a(f"ds_read_b128 {vr(vTT,4)}, v{vMLR} offset:{L_ML+64}")
        a("s_waitcnt lgkmcnt(0)")
        a(f"v_readfirstlane_b32 s{sTMP}, v{vT2}"); a(f"s_cmp_lg_u32 s{sTMP}, 3"); a("s_cbranch_scc1 L_nomlpub")
    if stprobe: a(f"s_memrealtime s[{sST+2}:{sST+3}]")
    a(f"v_min3_f32 v{vA1}, v{vSS}, v{vSS+1}, v{vSS+2}"); a(f"v_min_f32 v{vA1}, v{vA1}, v{vSS+3}")
    for w in range(4): a(f"v_sub_f32 v{vSS+w}, v{vA1}, v{vSS+w}")
    for w in range(4): a(f"v_exp_f32 v{vSS+w}, v{vSS+w}")
    a(f"v_mov_b32 v{vA1+2}, s{sT}"); a(f"v_mov_b32 v{vA1+3}, s{sT}")
    a(f"v_mul_f32 v{vA1+1}, v{vSS}, v{vTT}")
    for w in range(1, 4): a(f"v_fmac_f32 v{vA1+1}, v{vSS+w}, v{vTT+w}")
    a("s_mov_b64 exec, 0xf")
    a(f"s_cmp_eq_u32 s{sFAST}, 0"); a("s_cbranch_scc1 L_mlslow")
    a(f"buffer_store_dwordx4 {vr(vA1,4)}, v{vVO}, {sr(rWS,4)}, s{sPM} offen")
    a("L_mldone:")
    a("s_mov_b64 exec, -1")
    a("L_nomlpub:")
    if mlbar: a("s_barrier")
    if fine: stamp()
    while nxt[0] < NT + mpos: issue()
    def mloads(fl, cnt):
        e = vm if cnt else (lambda tag, text: a(text))
        e("m", f"buffer_load_dwordx4 {vr(vW,4)}, v{vGM}, {sr(rWS,4)}, s{sGM} offen {fl}")
        e("m", f"buffer_load_dwordx4 {vr(vW+4,4)}, v{vGM}, {sr(rWS,4)}, s{sGM} offen offset:1024 {fl}")
    mloads(m1, True)
    while nxt[0] < NT + NS: issue()
    wait("m")
    a("L_mchk:")
    a(f"v_xor_b32 v{vT}, s{sT}, v{vW+2}"); a(f"v_xor_b32 v{vT2}, s{sT}, v{vW+6}"); a(f"v_or_b32 v{vT}, v{vT}, v{vT2}")
    a(f"v_cmp_ne_u32 vcc, 0, v{vT}"); a("s_cbranch_vccnz L_mretry")
    a("L_mok:")
    C("row max M and row sum L over all 65536 keys; p = bf16(e * exp(m_wave - M) / L)")
    a(f"v_min_f32 v{vT2}, v{vW}, v{vW+4}")
    allreduce_quad("v_min_f32", vT2); allreduce_rows("v_min_f32", vT2, vT)
    a(f"v_sub_f32 v{vW}, v{vT2}, v{vW}"); a(f"v_sub_f32 v{vW+4}, v{vT2}, v{vW+4}"); a(f"v_sub_f32 v{vNM}, v{vT2}, v{vNM}")
    a(f"v_exp_f32 v{vW}, v{vW}"); a(f"v_exp_f32 v{vW+4}, v{vW+4}"); a(f"v_exp_f32 v{vNM}, v{vNM}")
    a(f"v_mul_f32 v{vLS}, v{vW}, v{vW+1}"); a(f"v_fmac_f32 v{vLS}, v{vW+4}, v{vW+5}")
    allreduce_quad("v_add_f32", vLS); allreduce_rows("v_add_f32", vLS, vT)
    a(f"v_rcp_f32 v{vLS}, v{vLS}")
    a(f"v_mul_f32 v{vNM}, v{vNM}, v{vLS}")
    if fine: stamp()
    C("pass 2: o[head l>>4][d = 8*(l&15) + 4a + r] += p * V  (A operand holds p at element l&3 of row 4*head + (l&3))")
    def pprep(t): a(f"v_mul_f32 v{vS+t}, v{vS+t}, v{vNM}"); a(f"v_cvt_pk_bf16_f32 v{vS+t}, v{vS+t}, v{vS+t}")
    pprep(0)
    for t in range(NT):
        h = NT + t; b = 16*slot[h]
        if t+1 < NT: pprep(t+1)
        for i in range(4):
            a(f"v_and_b32_dpp v{vXX+2*i}, v{vS+t}, v{vM0} quad_perm:[{i},{i},{i},{i}] row_mask:0xf bank_mask:0xf")
            a(f"v_and_b32_dpp v{vXX+2*i+1}, v{vS+t}, v{vM1} quad_perm:[{i},{i},{i},{i}] row_mask:0xf bank_mask:0xf")
        for i in range(4):
            wait((h, i if t == NT-1 else 3))
            a(f"v_mfma_f32_16x16x16_bf16 {vr(vA0,4)}, {vr(vXX+2*i,2)}, {ar(b+4*i,2)}, {'0' if t+i == 0 else vr(vA0,4)}")
            a(f"v_mfma_f32_16x16x16_bf16 {vr(vA1,4)}, {vr(vXX+2*i,2)}, {ar(b+4*i+2,2)}, {'0' if t+i == 0 else vr(vA1,4)}")
        free.append(slot[h])
        depth = nxt[0] - (h+1)
        if nxt[0] < 2*NT and (depth < RV or (t % (vskip+1) == 0)): issue()
        if t == yget:
            a(f"v_lshrrev_b32 v{vT}, 5, v{vL}"); a(f"v_and_b32 v{vT2}, 1, v{vSL}"); a(f"v_lshl_add_u32 v{vT}, v{vT2}, 1, v{vT}")
            a(f"s_and_b32 s{sTMP}, s{sF}, 127"); a(f"s_lshl_b32 s{sTMP}, s{sTMP}, 2"); a(f"v_add_lshl_u32 v{vXO+1}, v{vT}, s{sTMP}, 1")
            a(f"s_cmp_ge_u32 s{sF}, 128"); a("s_cbranch_scc1 L_noyget")
            a(f"global_load_ushort v{vXO}, v{vXO+1}, {sr(sX,2)}")
            a(f"s_lshl_b32 s{sRG}, s{sF}, 4"); a(f"s_add_u32 s{sRG}, s{sRG}, {Y_OFF}")
            for r in range(4): a(f"v_mov_b32 v{vGS+r}, 0")
            a(f"s_mov_b64 exec, {(1<<NRG)-1:#x}")
            a(f"buffer_load_dwordx4 {vr(vGS,4)}, v{vL2K}, {sr(rWS,4)}, s{sRG} offen sc1")
            a("s_mov_b64 exec, -1")
            a("L_noyget:")
            ymark = len(Q); ydone = False
        if t > yget and not ydone and done[0] > ymark:
            ydone = True
            C("final-stage wave: y = sum of the row-group partials, g = bf16(silu(bf16(y))); rows of 16 lanes hold columns (0,2,1,3)")
            a(f"s_cmp_ge_u32 s{sF}, 128"); a("s_cbranch_scc1 L_nog")
            a(f"s_mov_b64 exec, {(1<<NRG)-1:#x}")
            a("L_gchk:")
            for r in range(4): a(f"v_xor_b32 v{vGS+r}, s{sTB+r}, v{vGS+r}")
            a(f"v_or3_b32 v{vT}, v{vGS}, v{vGS+1}, v{vGS+2}"); a(f"v_or_b32 v{vT}, v{vT}, v{vGS+3}"); a(f"v_and_b32 v{vT}, v{vFF}, v{vT}")
            a(f"v_cmp_ne_u32 vcc, 0, v{vT}"); a("s_cbranch_vccnz L_gretry")
            a("L_gok:")
            a("s_mov_b64 exec, -1")
            a(f"v_permlane32_swap_b32 v{vGS}, v{vGS+1}"); a(f"v_permlane32_swap_b32 v{vGS+2}, v{vGS+3}")
            a(f"v_add_f32 v{vGS}, v{vGS}, v{vGS+1}"); a(f"v_add_f32 v{vGS+2}, v{vGS+2}, v{vGS+3}")
            a(f"v_permlane16_swap_b32 v{vGS}, v{vGS+2}"); a(f"v_add_f32 v{vGS}, v{vGS}, v{vGS+2}")
            rowreduce("v_add_f32", (vGS,))
            a(f"v_cvt_pk_bf16_f32 v{vGS}, v{vGS}, v{vGS}"); a(f"v_and_b32 v{vGS}, s{sHI}, v{vGS}")
            a(f"v_mul_f32 v{vT}, {f2u(-L2E):#x}, v{vGS}"); a(f"v_exp_f32 v{vT}, v{vT}"); a(f"v_add_f32 v{vT}, 1.0, v{vT}"); a(f"v_rcp_f32 v{vT}, v{vT}")
            a(f"v_mul_f32 v{vGS}, v{vGS}, v{vT}"); a(f"v_cvt_pk_bf16_f32 v{vGS}, v{vGS}, v{vGS}"); a(f"v_and_b32 v{vGS}, s{sHI}, v{vGS}")
            a(f"v_lshlrev_b32 v{vXO}, 16, v{vXO}")
            a(f"s_lshl_b32 s{sRG}, s{sF}, 4"); a(f"s_add_u32 s{sRG}, s{sRG}, {S_OFF}")
            a("L_nog:")
    assert ydone and nxt[0] == 2*NT
    stamp()
    if notail:
        for k in range(nst[0], nst[0]+4): a(f"s_memrealtime s[{sST+2*k}:{sST+2*k+1}]")
        a("s_branch L_fin")
    if amp:
        a("s_memrealtime s[98:99]")
    C("sum the four waves' partial o and publish it (128 granules of 4 d-values)")
    a(f"ds_write_b128 v{vOAW}, {vr(vA0,4)} offset:{L_OA}"); a(f"ds_write_b128 v{vOAW1}, {vr(vA1,4)} offset:{L_OA}")
    a("s_waitcnt lgkmcnt(0)")
    a("s_barrier")
    a(f"s_cmp_ge_u32 s{sW}, 2"); a("s_cbranch_scc1 L_pubdone")
    for w in range(4): a(f"ds_read_b128 {vr(vQ+4*w,4)}, v{vOAR} offset:{L_OA+2048*w}")
    a(f"s_cmp_eq_u32 s{sFAST}, 0")
    a("s_waitcnt lgkmcnt(2)")
    for r in range(4): a(f"v_add_f32 v{vQ+r}, v{vQ+r}, v{vQ+4+r}")
    a("s_waitcnt lgkmcnt(1)")
    for r in range(4): a(f"v_add_f32 v{vQ+r}, v{vQ+r}, v{vQ+8+r}")
    a("s_waitcnt lgkmcnt(0)")
    for r in range(4): a(f"v_add_f32 v{vQ+r}, v{vQ+r}, v{vQ+12+r}")
    for r in range(4): a(f"v_bfi_b32 v{vA0+r}, v{vFF}, s{sTB+r}, v{vQ+r}")
    a("s_cbranch_scc1 L_pubslow")
    a(f"buffer_store_dwordx4 {vr(vA0,4)}, v{vVO}, {sr(rWS,4)}, s{sPP} offen")
    a("L_pubdone:")
    if amp:
        a(f"s_cmp_lg_u32 s{sW}, 3"); a("s_cbranch_scc1 L_noamp")
        a("s_memrealtime s[98:99]"); a("s_waitcnt lgkmcnt(0)")
        a(f"v_mov_b32 v{vSS}, s96"); a(f"v_mov_b32 v{vSS+1}, s98"); a(f"s_lshl_b32 s{sTMP}, s2, 3"); a(f"s_add_u32 s{sTMP}, s{sTMP}, {ST_OFF}")
        a("s_mov_b64 exec, 1"); a(f"buffer_store_dwordx2 {vr(vSS,2)}, v{vVO}, {sr(rWS,4)}, s{sTMP} offen sc1"); a("s_mov_b64 exec, -1")
        a("L_noamp:")
    stamp()
    C("gather 4 heads x 4 d-values from the 32 splits, multiply with the wo tile (16 rows x 128 columns per wave)")
    O0, O1 = vW, vW+4
    a("L_apoll:")
    a(f"buffer_load_dwordx4 {vr(O0,4)}, v{vGO}, {sr(rWS,4)}, s{sGO0} offen sc1")
    a(f"buffer_load_dwordx4 {vr(O1,4)}, v{vGO}, {sr(rWS,4)}, s{sGO1} offen sc1")
    a("s_waitcnt vmcnt(1)")
    for i in range(4): a(f"v_xor_b32 v{O0+i}, s{sTB+i}, v{O0+i}")
    a(f"v_or3_b32 v{vT}, v{O0}, v{O0+1}, v{O0+2}")
    a("s_waitcnt vmcnt(0)")
    for i in range(4): a(f"v_xor_b32 v{O1+i}, s{sTB+i}, v{O1+i}")
    a(f"v_or3_b32 v{vT}, v{vT}, v{O0+3}, v{O1}"); a(f"v_or3_b32 v{vT2}, v{O1+1}, v{O1+2}, v{O1+3}")
    a(f"v_or_b32 v{vT}, v{vT}, v{vT2}"); a(f"v_and_b32 v{vT}, v{vFF}, v{vT}")
    a(f"v_cmp_ne_u32 vcc, 0, v{vT}"); a("s_cbranch_vccz L_aok")
    a("s_mov_b64 exec, vcc")
    if pa: a(f"s_sleep {pa}")
    timeout("L_apoll")
    a("L_aok:")
    a("s_mov_b64 exec, -1")
    stamp()
    for r in range(4): a(f"v_add_f32 v{O0+r}, v{O0+r}, v{O1+r}")
    rowreduce("v_add_f32", [O0+r for r in range(4)])
    for r in range(4): a(f"v_cvt_pk_bf16_f32 v{O0+r}, v{O0+r}, v{O0+r}")
    for r in range(4):
        for t in range(4): a(f"v_and_b32 v{vQ+4*r+t}, v{O0+r}, v{vMK+t}")
        if r > 0: a(f"v_mfma_f32_16x16x32_bf16 {vr(vA0,4)}, {vr(vQ+4*(r-1),4)}, {vr(vWO+4*(r-1),4)}, {'0' if r == 1 else vr(vA0,4)}")
    a(f"v_mfma_f32_16x16x32_bf16 {vr(vA0,4)}, {vr(vQ+12,4)}, {vr(vWO+12,4)}, {vr(vA0,4)}")
    a("s_mov_b32 exec_hi, 0")
    a(f"ds_write_b128 v{vSRW}, {vr(vA0,4)} offset:{L_SR}")
    a("s_waitcnt lgkmcnt(0)")
    a("s_barrier")
    a(f"s_cmp_lg_u32 s{sW}, 0"); a("s_cbranch_scc1 L_nopub")
    for w in range(4): a(f"ds_read_b128 {vr(vQ+4*w,4)}, v{vVO} offset:{L_SR+512*w}")
    a("s_waitcnt lgkmcnt(2)")
    for r in range(4): a(f"v_add_f32 v{vQ+r}, v{vQ+r}, v{vQ+4+r}")
    a("s_waitcnt lgkmcnt(1)")
    for r in range(4): a(f"v_add_f32 v{vQ+r}, v{vQ+r}, v{vQ+8+r}")
    a("s_waitcnt lgkmcnt(0)")
    for r in range(4): a(f"v_add_f32 v{vQ+r}, v{vQ+r}, v{vQ+12+r}")
    for r in range(4): a(f"v_bfi_b32 v{vQ+r}, v{vFF}, s{sTB+r}, v{vQ+r}")
    a(f"s_not_b32 exec_lo, s{sLOC}")
    a(f"buffer_store_dwordx4 {vr(vQ,4)}, v{vVO}, {sr(rWS,4)}, s{sPS} offen sc1")
    a(f"s_cmp_eq_u32 s{sLOC}, 0"); a("s_cbranch_scc1 L_nopub")
    a(f"s_mov_b32 exec_lo, s{sLOC}")
    a(f"buffer_store_dwordx4 {vr(vQ,4)}, v{vVO}, {sr(rWS,4)}, s{sPS} offen")
    a("L_nopub:")
    if fine: stamp()
    a("s_mov_b64 exec, -1")
    a(f"s_cmp_ge_u32 s{sF}, 128"); a("s_cbranch_scc1 L_fin")
    C("final stage: s = sum of 64 partials, out = bf16(x + bf16(bf16(s) * g))")
    if bdelay: a(f"s_sleep {bdelay}")
    a("L_bpoll:")
    a(f"buffer_load_dwordx4 {vr(vSS,4)}, v{vL2K}, {sr(rWS,4)}, s{sRG} offen sc1")
    a("s_waitcnt vmcnt(0)")
    for r in range(4): a(f"v_xor_b32 v{vSS+r}, s{sTB+r}, v{vSS+r}")
    a(f"v_or3_b32 v{vT}, v{vSS}, v{vSS+1}, v{vSS+2}"); a(f"v_or_b32 v{vT}, v{vT}, v{vSS+3}"); a(f"v_and_b32 v{vT}, v{vFF}, v{vT}")
    a(f"v_cmp_ne_u32 vcc, 0, v{vT}"); a("s_cbranch_vccz L_bok")
    a("s_mov_b64 exec, vcc")
    if pb: a(f"s_sleep {pb}")
    timeout("L_bpoll")
    a("L_bok:")
    a("s_mov_b64 exec, -1")
    a(f"v_permlane32_swap_b32 v{vSS}, v{vSS+1}"); a(f"v_permlane32_swap_b32 v{vSS+2}, v{vSS+3}")
    a(f"v_add_f32 v{vSS}, v{vSS}, v{vSS+1}"); a(f"v_add_f32 v{vSS+2}, v{vSS+2}, v{vSS+3}")
    a(f"v_permlane16_swap_b32 v{vSS}, v{vSS+2}"); a(f"v_add_f32 v{vSS}, v{vSS}, v{vSS+2}")
    rowreduce("v_add_f32", (vSS,))
    a(f"v_cvt_pk_bf16_f32 v{vSS}, v{vSS}, v{vSS}"); a(f"v_and_b32 v{vSS}, s{sHI}, v{vSS}")
    a(f"v_mul_f32 v{vSS}, v{vSS}, v{vGS}")
    a(f"v_cvt_pk_bf16_f32 v{vSS}, v{vSS}, v{vSS}"); a(f"v_and_b32 v{vSS}, s{sHI}, v{vSS}")
    a(f"v_add_f32 v{vSS}, v{vSS}, v{vXO}")
    a(f"v_cvt_pk_bf16_f32 v{vSS}, v{vSS}, v{vSS}")
    a("s_mov_b32 exec_lo, 0x00010001"); a("s_mov_b32 exec_hi, 0x00010001")
    a(f"global_store_short v{vXO+1}, v{vSS}, {sr(sOUT,2)}")
    C("every workgroup has read the epoch word by now (all of them fed this sum): advance it")
    a(f"s_cmp_lg_u32 s{sF}, 0"); a("s_cbranch_scc1 L_fin")
    a("s_mov_b64 exec, 1")
    a(f"v_mov_b32 v{vT}, s{sT}"); a(f"s_mov_b32 s{sTMP}, {E_OFF}")
    a(f"buffer_store_dword v{vT}, v{vVO}, {sr(rWS,4)}, s{sTMP} offen sc1")
    if amp:
        kind, mult = amp
        a("s_memrealtime s[98:99]")
        a("s_mov_b64 exec, -1")
        a(f"s_mov_b32 s{sTMP}, {ST_OFF}"); a(f"v_lshlrev_b32 v{vT}, 5, v{vL}")
        a(f"buffer_load_dwordx4 {vr(vW,4)}, v{vT}, {sr(rWS,4)}, s{sTMP} offen sc1"); a(f"buffer_load_dwordx4 {vr(vW+4,4)}, v{vT}, {sr(rWS,4)}, s{sTMP} offen offset:16 sc1")
        a("s_waitcnt vmcnt(0) lgkmcnt(0)")
        for i in range(8): a(f"v_subrev_u32 v{vW+i}, s96, v{vW+i}")
        def red(op, dst, o):
            a(f"{op} v{dst}, v{vW+o}, v{vW+2+o}"); a(f"{op} v{dst}, v{dst}, v{vW+4+o}"); a(f"{op} v{dst}, v{dst}, v{vW+6+o}")
            rowreduce(op, (dst,)); allreduce_rows(op, dst, vT)
        red("v_min_i32", vSS, 0); red("v_max_i32", vSS+1, 0); red("v_max_i32", vSS+2, 1); red("v_add_u32", vSS+3, 1); red("v_add_u32", vTT, 0)
        for i in range(4): a(f"v_readfirstlane_b32 s{90+i}, v{vSS+i}")
        a(f"v_readfirstlane_b32 s94, v{vTT}")
        a("s_nop 3")
        a("s_sub_u32 s88, s98, s96")
        if kind == "span": a("s_sub_u32 s88, s88, s90")
        if kind == "skew": a("s_sub_u32 s88, s91, s90")
        if kind == "endmax": a("s_sub_u32 s88, s92, s90")
        if kind == "endmean": a("s_ashr_i32 s93, s93, 8"); a("s_sub_u32 s88, s93, s90")
        if kind == "startmean": a("s_ashr_i32 s94, s94, 8"); a("s_sub_u32 s88, s94, s90")
        a(f"s_mul_i32 s88, s88, {mult}"); a("s_min_u32 s88, s88, 200000"); a("s_add_u32 s88, s88, s90"); a("s_add_u32 s88, s88, 6000")
        a("L_spin:")
        a("s_memrealtime s[98:99]"); a("s_waitcnt lgkmcnt(0)"); a("s_sub_u32 s98, s98, s96"); a("s_cmp_lt_i32 s98, s88"); a("s_cbranch_scc1 L_spin")
    a("L_fin:")
    if stamps:
        a("s_memrealtime s[100:101]")
        a("s_mov_b64 exec, -1")
        a("s_waitcnt lgkmcnt(0)")
        for i in range(nst[0]): a(f"v_writelane_b32 v{vTS}, s{sST+2*i}, {i}")
        a(f"v_writelane_b32 v{vTS}, s100, {nst[0]}")
        a(f"v_writelane_b32 v{vTS}, s{sTMO}, 15"); a(f"v_writelane_b32 v{vTS}, s{sFAST}, 14")
        a(f"s_lshl_b32 s{sTMP}, s2, 2"); a(f"s_add_u32 s{sTMP}, s{sTMP}, s{sW}"); a(f"s_lshl_b32 s{sTMP}, s{sTMP}, 8"); a(f"s_add_u32 s{sTMP}, s{sTMP}, {ST_OFF}")
        a(f"v_lshlrev_b32 v{vTT}, 2, v{vL}")
        a(f"buffer_store_dword v{vTS}, v{vTT}, {sr(rWS,4)}, s{sTMP} offen")
    a("L_done:")
    a("s_endpgm")
    C("out of line: write-through publishing and re-polls")
    a("L_pubslow:")
    a(f"buffer_store_dwordx4 {vr(vA0,4)}, v{vVO}, {sr(rWS,4)}, s{sPP} offen sc1")
    a("s_branch L_pubdone")
    if yfull:
        a("L_yslow:")
        a(f"buffer_store_dwordx4 {vr(vW,4)}, v{vVO}, {sr(rWS,4)}, s{sTMP} offen sc1")
        a("s_branch L_ydone")
    a("L_mlslow:")
    a(f"buffer_store_dwordx4 {vr(vA1,4)}, v{vVO}, {sr(rWS,4)}, s{sPM} offen sc1")
    a("s_branch L_mldone")
    def retry(lbl, ok, chk, loads):
        a(f"{lbl}:")
        a(f"s_sub_u32 s{sTMO}, s{sTMO}, 1"); a(f"s_cmp_le_i32 s{sTMO}, 0"); a(f"s_cbranch_scc1 {ok}")
        loads(); a("s_waitcnt vmcnt(0)"); a(f"s_branch {chk}")
    retry("L_qretry", "L_qok", "L_qchk", lambda: qloads("sc1", False))
    retry("L_mretry", "L_mok", "L_mchk", lambda: mloads("sc1", False))
    retry("L_gretry", "L_gok", "L_gchk", lambda: a(f"buffer_load_dwordx4 {vr(vGS,4)}, v{vL2K}, {sr(rWS,4)}, s{sRG} offen sc1"))
    body = a.finish()
    txt = HEADER + f"; @launch grid=(256,1,1) block=(256,1,1) lds={lds}\n"
    txt += f'.amdgcn_target "amdgcn-amd-amdhsa--gfx950"\n.text\n.globl {NAME}_kernel\n.p2align 8\n.type {NAME}_kernel,@function\n'
    txt += body + "L_codeend:\n"
    txt += f'''.section .rodata,"a"
.p2align 6
.amdhsa_kernel {NAME}_kernel
  .amdhsa_next_free_vgpr {NV + 16*NS}
  .amdhsa_next_free_sgpr 102
  .amdhsa_accum_offset {NV}
  .amdhsa_group_segment_fixed_size 0
  .amdhsa_kernarg_size 96
  .amdhsa_user_sgpr_count 2
  .amdhsa_user_sgpr_kernarg_segment_ptr 1
  .amdhsa_system_sgpr_workgroup_id_x 1
  .amdhsa_float_denorm_mode_32 3
.end_amdhsa_kernel
'''
    return txt

if __name__ == "__main__":
    kw = {}
    for x in sys.argv[2:]:
        k, v = x.split("=", 1)
        try: v = eval(v)
        except Exception: pass
        kw[k] = v
    open(sys.argv[1], "w").write(gen(**kw))
```

```python
import sys, struct
from asmlib import Asm
NAME = "recurrent_scan__gqa_block_cached__glu_gated_glu__decode"
def f2u(x): return struct.unpack("<I", struct.pack("<f", x))[0]
HEADER = open("cdna_kernels/%s.s.ref" % NAME).read().split("; Override launch")[0]
L2E = 1.4426950408889634

def gen(NS=16, RD=5, RV=8, pre=5, qpos=11, mpos=12, lds=20480, kvflags="nt", wflags="nt", wsbase=0, stamps=False,
        codepf=True, tmo=1<<16, q1="", m1="", yget=18, xget=18, tstamps=False, notail=False,
        pa=0, pb=0, bdelay=0, kseq="h"*8+"rh"*12, vseq="sc"*12+"a"*6+"cc", fine=False, force=None, win=0, winlo=16, winhi=58,
        kskip=3, vskip=2, comment=True, pbar=True, yt=4, abits=4, yfull=True, amp=None, pfearly=True, est="sc1", ost="", otouch=False, wb=False, fhi=True, dnearly=True, w1first=False, first=2, wot=27, pk=True, DA=1, la1=True, la2=True, adj=True, sep=False, tlb="", tlbpos=0, ctrl=((20, (0, 3, 10, 18, 25, 29), 0, "g"),), cwave=1, cint=True, one=0, xone=True):
    mlbar = ybar = True; stprobe = False; dw1 = None; ypub = -1
    NT = 32
    a = Asm()
    def C(text):
        if comment: a("; " + text)
    E_OFF, A1_OFF, Y_OFF, ML_OFF, X_OFF, S_OFF, P_OFF, ST_OFF = [wsbase + x for x in (0, 0x1000, 0x10000, 0x20000, 0x30000, 0x40000, 0x80000, 0x100000)]
    WS_BYTES = 0x20000000
    L_S1, L_Y, L_CNT, L_ML, L_OA, L_SR, L_Q = 0, 2048, 18944, 4224, 4608, 12800, 14848
    assert L_CNT + 512 <= lds
    HALF = 7680*4
    sX, sWQ, sWO, sG, sU, sDN, sOUT, sWS = 4, 10, 12, 16, 18, 20, 22, 26
    rK, rV, rW1, rWS, rDN = 28, 32, 36, 40, 44
    sW, sKVH, sJ, sOF, sOF0, sCB, sSTR, sT, sTMP, sTMP2 = 48, 49, 50, 51, 52, 53, 54, 55, 56, 57
    sTLO, sTHI, sSC, sL2E = 60, 61, 62, 63
    sTB = 64
    sHI, sTMO, sCOL, sRG, sF, sPP, sPM, sPS = 68, 70, 72, 73, 74, 75, 76, 77
    sPC = 78
    sDG, sM1, sM2, sM3, sMO = 14, 16, 18, 10, 6
    sGO0, sGO1, sGM = 24, 25, 3
    sFAST, sXV, sLOC = 58, 59, 69
    sST = 80
    sTN = (8, 9, 71, 79)
    AM = (1 << abits) - 1
    vL, vKO, vVO, vM0, vM1, vNM, vLS, vT = 0, 1, 2, 3, 4, 5, 6, 7
    vA0, vA1, vSS, vTT, vXX, vQ = 8, 12, 16, 20, 24, 32
    vSL, vE, vBK, vN, vFF, vOAW, vOAR, vMLW, vMLR, vGO, vGM, vSRW, vL2K, vWOO, vDGA, vT2 = range(48, 64)
    vW, vD, vGU0, vWO, vMK, vGS, vXO, vF = 64, 96, 104, 108, 124, 128, 132, 136
    vTS, vVW, vKH, vXG, vQH, vS, vOAW1, vTA, vTB_ = 144, 145, 146, 147, 148, 156, 188, 189, 190
    NV = 192
    vGU = vF
    def vr(b, n): return f"v[{b}:{b+n-1}]"
    def ar(b, n): return f"a[{b}:{b+n-1}]"
    def sr(b, n): return f"s[{b}:{b+n-1}]"
    nst = [0]
    def stamp():
        if stamps:
            a(f"s_memrealtime s[{sST+2*nst[0]}:{sST+2*nst[0]+1}]"); nst[0] += 1
    Q = []; done = [0]
    def vm(tag, text): a(text); Q.append(tag)
    def wait(tag):
        idx = max(i for i, t in enumerate(Q) if t == tag)
        if idx < done[0]: return
        n = min(len(Q) - 1 - idx, 63)
        a(f"s_waitcnt vmcnt({n})"); done[0] = len(Q) - n
    def allreduce_rows(op, v, t):
        a(f"v_mov_b32 v{t}, v{v}"); a(f"v_permlane16_swap_b32 v{v}, v{t}"); a(f"{op} v{v}, v{v}, v{t}")
        a(f"v_mov_b32 v{t}, v{v}"); a(f"v_permlane32_swap_b32 v{v}, v{t}"); a(f"{op} v{v}, v{v}, v{t}")
    def allreduce_quad(op, v):
        for qp in ("[1,0,3,2]", "[2,3,0,1]"): a(f"{op}_dpp v{v}, v{v}, v{v} quad_perm:{qp} row_mask:0xf bank_mask:0xf")
    def rowreduce(op, vs, steps=(8, 4, 2, 1)):
        for st in steps:
            for v in vs: a(f"{op}_dpp v{v}, v{v}, v{v} row_ror:{st} row_mask:0xf bank_mask:0xf")
    def unpack(dst, src, n):
        for i in range(n):
            a(f"v_lshlrev_b32 v{dst+2*i}, 16, v{src+i}"); a(f"v_and_b32 v{dst+2*i+1}, s{sHI}, v{src+i}")
    def sel4(dst, x0, x1, x2, x3):
        a(f"v_cndmask_b32 v{dst}, v{x0}, v{x1}, {sr(sM1,2)}"); a(f"v_cndmask_b32 v{dst}, v{dst}, v{x2}, {sr(sM2,2)}"); a(f"v_cndmask_b32 v{dst}, v{dst}, v{x3}, {sr(sM3,2)}")
    free = list(range(NS)); slot = {}; nxt = [0]; ool = []; na = [0, 0, 0]; sNF = 60; vCF = vGU0; cmark = {}; L_CF = 4096
    def issue():
        h = nxt[0]; nxt[0] += 1
        s = slot[h] = free.pop(0); b = 16*s
        pat = (kseq + vseq)[h]
        if h == NT: a(f"s_mov_b32 s{sOF}, s{sOF0}")
        for ci, (cp, thr_, base_, mode_) in enumerate(ctrl):
            if h == NT + cp:
                C("progress flag: how many members of the set passed this point earlier tells a late workgroup to use whole-line loads more often")
                if mode_ == "g":
                    a(f"s_lshl_b32 s{sTMP}, s{sKVH}, 9"); a(f"s_add_u32 s{sTMP}, s{sTMP}, {X_OFF+128*(ci+1)}")
                    a(f"s_lshl_b32 s{sTMP2}, s{sJ}, 2")
                else:
                    a(f"s_add_u32 s{sTMP}, s{sKVH}, s{sJ}"); a(f"s_and_b32 s{sTMP}, s{sTMP}, 7"); a(f"s_mul_i32 s{sTMP}, s{sTMP}, 4352"); a(f"s_add_u32 s{sTMP}, s{sTMP}, {X_OFF+4096+512*ci}")
                    a(f"s_lshr_b32 s{sTMP2}, s{sJ}, 3"); a(f"s_lshl_b32 s{sTMP2}, s{sTMP2}, 3"); a(f"s_add_u32 s{sTMP2}, s{sTMP2}, s{sKVH}"); a(f"s_lshl_b32 s{sTMP2}, s{sTMP2}, 2")
                a(f"s_cmp_lg_u32 s{sW}, {(cwave+ci)&3}"); a(f"s_cbranch_scc1 L_noflag{ci}")
                a(f"s_add_u32 s{sTMP2}, s{sTMP2}, s{sTMP}"); a(f"v_mov_b32 v{vT}, s{sT}")
                a("s_mov_b64 exec, 1"); a(f"buffer_store_dword v{vT}, v{vVO}, {sr(rWS,4)}, s{sTMP2} offen {'' if mode_ == 'g' else 'sc1'}"); a("s_mov_b64 exec, -1")
                if not one: a(f"L_noflag{ci}:")
                a(f"v_and_b32 v{vT2}, 31, v{vL}"); a(f"v_lshlrev_b32 v{vT2}, 2, v{vT2}")
                if one:
                    a(f"buffer_load_dword v{vCF+ci}, v{vT2}, {sr(rWS,4)}, s{sTMP} offen sc1"); a(f"L_noflag{ci}:"); cmark[ci] = len(Q)
                else: vm(("cf", ci), f"buffer_load_dword v{vCF+ci}, v{vT2}, {sr(rWS,4)}, s{sTMP} offen sc1")
            if one and h == NT + cp + one:
                a(f"s_cmp_lg_u32 s{sW}, {(cwave+ci)&3}"); a(f"s_cbranch_scc1 L_noeval{ci}")
                a(f"s_waitcnt vmcnt({len(Q) - cmark[ci]})")
                a(f"v_cmp_eq_u32 vcc, s{sT}, v{vCF+ci}"); a(f"s_bcnt1_i32_b32 s{sTMP}, vcc_lo")
                a(f"v_mov_b32 v{vT}, 0"); a(f"v_mov_b32 v{vT2}, s{sTMP}"); a(f"ds_write_b32 v{vT}, v{vT2} offset:{L_CF+4*ci}")
                a(f"L_noeval{ci}:")
            if pat == "abd"[ci]:
                if na[ci] == 0:
                    if one:
                        assert h >= NT + cp + one
                        a(f"v_mov_b32 v{vT}, 0"); a(f"ds_read_b32 v{vT2}, v{vT} offset:{L_CF+4*ci}"); a("s_waitcnt lgkmcnt(0)"); a(f"v_readfirstlane_b32 s{sTMP}, v{vT2}")
                    else:
                        wait(("cf", ci))
                        a(f"v_cmp_eq_u32 vcc, s{sT}, v{vCF+ci}"); a(f"s_bcnt1_i32_b32 s{sTMP}, vcc_lo")
                    a(f"s_mov_b32 s{sNF}, {base_}")
                    if stamps: a(f"v_writelane_b32 v{vTS}, s{sTMP}, 13")
                    for th in thr_: a(f"s_cmp_gt_u32 s{sTMP}, {th}"); a(f"s_addc_u32 s{sNF}, s{sNF}, 0")
                n_ = vseq.count(pat); k_ = na[ci]
                lvl = (k_//2 if k_ % 2 else n_-1-k_//2) if cint else k_
                a(f"s_cmp_le_u32 s{sNF}, {lvl}"); a(f"s_cbranch_scc1 L_es{h}"); na[ci] += 1
        if pat == "e":
            a(f"s_bitcmp1_b32 s{sXV}, 0"); a(f"s_cbranch_scc1 L_es{h}")
        if pat in "abde":
            for i in range(4): vm((h, i), f"buffer_load_dwordx4 {ar(b+4*i,4)}, v{vVW}, {sr(rV,4)}, s{sOF} offen offset:{1024*i} {kvflags}")
            a(f"L_ej{h}:")
            ool.append((h, b))
        for i in range(4 if pat not in "abde" else 0):
            if win and winlo <= h < winhi:
                a(f"s_waitcnt vmcnt({win-1})"); done[0] = max(done[0], len(Q) - (win-1))
            if pat == "r": vm((h, i), f"buffer_load_dwordx4 {ar(b+4*i,4)}, v{vKO}, {sr(rK,4)}, s{sOF} offen offset:{64*i} {kvflags}")
            elif pat == "h": vm((h, i), f"buffer_load_dwordx4 {ar(b+4*i,4)}, v{vKH}, {sr(rK,4)}, s{sOF} offen offset:{2048*(i>>1)+128*(i&1)} {kvflags}")
            elif pat == "c": vm((h, i), f"buffer_load_dwordx4 {ar(b+4*i,4)}, v{vVW}, {sr(rV,4)}, s{sOF} offen offset:{1024*i} {kvflags}")
            else:
                for k in range(2): vm((h, i), f"buffer_load_dwordx2 {ar(b+4*i+2*k,2)}, v{vVW}, {sr(rV,4)}, s{sOF} offen offset:{1024*i+8*k} {kvflags}")
        if h % NT < NT-1: a(f"s_add_u32 s{sOF}, s{sOF}, 0x4000")
        if tstamps and h % 2 == 1:
            a("s_memrealtime s[100:101]"); a("s_waitcnt lgkmcnt(0)"); a(f"v_writelane_b32 v{vTS}, s100, {16+h//2}")
        if h == 2*NT-1 and wot is None: woloads()
    def gemv(vAop, vB, n, tag):
        for i in range(n):
            wait((tag, i))
            c0 = "0" if i == 0 else vr(vA0,4); c1 = "0" if i == 0 else vr(vA1,4)
            a(f"v_mfma_f32_16x16x16_bf16 {vr(vA0,4)}, {vr(vAop+2*i,2)}, {vr(vB+4*i,2)}, {c0}")
            a(f"v_mfma_f32_16x16x16_bf16 {vr(vA1,4)}, {vr(vAop+2*i,2)}, {vr(vB+4*i+2,2)}, {c1}")
    def gemv_store(base):
        a(f"s_mov_b64 exec, {sr(sDG,2)}")
        a(f"ds_write_b128 v{vDGA}, {vr(vA0,4)} offset:{base}"); a(f"ds_write_b128 v{vDGA}, {vr(vA1,4)} offset:{base+16}")
        a("s_mov_b64 exec, -1")
    def gemv_reduce(base, tmp, fold=True):
        for p in range(8): a(f"ds_read_b128 {vr(tmp+4*p,4)}, v{vVO} offset:{base+256*p}")
        for step in (16, 8, 4):
            if step == 16: a("s_waitcnt lgkmcnt(0)")
            for r in range(step): a(f"v_add_f32 v{tmp+r}, v{tmp+r}, v{tmp+step+r}")
        if fold: rowreduce("v_add_f32", [tmp+r for r in range(4)], (8,))
    def add4(d, x, y):
        if pk:
            for r in (0, 2): a(f"v_pk_add_f32 {vr(d+r,2)}, {vr(x+r,2)}, {vr(y+r,2)}")
        else:
            for r in range(4): a(f"v_add_f32 v{d+r}, v{x+r}, v{y+r}")
    def timeout(lbl):
        a(f"s_sub_u32 s{sTMO}, s{sTMO}, 1"); a(f"s_cmp_gt_i32 s{sTMO}, 0"); a(f"s_cbranch_scc1 {lbl}")
    def woloads():
        for r in range(4):
            vm("wo", f"buffer_load_dwordx4 {vr(vWO+4*r,4)}, v{vWOO}, {sr(rDN,4)}, s{sCB} offen offset:{0 if adj else 1024*r} {wflags}")
            if adj and r < 3: a(f"s_add_u32 s{sCB}, s{sCB}, {128*1024}")

    NRG = 28; assert yfull
    def dnloads():
        C("w_down tile: rows j*64 + 16w + 2*(l>>3) + i, columns (wg&7)*64 + 8*(l&7); j >= 28 lies outside the buffer and reads 0")
        a(f"s_mov_b32 s{sRG}, s{sJ}")
        a(f"s_mov_b64 {sr(rDN,2)}, {sr(sDN,2)}"); a(f"s_mov_b32 s{rDN+2}, {1792*1024}"); a(f"s_mov_b32 s{rDN+3}, 0x20000")
        a(f"s_lshl_b32 s{sTMP}, s{sJ}, 2"); a(f"s_add_u32 s{sTMP}, s{sTMP}, s{sW}")
        a(f"s_lshl_b32 s{sTMP}, s{sTMP}, 14"); a(f"s_lshl_b32 s{sTMP2}, s{sKVH}, 7"); a(f"s_add_u32 s{sTMP}, s{sTMP}, s{sTMP2}")
        a(f"v_lshrrev_b32 v{vA0+2}, 3, v{vL}"); a(f"v_and_b32 v{vT}, 7, v{vL}"); a(f"v_lshlrev_b32 v{vT}, 4, v{vT}"); a(f"v_lshl_add_u32 v{vT}, v{vA0+2}, 11, v{vT}")
        for i in range(2): vm(("dn", i), f"buffer_load_dwordx4 {vr(vD+4*i,4)}, v{vT}, {sr(rDN,4)}, s{sTMP} offen offset:{1024*i} {wflags}")
    def tlbtouch():
        if not tlb: return
        C("touch the pages used later (address translation warm-up)")
        a(f"v_mov_b32 v{vXG}, 0")
        if "v" in tlb: vm("tlb", f"buffer_load_dword v{vXO+2}, v{vXG}, {sr(rV,4)}, s{sOF0} offen nt")
        if "o" in tlb: vm("tlb", f"global_load_dword v{vXO+2}, v{vXG}, {sr(sOUT,2)} nt")
        if "w" in tlb:
            a(f"s_lshl_b32 s{sTMP}, s{sKVH}, 19"); a(f"v_mov_b32 v{vXG}, s{sTMP}")
            vm("tlb", f"global_load_dword v{vXO+2}, v{vXG}, {sr(sWO,2)} nt")
    def pfcode():
        if not codepf: return
        C("pull this kernel's code into L2 (each workgroup touches 8 lines)")
        a(f"s_getpc_b64 {sr(sPC,2)}")
        a("L_pc:")
        a(f"v_and_b32 v{vA0}, 7, v0"); a(f"v_lshl_add_u32 v{vA0}, s{sJ}, 3, v{vA0}"); a(f"v_lshlrev_b32 v{vA0}, 7, v{vA0}")
        a(f"v_min_u32 v{vA0}, L_codeend-L_pc-4, v{vA0}")
        vm("pf", f"global_load_dword v{vA0+1}, v{vA0}, {sr(sPC,2)}")
    a(f"{NAME}_kernel:")
    if amp: a("s_memrealtime s[96:97]")
    stamp()
    C("workgroup wg: kv head = wg&7, key split j = wg>>3 (2048 keys); wave w takes 16-key tiles w, w+4, ...")
    a(f"s_load_dwordx2 {sr(rK,2)}, s[0:1], 8"); a(f"s_load_dwordx2 {sr(rV,2)}, s[0:1], 16")
    a("s_load_dwordx16 s[4:19], s[0:1], 0"); a("s_load_dwordx8 s[20:27], s[0:1], 64")
    a("s_cmpk_ge_u32 s2, 256"); a("s_cbranch_scc1 L_done")
    a(f"s_and_b32 s{sKVH}, s2, 7"); a(f"s_lshr_b32 s{sJ}, s2, 3")
    if pfearly: pfcode()
    a(f"s_lshl_b32 s{sOF}, s{sKVH}, 24"); a(f"s_lshl_b32 s{sTMP}, s{sJ}, 19"); a(f"s_or_b32 s{sOF}, s{sOF}, s{sTMP}"); a(f"s_mov_b32 s{sOF0}, s{sOF}")
    a(f"v_lshrrev_b32 v{vT2}, 6, v0"); a(f"v_and_b32 v{vL}, 63, v0")
    a(f"v_lshrrev_b32 v{vSL}, 4, v{vL}"); a(f"v_bfe_u32 v{vBK}, v{vL}, 2, 2")
    a(f"v_lshlrev_b32 v{vT}, 12, v{vT2}"); a(f"v_lshl_add_u32 v{vT}, v{vSL}, 4, v{vT}"); a(f"v_lshl_add_u32 v{vT}, v{vBK}, 8, v{vT}")
    a(f"v_and_b32 v{vKH}, 1, v{vL}"); a(f"v_lshl_add_u32 v{vKH}, v{vKH}, 6, v{vT}"); a(f"v_and_b32 v{vE}, 2, v{vL}"); a(f"v_lshl_add_u32 v{vKH}, v{vE}, 9, v{vKH}")
    a(f"s_lshl_b32 s{rK+2}, 1, 27"); a(f"s_mov_b32 s{rK+3}, 0x20000")
    assert kseq[0] == "h"
    if not w1first:
        a("s_waitcnt lgkmcnt(0)"); stamp()
        assert kseq[:first] == "h"*first
        for _ in range(first): issue()
    a(f"v_readfirstlane_b32 s{sW}, v{vT2}")
    a(f"s_lshl_b32 s{rV+2}, 1, 27"); a(f"s_mov_b32 s{rV+3}, 0x20000")
    a(f"v_and_b32 v{vE}, 3, v{vL}"); a(f"v_and_b32 v{vN}, 15, v{vL}")
    a(f"v_lshl_add_u32 v{vKO}, v{vE}, 10, v{vT}")
    a(f"v_lshlrev_b32 v{vVO}, 4, v{vL}"); a(f"v_lshl_add_u32 v{vVW}, v{vT2}, 12, v{vVO}")
    if not pfearly: pfcode()
    if tlbpos == 0: tlbtouch()
    C("stage 1: xn @ [wq | w_gate | w_up]: 120 blocks of 64 columns x 2 row halves; cb = (wg&7)*30 + j for j < 30, block cb>>1, half cb&1")
    a(f"s_mul_i32 s{sCB}, s{sKVH}, 30"); a(f"s_add_u32 s{sCB}, s{sCB}, s{sJ}")
    a(f"s_movk_i32 s{sCOL}, 184"); a(f"s_cmp_lt_u32 s{sCB}, s{sCOL}"); a(f"s_cselect_b32 s{sCOL}, 128, s{sCOL}")
    if not w1first: a(f"s_cselect_b64 {sr(rW1,2)}, {sr(sG,2)}, {sr(sU,2)}")
    a(f"s_cmp_lt_u32 s{sCB}, 128"); a(f"s_cselect_b32 s{sCOL}, 0, s{sCOL}")
    if not w1first: a(f"s_cselect_b64 {sr(rW1,2)}, {sr(sWQ,2)}, {sr(rW1,2)}")
    a(f"s_movk_i32 s{sSTR}, 3584"); a(f"s_cselect_b32 s{sSTR}, 8192, s{sSTR}")
    a(f"s_sub_u32 s{sCOL}, s{sCB}, s{sCOL}"); a(f"s_lshr_b32 s{sCOL}, s{sCOL}, 1"); a(f"s_lshl_b32 s{sCOL}, s{sCOL}, 7")
    a(f"s_and_b32 s{sTMP2}, s{sCB}, 1"); a(f"s_lshl_b32 s{sTMP2}, s{sTMP2}, 2"); a(f"s_add_u32 s{sTMP2}, s{sTMP2}, s{sW}"); a(f"s_lshl_b32 s{sTMP2}, s{sTMP2}, 6")
    a(f"s_mul_i32 s{sTMP}, s{sTMP2}, s{sSTR}"); a(f"s_add_u32 s{sCOL}, s{sCOL}, s{sTMP}")
    a(f"v_lshrrev_b32 v{vT}, 3, v{vL}")
    a(f"s_lshl_b32 s{sTMP2}, s{sTMP2}, 1"); a(f"v_lshl_add_u32 v{vGO}, v{vT}, 4, s{sTMP2}")
    a(f"s_lshl_b32 s{sTMP}, s{sSTR}, 3")
    a(f"v_mul_u32_u24 v{vGM}, s{sTMP}, v{vT}"); a(f"v_and_b32 v{vT}, 7, v{vL}"); a(f"v_lshl_add_u32 v{vGM}, v{vT}, 4, v{vGM}")
    if dw1 == "full":
        a(f"v_lshrrev_b32 v{vT}, 3, v{vL}"); a(f"v_mul_u32_u24 v{vGM}, s{sTMP}, v{vT}"); a(f"v_and_b32 v{vT}, 7, v{vL}"); a(f"v_lshl_add_u32 v{vGM}, v{vT}, 4, v{vGM}")
        a(f"s_and_b32 s{sTMP}, s{sCOL}, 64"); a(f"s_sub_u32 s{sCOL}, s{sCOL}, s{sTMP}"); a(f"s_mul_i32 s{sTMP}, s{sTMP}, s{sSTR}"); a(f"s_add_u32 s{sCOL}, s{sCOL}, s{sTMP}")
    if dw1 == "consec":
        a(f"v_lshrrev_b32 v{vT}, 2, v{vL}"); a(f"v_mul_u32_u24 v{vGM}, s{sSTR}, v{vT}"); a(f"v_lshl_add_u32 v{vGM}, v{vE}, 4, v{vGM}")
    a(f"v_mov_b32 v{vNM}, {E_OFF}")
    a(f"s_mov_b32 s{rW1+3}, 0x20000")
    a(f"s_lshl_b32 s{rW1+2}, s{sSTR}, 9"); a(f"s_cmp_lt_u32 s{sJ}, 30"); a(f"s_cselect_b32 s{rW1+2}, s{rW1+2}, 0")
    if w1first:
        a("s_waitcnt lgkmcnt(0)"); stamp()
        a(f"s_cmpk_lt_u32 s{sCB}, 184"); a(f"s_cselect_b64 {sr(rW1,2)}, {sr(sG,2)}, {sr(sU,2)}")
        a(f"s_cmpk_lt_u32 s{sCB}, 128"); a(f"s_cselect_b64 {sr(rW1,2)}, {sr(sWQ,2)}, {sr(rW1,2)}")
    if dw1 == "none": a(f"s_min_u32 s{rW1+2}, s{rW1+2}, 1")
    if dw1 == "consec": a(f"s_lshl_b32 s{sSTR}, s{sSTR}, 4")
    vm("x", f"global_load_dword v{vNM}, v{vNM}, {sr(sWS,2)} sc1")
    vm("x", f"global_load_dwordx4 {vr(vSS,4)}, v{vVO}, {sr(sX,2)}")
    vm("x", f"global_load_dwordx4 {vr(vTT,4)}, v{vGO}, {sr(sX,2)}")
    for i in range(8):
        vm(("w1", i), f"buffer_load_dwordx4 {vr(vW+4*i,4)}, v{vGM}, {sr(rW1,4)}, s{sCOL} offen {wflags}")
        if i < 7: a(f"s_add_u32 s{sCOL}, s{sCOL}, s{sSTR}")
    if dnearly: dnloads()
    if tlbpos == 1: tlbtouch()
    if nxt[0] < pre: issue()
    if w1first: issue()
    for k, m in ((sM1, 0x22222222), (sM2, 0x44444444), (sM3, 0x88888888), (sMO, 0xaaaaaaaa)):
        a(f"s_mov_b32 s{k}, {m:#x}"); a(f"s_mov_b32 s{k+1}, s{k}")
    a(f"s_mov_b32 s{sHI}, 0xffff0000"); a(f"s_mov_b32 s{sSC}, {f2u(128**-0.5):#x}"); a(f"s_mov_b32 s{sL2E}, {f2u(L2E):#x}")
    a(f"s_mov_b32 s{sTMO}, {tmo}")
    a(f"s_mov_b64 {sr(rWS,2)}, {sr(sWS,2)}"); a(f"s_mov_b32 s{rWS+2}, {WS_BYTES:#x}"); a(f"s_mov_b32 s{rWS+3}, 0x20000")
    a(f"s_mov_b32 s{sDG}, 0x00f0000f"); a(f"s_mov_b32 s{sDG+1}, 0xf0000f00")
    C("masks that place one bf16 at element l&3 (K=16 MFMA) / l&7 (K=32 MFMA) of an A operand")
    a(f"v_and_b32 v{vT}, 1, v{vL}"); a(f"v_lshlrev_b32 v{vT}, 4, v{vT}"); a(f"v_mov_b32 v{vM1}, 0xffff")
    wait("x")
    a(f"v_lshlrev_b32 v{vT2}, v{vT}, v{vM1}")
    a(f"v_cmp_gt_u32 vcc, 2, v{vE}"); a(f"v_cndmask_b32 v{vM0}, 0, v{vT2}, vcc"); a(f"v_xor_b32 v{vM1}, v{vT2}, v{vM0}")
    a(f"v_bfe_u32 v{vT}, v{vL}, 1, 2")
    for t in range(4):
        a(f"v_cmp_eq_u32 vcc, {t}, v{vT}"); a(f"v_cndmask_b32 v{vMK+t}, 0, v{vT2}, vcc")
    a(f"v_readfirstlane_b32 s{sT}, v{vNM}")
    C("LayerNorm (bf16 rounding after every step, as the reference does)")
    F = vF
    unpack(F, vSS, 4)
    a(f"v_add_f32 v{vA0}, v{F}, v{F+1}")
    for i in range(2, 8): a(f"v_add_f32 v{vA0}, v{vA0}, v{F+i}")
    rowreduce("v_add_f32", (vA0,)); allreduce_rows("v_add_f32", vA0, vT)
    a(f"v_mul_f32 v{vA0}, {f2u(1/512):#x}, v{vA0}")
    for i in range(8): a(f"v_sub_f32 v{F+i}, v{F+i}, v{vA0}")
    a(f"v_mul_f32 v{vA1}, v{F}, v{F}")
    for i in range(1, 8): a(f"v_fmac_f32 v{vA1}, v{F+i}, v{F+i}")
    rowreduce("v_add_f32", (vA1,)); allreduce_rows("v_add_f32", vA1, vT)
    a(f"v_mul_f32 v{vA1}, {f2u(1/512):#x}, v{vA1}")
    a(f"v_cvt_pk_bf16_f32 v{vA0}, v{vA0}, v{vA1}")
    a(f"v_and_b32 v{vA1}, s{sHI}, v{vA0}"); a(f"v_lshlrev_b32 v{vA0}, 16, v{vA0}")
    a(f"v_add_f32 v{vA1}, {f2u(1e-5):#x}, v{vA1}")
    a(f"v_cvt_pk_bf16_f32 v{vA1}, v{vA1}, v{vA1}"); a(f"v_and_b32 v{vA1}, s{sHI}, v{vA1}")
    a(f"v_sqrt_f32 v{vA1}, v{vA1}")
    a(f"v_cvt_pk_bf16_f32 v{vA1}, v{vA1}, v{vA1}"); a(f"v_and_b32 v{vA1}, s{sHI}, v{vA1}")
    a(f"v_rcp_f32 v{vA1}, v{vA1}")
    unpack(F, vTT, 4)
    for i in range(8): a(f"v_sub_f32 v{F+i}, v{F+i}, v{vA0}")
    for i in range(4): a(f"v_cvt_pk_bf16_f32 v{vTT+i}, v{F+2*i}, v{F+2*i+1}")
    unpack(F, vTT, 4)
    for i in range(8): a(f"v_mul_f32 v{F+i}, v{F+i}, v{vA1}")
    for i in range(8): a(f"v_cvt_pk_bf16_f32 v{F+i}, v{F+i}, v{F+i}")
    for i in range(8):
        for t in range(4): a(f"v_and_b32 v{vS+4*i+t}, v{F+i}, v{vMK+t}")
    while nxt[0] < pre: issue()
    C("stage-1 GEMV: 64 rows x 64 columns per wave")
    for i in range(8):
        wait(("w1", i))
        a(f"v_mfma_f32_16x16x32_bf16 {vr(vA0,4)}, {vr(vS+4*i,4)}, {vr(vW+4*i,4)}, {'0' if i == 0 else vr(vA0,4)}")
    C("hand-off tag of this launch = epoch word + 0x01010101 (every byte differs from the previous launch's tag)")
    a(f"s_add_u32 s{sT}, s{sT}, 0x01010101")
    for k in range(4): a(f"s_bfe_u32 s{sTB+k}, s{sT}, {(8<<16)|(8*k):#x}")
    for k in range(4): a(f"s_and_b32 s{sTN[k]}, s{sTB+k}, {AM}")
    a(f"s_lshl_b32 s{sTMP}, s{sW}, 9"); a(f"v_lshl_add_u32 v{vDGA}, v{vSL}, 7, s{sTMP}"); a(f"v_lshl_add_u32 v{vDGA}, v{vE}, 5, v{vDGA}")
    a(f"v_mov_b32 v{vFF}, 0xff")
    C("lanes with (l>>5) == ((l>>3)&1) hold columns 8*(l&7) + 4*((l>>4)&1) + r of row group l>>5")
    a(f"v_and_b32 v{vT}, 7, v{vL}"); a(f"v_lshl_add_u32 v{vT}, v{vT}, 5, s{sTMP}"); a(f"v_and_b32 v{vT2}, 16, v{vL}"); a(f"v_add_u32 v{vT}, v{vT}, v{vT2}")
    a(f"v_and_b32 v{vT2}, 32, v{vL}"); a(f"v_lshl_add_u32 v{vT}, v{vT2}, 3, v{vT}")
    if yfull: a(f"v_mov_b32 v{vDGA}, v{vT}")
    a("s_mov_b32 exec_lo, 0x00ff00ff"); a("s_mov_b32 exec_hi, 0xff00ff00")
    a(f"ds_write_b128 v{vT}, {vr(vA0,4)} offset:{L_S1}")
    a("s_mov_b64 exec, -1")
    a("s_waitcnt lgkmcnt(0)")
    a("s_barrier")
    a(f"s_cmp_lg_u32 s{sW}, 0"); a("s_cbranch_scc1 L_pub1_done")
    a(f"s_cmp_eq_u32 s{rW1+2}, 0"); a("s_cbranch_scc1 L_pub1_done")
    a("s_mov_b64 exec, 0xffff")
    a(f"s_lshr_b32 s{sTMP}, s{sCB}, 1"); a(f"s_lshl_b32 s{sTMP}, s{sTMP}, 8"); a(f"s_and_b32 s{sTMP2}, s{sCB}, 1"); a(f"s_mul_i32 s{sTMP2}, s{sTMP2}, {HALF}")
    a(f"s_add_u32 s{sTMP}, s{sTMP}, s{sTMP2}"); a(f"s_add_u32 s{sTMP}, s{sTMP}, {A1_OFF}")
    gemv_reduce(L_S1, vW, False)
    a(f"v_mov_b32 v{vT}, {AM}")
    for r in range(4): a(f"v_add_u32 v{vW+r}, {(AM+1)//2}, v{vW+r}")
    for r in range(4): a(f"v_bfi_b32 v{vA0+r}, v{vT}, s{sTB+r}, v{vW+r}")
    a(f"buffer_store_dwordx4 {vr(vA0,4)}, v{vVO}, {sr(rWS,4)}, s{sTMP} offen sc1")
    a("s_mov_b64 exec, -1")
    a("L_pub1_done:")
    C("wave 1 posts {tag, XCD id}; a workgroup that later reads its own value from all 32 members of its kv-head group")
    C("knows that they share one L2 and may hand data over with plain stores; otherwise it writes through (sc1)")
    a(f"s_getreg_b32 s{sTMP}, hwreg(HW_REG_XCC_ID, 0, 4)"); a(f"s_lshl_b32 s{sXV}, s{sT}, 4"); a(f"s_or_b32 s{sXV}, s{sXV}, s{sTMP}")
    a(f"s_cmp_lg_u32 s{sW}, 1"); a("s_cbranch_scc1 L_nox")
    a(f"s_lshl_b32 s{sTMP}, s{sKVH}, 9"); a(f"s_lshl_b32 s{sTMP2}, s{sJ}, 2"); a(f"s_add_u32 s{sTMP}, s{sTMP}, s{sTMP2}"); a(f"s_add_u32 s{sTMP}, s{sTMP}, {X_OFF}")
    a(f"v_mov_b32 v{vT}, s{sXV}")
    a("s_mov_b64 exec, 1"); a(f"buffer_store_dword v{vT}, v{vVO}, {sr(rWS,4)}, s{sTMP} offen"); a("s_mov_b64 exec, -1")
    a("L_nox:")
    if pbar: a("s_barrier")
    stamp()
    issue(); issue()
    if not dnearly: dnloads()
    if tlbpos == 2: tlbtouch()
    a(f"v_lshrrev_b32 v{vT2}, 3, v{vL}")
    a(f"s_lshl_b32 s{sTMP}, s{sJ}, 2"); a(f"s_add_u32 s{sSTR}, s{sTMP}, s{sW}"); a(f"s_mov_b32 s{sCOL}, s{sKVH}")
    C("addresses used by the later hand-offs")
    a(f"v_and_b32 v{vT}, 7, v{vL}"); a(f"v_xor_b32 v{vT}, v{vT}, v{vSL}"); a(f"v_lshlrev_b32 v{vT}, 4, v{vT}")
    a(f"v_lshl_add_u32 v{vOAW}, v{vN}, 7, v{vT}"); a(f"s_lshl_b32 s{sTMP}, s{sW}, 11"); a(f"v_add_u32 v{vOAW}, s{sTMP}, v{vOAW}"); a(f"v_xor_b32 v{vOAW1}, 64, v{vOAW}")
    a(f"v_lshrrev_b32 v{vT}, 3, v{vL}"); a(f"v_xor_b32 v{vOAR}, v{vT}, v{vL}"); a(f"v_and_b32 v{vOAR}, 7, v{vOAR}"); a(f"v_lshlrev_b32 v{vOAR}, 4, v{vOAR}")
    a(f"v_lshl_add_u32 v{vOAR}, v{vT}, 7, v{vOAR}"); a(f"s_and_b32 s{sTMP}, s{sW}, {0 if la1 else 1}"); a(f"s_lshl_b32 s{sTMP}, s{sTMP}, 10"); a(f"v_add_u32 v{vOAR}, s{sTMP}, v{vOAR}")
    a(f"s_lshl_b32 s{sPM}, s{sKVH}, 5"); a(f"s_add_u32 s{sPM}, s{sPM}, s{sJ}")
    a(f"s_lshl_b32 s{sPP}, s{sPM}, 11"); a(f"s_add_u32 s{sPP}, s{sPP}, s{sTMP}"); a(f"s_add_u32 s{sPP}, s{sPP}, {P_OFF}")
    a(f"s_lshl_b32 s{sPS}, s{sPM}, 9"); a(f"s_add_u32 s{sPS}, s{sPS}, {S_OFF}")
    a(f"s_lshl_b32 s{sPM}, s{sPM}, 6"); a(f"s_add_u32 s{sPM}, s{sPM}, {ML_OFF}")
    a(f"s_lshl_b32 s{sTMP}, s{sW}, 2"); a(f"s_add_u32 s{sTMP}, s{sTMP}, {L_ML}"); a(f"v_lshl_add_u32 v{vMLW}, v{vBK}, 4, s{sTMP}"); a(f"v_lshlrev_b32 v{vMLR}, 4, v{vE}")
    a(f"v_lshl_add_u32 v{vSRW}, v{vN}, 1, v{vSL}"); a(f"v_lshlrev_b32 v{vSRW}, 4, v{vSRW}"); a(f"s_lshl_b32 s{sTMP}, s{sW}, 9"); a(f"v_add_u32 v{vSRW}, s{sTMP}, v{vSRW}")
    a(f"v_lshlrev_b32 v{vL2K}, 11, v{vL}")
    if adj:
        C("wo tile: instruction i = head i, lane row (l>>4) = d offset (0,2,1,3)")
        a(f"v_lshrrev_b32 v{vT}, 5, v{vL}"); a(f"v_and_b32 v{vWOO}, 16, v{vL}"); a(f"v_lshlrev_b32 v{vWOO}, 7, v{vWOO}"); a(f"v_lshl_add_u32 v{vWOO}, v{vT}, 10, v{vWOO}"); a(f"v_lshl_add_u32 v{vWOO}, v{vN}, 4, v{vWOO}")
    else: a(f"v_lshlrev_b32 v{vWOO}, 4, v{vN}"); a(f"v_lshl_add_u32 v{vWOO}, v{vSL}, 17, v{vWOO}")
    C("final-stage role: wave 2 of workgroups with j < 16 owns output columns 4f..4f+3, f = (wg&7)*16 + j")
    a(f"s_lshl_b32 s{sF}, s{sKVH}, 4"); a(f"s_and_b32 s{sTMP}, s{sJ}, 15"); a(f"s_add_u32 s{sF}, s{sF}, s{sTMP}")
    a(f"s_cmp_{'ge' if fhi else 'lt'}_u32 s{sJ}, 16"); a(f"s_cselect_b32 s{sF}, s{sF}, 999")
    a(f"s_cmp_eq_u32 s{sW}, 2"); a(f"s_cselect_b32 s{sF}, s{sF}, 999")
    while nxt[0] < qpos: issue()
    C("gather: wave w sums, rounds and shares dims 32w..32w+31 of q (MFMA B layout, head = (l>>2)&3); plus this wave's g / u rows")
    a(f"v_lshlrev_b32 v{vGO}, 9, v{vBK}"); a(f"v_lshl_add_u32 v{vGO}, v{vSL}, 5, v{vGO}")
    a(f"s_lshl_b32 s{sCB}, s{sKVH}, 11"); a(f"s_lshl_b32 s{sTMP}, s{sW}, 7"); a(f"s_add_u32 s{sCB}, s{sCB}, s{sTMP}"); a(f"s_add_u32 s{sCB}, s{sCB}, {A1_OFF}"); a(f"s_add_u32 s{sGM}, s{sCB}, {HALF}")
    a(f"v_lshlrev_b32 v{vGM}, 3, v{vT2}")
    a(f"s_min_u32 s{sSTR}, s{sSTR}, {NRG*4-1}")
    a(f"s_lshl_b32 s{sGO0}, s{sSTR}, {6 if yfull else 7}"); a(f"s_add_u32 s{sGO0}, s{sGO0}, {A1_OFF + 4096*4}"); a(f"s_add_u32 s{sGO1}, s{sGO0}, {1792*4}")
    a(f"s_add_u32 s{sTLO}, s{sGO0}, {HALF}"); a(f"s_add_u32 s{sTHI}, s{sGO1}, {HALF}")
    def qloads(fl, cnt):
        e = vm if cnt else (lambda tag, text: a(text))
        for half, so in enumerate((sCB, sGM)):
            for h in range(2): e("q", f"buffer_load_dwordx4 {vr(vW+8*half+4*h,4)}, v{vGO}, {sr(rWS,4)}, s{so} offen offset:{16*h} {fl}")
        for k, so in enumerate((sGO0, sGO1, sTLO, sTHI)): e("q", f"buffer_load_dwordx2 {vr(vGU+2*k,2)}, v{vGM}, {sr(rWS,4)}, s{so} offen {fl}")
    qloads(q1, True)
    while nxt[0] < NS: issue()
    a(f"v_and_b32 v{vT}, {8 if yfull else 4}, v{vL}"); a(f"v_lshlrev_b32 v{vT}, {1 if yfull else 2}, v{vT}"); a(f"v_lshrrev_b32 v{vT}, v{vT}, s{sT}")
    a(f"v_and_b32 v{vTA}, {AM}, v{vT}"); a(f"v_bfe_u32 v{vTB_}, v{vT}, 8, {abits}")
    a(f"s_lshl_b32 s{sTMP}, s{sW}, 10"); a(f"v_add_u32 v{vXG}, s{sTMP}, v{vVO}")
    wait("q")
    a("L_qchk:")
    for i in range(16): a(f"v_xor_b32 v{vW+i}, s{sTN[i&3]}, v{vW+i}")
    for i in range(8): a(f"v_xor_b32 v{vGU+i}, v{vTB_ if i&1 else vTA}, v{vGU+i}")
    a(f"v_or_b32 v{vT}, v{vW}, v{vW+1}")
    for i in range(2, 16, 2): a(f"v_or3_b32 v{vT}, v{vT}, v{vW+i}, v{vW+i+1}")
    for i in range(0, 8, 2): a(f"v_or3_b32 v{vT}, v{vT}, v{vGU+i}, v{vGU+i+1}")
    a(f"v_and_b32 v{vT}, {AM}, v{vT}")
    a(f"v_cmp_ne_u32 vcc, 0, v{vT}"); a("s_cbranch_vccnz L_qretry")
    a("L_qok:")
    for i in range(8): a(f"v_add_f32 v{vW+i}, v{vW+i}, v{vW+8+i}")
    for i in range(4): a(f"v_cvt_pk_bf16_f32 v{vW+i}, v{vW+2*i}, v{vW+2*i+1}")
    a(f"ds_write_b128 v{vXG}, {vr(vW,4)} offset:{L_Q}")
    for i in range(4): a(f"v_add_f32 v{vGU+i}, v{vGU+i}, v{vGU+4+i}")
    for i in range(4): a(f"v_cvt_pk_bf16_f32 v{vGU+i}, v{vGU+i}, v{vGU+i}")
    a("s_waitcnt lgkmcnt(0)"); a("s_barrier")
    for jj in range(4): a(f"ds_read_b128 {vr(vQ+4*jj,4)}, v{vVO} offset:{L_Q+1024*jj}")
    a("s_waitcnt lgkmcnt(0)")
    for b in range(2):
        for t in range(4): a(f"v_cndmask_b32 v{vQH+4*b+t}, v{vQ+8*b+t}, v{vQ+8*b+4+t}, {sr(sMO,2)}")
    stamp()
    def ystage():
        C("GLU: h = bf16(bf16(sigmoid(g)) * u), partial y = h @ w_down tile")
        for i in range(4): a(f"v_and_b32 v{vGU+i}, s{sHI}, v{vGU+i}")
        for i in range(2): a(f"v_mul_f32 v{vGU+i}, {f2u(-L2E):#x}, v{vGU+i}")
        for i in range(2): a(f"v_exp_f32 v{vGU+i}, v{vGU+i}")
        for i in range(2): a(f"v_add_f32 v{vGU+i}, 1.0, v{vGU+i}")
        for i in range(2): a(f"v_rcp_f32 v{vGU+i}, v{vGU+i}")
        for i in range(2): a(f"v_cvt_pk_bf16_f32 v{vGU+i}, v{vGU+i}, v{vGU+i}")
        for i in range(2): a(f"v_and_b32 v{vGU+i}, s{sHI}, v{vGU+i}")
        for i in range(2): a(f"v_mul_f32 v{vGU+i}, v{vGU+i}, v{vGU+2+i}")
        for i in range(2): a(f"v_cvt_pk_bf16_f32 v{vGU+i}, v{vGU+i}, v{vGU+i}")
        if yfull:
            for i in range(2):
                for t in range(4): a(f"v_and_b32 v{vXX+4*i+t}, v{vGU+i}, v{vMK+t}")
            for i in range(2):
                wait(("dn", i)); a(f"v_mfma_f32_16x16x32_bf16 {vr(vA0,4)}, {vr(vXX+4*i,4)}, {vr(vD+4*i,4)}, {'0' if i == 0 else vr(vA0,4)}")
        else:
            for i in range(2):
                a(f"v_and_b32 v{vXX+2*i}, v{vGU+i}, v{vM0}"); a(f"v_and_b32 v{vXX+2*i+1}, v{vGU+i}, v{vM1}")
            gemv(vXX, vD, 2, "dn")
        C("gather addresses: (m,l) lane = (producer 4*(l>>4)+(l&3), head (l>>2)&3); o lane = (producer l>>2, head l&3)")
        if adj: a(f"v_lshrrev_b32 v{vGO}, 2, v{vL}"); a(f"v_lshlrev_b32 v{vGO}, 11, v{vGO}"); a(f"v_lshl_add_u32 v{vGO}, v{vE}, 4, v{vGO}")
        else: a(f"v_lshlrev_b32 v{vGO}, 11, v{vN}"); a(f"v_lshl_add_u32 v{vGO}, v{vSL}, 4, v{vGO}")
        a(f"v_lshlrev_b32 v{vGM}, 4, v{vBK}"); a(f"v_lshl_add_u32 v{vGM}, v{vE}, 6, v{vGM}"); a(f"v_lshl_add_u32 v{vGM}, v{vSL}, 8, v{vGM}")
        a(f"s_and_b32 s{sTMP}, s{sJ}, 28"); a(f"s_add_u32 s{sSTR}, s{sTMP}, s{sW}")
        a(f"s_lshl_b32 s{sTMP}, s{sKVH}, 16"); a(f"s_lshl_b32 s{sTMP2}, s{sSTR}, 6"); a(f"s_add_u32 s{sGO0}, s{sTMP}, s{sTMP2}")
        a(f"s_add_u32 s{sGO0}, s{sGO0}, {P_OFF}"); a(f"s_add_u32 s{sGO1}, s{sGO0}, 0x8000")
        a(f"s_lshl_b32 s{sGM}, s{sKVH}, 11"); a(f"s_add_u32 s{sGM}, s{sGM}, {ML_OFF}")
        a(f"s_lshl_b32 s{sTMP}, s{sKVH}, 19"); a(f"s_lshl_b32 s{sTMP2}, s{sSTR}, 12"); a(f"s_add_u32 s{sCB}, s{sTMP}, s{sTMP2}")
        a(f"s_and_b32 s{sTMP}, s{sJ}, 3"); a(f"s_lshl_b32 s{sTMP}, s{sTMP}, 8"); a(f"s_add_u32 s{sCB}, s{sCB}, s{sTMP}")
        a(f"s_mov_b64 {sr(rDN,2)}, {sr(sWO,2)}"); a(f"s_mov_b32 s{rDN+2}, {4096*1024}")
        if yfull:
            a("s_mov_b32 exec_lo, 0x00ff00ff"); a("s_mov_b32 exec_hi, 0xff00ff00")
            a(f"ds_write_b128 v{vDGA}, {vr(vA0,4)} offset:{L_Y}"); a("s_mov_b64 exec, -1")
        else: gemv_store(L_Y)
    def ypublish(cnt):
        C("wave 3 publishes this workgroup's y partial")
        a(f"s_cmp_lg_u32 s{sW}, 3"); a("s_cbranch_scc1 L_noypub")
        a(f"s_cmp_ge_u32 s{sRG}, {NRG}"); a("s_cbranch_scc1 L_noypub")
        if cnt:
            a(f"v_mov_b32 v{vT}, 0")
            a("L_ycnt:")
            a(f"ds_read_b32 v{vT2}, v{vT} offset:{L_CNT}"); a("s_waitcnt lgkmcnt(0)")
            a(f"v_cmp_ne_u32 vcc, 4, v{vT2}"); a("s_cbranch_vccz L_ycntok"); timeout("L_ycnt")
            a("L_ycntok:")
        a("s_mov_b64 exec, 0xffff")
        a(f"s_lshl_b32 s{sTMP}, s{sRG}, 11"); a(f"s_lshl_b32 s{sTMP2}, s{sCOL}, {8 if yfull else 7}"); a(f"s_add_u32 s{sTMP}, s{sTMP}, s{sTMP2}"); a(f"s_add_u32 s{sTMP}, s{sTMP}, {Y_OFF}")
        gemv_reduce(L_Y, vW, not yfull)
        for r in range(4): a(f"v_add_u32 v{vW+r}, 0x80, v{vW+r}")
        for r in range(4): a(f"v_bfi_b32 v{vW+r}, v{vFF}, s{sTB+r}, v{vW+r}")
        if yfull:
            C("the consumers of column group wg&7 are members of this group")
            a(f"s_cmp_eq_u32 s{sFAST}, 0"); a("s_cbranch_scc1 L_yslow")
            a(f"buffer_store_dwordx4 {vr(vW,4)}, v{vVO}, {sr(rWS,4)}, s{sTMP} offen")
            a("L_ydone:")
        else:
            a("s_mov_b64 exec, 0xff")
            a(f"buffer_store_dwordx4 {vr(vW,4)}, v{vVO}, {sr(rWS,4)}, s{sTMP} offen sc1")
        a("s_mov_b64 exec, -1")
        a("L_noypub:")
    def setloc():
        C("lanes of the s-partial store whose consumers are members of this (proven local) group")
        a(f"s_and_b32 s{sTMP}, s{sJ}, 3"); a(f"s_lshr_b32 s{sTMP2}, s{sKVH}, 1"); a(f"s_cmp_eq_u32 s{sTMP}, s{sTMP2}"); a(f"s_cselect_b32 s{sLOC}, s{sFAST}, 0")
        a(f"s_mul_i32 s{sLOC}, s{sLOC}, 0xffff"); a(f"s_and_b32 s{sTMP}, s{sKVH}, 1"); a(f"s_lshl_b32 s{sTMP}, s{sTMP}, 4"); a(f"s_lshl_b32 s{sLOC}, s{sLOC}, s{sTMP}")
    C("pass 1: scores.  lane l keeps s[key 4*(l&3) + (l>>4) of the tile][head (l>>2)&3], one register per tile")
    for t in range(NT):
        b = 16*slot[t]
        wait((t, 3))
        if kseq[t] == "r":
            for i in range(4): a(f"v_mfma_f32_16x16x32_bf16 {vr(vSS,4)}, {ar(b+4*i,4)}, {vr(vQ+4*i,4)}, {'0' if i == 0 else vr(vSS,4)}")
        else:
            for i in (0, 2, 1, 3): a(f"v_mfma_f32_16x16x32_bf16 {vr(vSS+4*(i>>1),4)}, {ar(b+4*i,4)}, {vr(vQH+4*(i&1),4)}, {'0' if i&1 == 0 else vr(vSS+4*(i>>1),4)}")
        free.append(slot[t])
        depth = nxt[0] - (t+1)
        if depth < RD or (t % (kskip+1) == 0): issue()
        x = vS + t
        if kseq[t] == "r": sel4(x, vSS, vSS+1, vSS+2, vSS+3)
        else:
            sel4(vT, vSS+2, vSS+1, vSS+6, vSS+5); sel4(x, vSS, vSS+3, vSS+4, vSS+7)
            a(f"v_add_f32_dpp v{x}, v{vT}, v{x} quad_perm:[1,0,3,2] row_mask:0xf bank_mask:0xf")
        a(f"v_cvt_pk_bf16_f32 v{x}, v{x}, v{x}"); a(f"v_and_b32 v{x}, s{sHI}, v{x}"); a(f"v_mul_f32 v{x}, s{sSC}, v{x}")
        a(f"v_cvt_pk_bf16_f32 v{x}, v{x}, v{x}"); a(f"v_and_b32 v{x}, s{sHI}, v{x}")
        if t == 1: a(f"v_max_f32 v{vNM}, v{x-1}, v{x}")
        elif t % 2 == 1: a(f"v_max3_f32 v{vNM}, v{vNM}, v{x-1}, v{x}")
        if t == yt: ystage()
        if t == ypub and not ybar: ypublish(True)
        if t == xget:
            C("lanes 0-31 read the group's XCD words; lanes 32-63 pull a progress-flag line into L2")
            if xone: assert len(ctrl) <= 1; a(f"s_cmp_lg_u32 s{sW}, 1"); a("s_cbranch_scc1 L_noxg")
            a(f"s_lshl_b32 s{sTMP}, s{sKVH}, 9"); a(f"s_add_u32 s{sTMP}, s{sTMP}, {X_OFF}")
            a(f"s_min_u32 s{sTMP2}, s{sW}, {len(ctrl)}"); a(f"s_lshl_b32 s{sTMP2}, s{sTMP2}, 2")
            a(f"v_and_b32 v{vT}, 31, v{vL}"); a(f"v_lshlrev_b32 v{vT}, 2, v{vT}"); a(f"v_and_b32 v{vT2}, 32, v{vL}"); a(f"v_mad_u32_u24 v{vT}, v{vT2}, s{sTMP2}, v{vT}")
            if xone: a(f"buffer_load_dword v{vXG}, v{vT}, {sr(rWS,4)}, s{sTMP} offen sc1"); a("L_noxg:"); xmark = len(Q)
            else: vm("xg", f"buffer_load_dword v{vXG}, v{vT}, {sr(rWS,4)}, s{sTMP} offen sc1")
        if t == xget + RD + 1:
            if xone:
                assert done[0] > xmark
                a(f"s_cmp_lg_u32 s{sW}, 1"); a("s_cbranch_scc1 L_noxg2")
            else: wait("xg")
            a(f"v_cmp_ne_u32 vcc, s{sXV}, v{vXG}"); a("s_cmp_eq_u32 vcc_lo, 0"); a(f"s_cselect_b32 s{sFAST}, 1, 0")
            if force is not None: a(f"s_mov_b32 s{sFAST}, {force}")
            if xone: a(f"v_mov_b32 v{vT}, 0"); a(f"v_mov_b32 v{vT2}, s{sFAST}"); a(f"ds_write_b32 v{vT}, v{vT2} offset:{L_CF+16}"); a("L_noxg2:")
            else: setloc()
    C("wave max per head, e = exp(s - max), wave sum")
    allreduce_quad("v_max_f32", vNM); allreduce_rows("v_max_f32", vNM, vT)
    a(f"v_mul_f32 v{vNM}, {f2u(-L2E):#x}, v{vNM}")
    for t0 in range(0, NT, 4):
        for t in range(t0, t0+4): a(f"v_fma_f32 v{vS+t}, v{vS+t}, s{sL2E}, v{vNM}")
        for t in range(t0, t0+4): a(f"v_exp_f32 v{vS+t}, v{vS+t}")
        if t0 == 0: a(f"v_add_f32 v{vLS}, v{vS}, v{vS+1}"); a(f"v_add_f32 v{vT2}, v{vS+2}, v{vS+3}")
        else:
            for t in range(t0, t0+4): a(f"v_add_f32 v{vLS if t&1 else vT2}, v{vLS if t&1 else vT2}, v{vS+t}")
    a(f"v_add_f32 v{vLS}, v{vLS}, v{vT2}")
    allreduce_quad("v_add_f32", vLS); allreduce_rows("v_add_f32", vLS, vT)
    if mlbar:
        C("wave 0 merges the four (max, sum) pairs and publishes them; the others hold their loads until the store is out")
        a(f"ds_write2_b32 v{vMLW}, v{vNM}, v{vLS} offset0:0 offset1:16")
        if la1 or la2:
            a(f"v_lshlrev_b32 v{vT}, 2, v{vL}"); a(f"v_mov_b32 v{vT2}, 0"); a(f"ds_write_b32 v{vT}, v{vT2} offset:{L_CNT}"); a(f"ds_write_b32 v{vT}, v{vT2} offset:{L_CNT+256}")
        if one: a(f"v_lshlrev_b32 v{vT}, 2, v{vE}"); a(f"v_mov_b32 v{vT2}, 16"); a(f"ds_write_b32 v{vT}, v{vT2} offset:{L_CF}")
        a("s_waitcnt lgkmcnt(0)"); a("s_barrier")
        if xone:
            a(f"v_mov_b32 v{vT}, 0"); a(f"ds_read_b32 v{vT2}, v{vT} offset:{L_CF+16}"); a("s_waitcnt lgkmcnt(0)"); a(f"v_readfirstlane_b32 s{sFAST}, v{vT2}")
            setloc()
        if ybar: ypublish(False)
        a(f"s_cmp_lg_u32 s{sW}, 0"); a("s_cbranch_scc1 L_nomlpub")
        a(f"ds_read_b128 {vr(vSS,4)}, v{vMLR} offset:{L_ML}"); a(f"ds_read_b128 {vr(vTT,4)}, v{vMLR} offset:{L_ML+64}")
        a("s_waitcnt lgkmcnt(0)")
    else:
        C("the wave that arrives last merges the four (max, sum) pairs and publishes them")
        a(f"ds_write2_b32 v{vMLW}, v{vNM}, v{vLS} offset0:0 offset1:16")
        a(f"v_mov_b32 v{vT}, 0"); a(f"v_mov_b32 v{vT2}, 1")
        a("s_mov_b64 exec, 1"); a(f"ds_add_rtn_u32 v{vT2}, v{vT}, v{vT2} offset:{L_CNT+4}"); a("s_mov_b64 exec, -1")
        a(f"ds_read_b128 {vr(vSS,4)}, v{vMLR} offset:{L_ML}"); a(f"ds_read_b128 {vr(vTT,4)}, v{vMLR} offset:{L_ML+64}")
        a("s_waitcnt lgkmcnt(0)")
        a(f"v_readfirstlane_b32 s{sTMP}, v{vT2}"); a(f"s_cmp_lg_u32 s{sTMP}, 3"); a("s_cbranch_scc1 L_nomlpub")
    if stprobe: a(f"s_memrealtime s[{sST+2}:{sST+3}]")
    a(f"v_min3_f32 v{vA1}, v{vSS}, v{vSS+1}, v{vSS+2}"); a(f"v_min_f32 v{vA1}, v{vA1}, v{vSS+3}")
    for w in range(4): a(f"v_sub_f32 v{vSS+w}, v{vA1}, v{vSS+w}")
    for w in range(4): a(f"v_exp_f32 v{vSS+w}, v{vSS+w}")
    a(f"v_mov_b32 v{vA1+2}, s{sT}"); a(f"v_mov_b32 v{vA1+3}, s{sT}")
    a(f"v_mul_f32 v{vA1+1}, v{vSS}, v{vTT}")
    for w in range(1, 4): a(f"v_fmac_f32 v{vA1+1}, v{vSS+w}, v{vTT+w}")
    a("s_mov_b64 exec, 0xf")
    a(f"s_cmp_eq_u32 s{sFAST}, 0"); a("s_cbranch_scc1 L_mlslow")
    a(f"buffer_store_dwordx4 {vr(vA1,4)}, v{vVO}, {sr(rWS,4)}, s{sPM} offen")
    a("L_mldone:")
    a("s_mov_b64 exec, -1")
    a("L_nomlpub:")
    if mlbar: a("s_barrier")
    if fine: stamp()
    while nxt[0] < NT + mpos: issue()
    def mloads(fl, cnt):
        e = vm if cnt else (lambda tag, text: a(text))
        e("m", f"buffer_load_dwordx4 {vr(vW,4)}, v{vGM}, {sr(rWS,4)}, s{sGM} offen {fl}")
        e("m", f"buffer_load_dwordx4 {vr(vW+4,4)}, v{vGM}, {sr(rWS,4)}, s{sGM} offen offset:1024 {fl}")
    mloads(m1, True)
    while nxt[0] < NT + NS: issue()
    wait("m")
    a("L_mchk:")
    a(f"v_xor_b32 v{vT}, s{sT}, v{vW+2}"); a(f"v_xor_b32 v{vT2}, s{sT}, v{vW+6}"); a(f"v_or_b32 v{vT}, v{vT}, v{vT2}")
    a(f"v_cmp_ne_u32 vcc, 0, v{vT}"); a("s_cbranch_vccnz L_mretry")
    a("L_mok:")
    C("row max M and row sum L over all 65536 keys; p = bf16(e * exp(m_wave - M) / L)")
    a(f"v_min_f32 v{vT2}, v{vW}, v{vW+4}")
    allreduce_quad("v_min_f32", vT2); allreduce_rows("v_min_f32", vT2, vT)
    a(f"v_sub_f32 v{vW}, v{vT2}, v{vW}"); a(f"v_sub_f32 v{vW+4}, v{vT2}, v{vW+4}"); a(f"v_sub_f32 v{vNM}, v{vT2}, v{vNM}")
    a(f"v_exp_f32 v{vW}, v{vW}"); a(f"v_exp_f32 v{vW+4}, v{vW+4}"); a(f"v_exp_f32 v{vNM}, v{vNM}")
    a(f"v_mul_f32 v{vLS}, v{vW}, v{vW+1}"); a(f"v_fmac_f32 v{vLS}, v{vW+4}, v{vW+5}")
    allreduce_quad("v_add_f32", vLS); allreduce_rows("v_add_f32", vLS, vT)
    a(f"v_rcp_f32 v{vLS}, v{vLS}")
    a(f"v_mul_f32 v{vNM}, v{vNM}, v{vLS}")
    if fine: stamp()
    if la1 or la2:
        a(f"v_lshlrev_b32 v{vTA}, 2, v{vL}"); a(f"v_mov_b32 v{vTB_}, 1")
    if sep: a(f"s_mov_b64 {sr(sM1,2)}, -1"); a(f"s_mov_b64 {sr(sM2,2)}, -1")
    C("pass 2: o[head l>>4][d = 8*(l&15) + 4a + r] += p * V  (A operand holds p at element l&3 of row 4*head + (l&3))")
    def pprep(t): a(f"v_mul_f32 v{vS+t}, v{vS+t}, v{vNM}"); a(f"v_cvt_pk_bf16_f32 v{vS+t}, v{vS+t}, v{vS+t}")
    pprep(0)
    for t in range(NT):
        h = NT + t; b = 16*slot[h]
        if t+1 < NT: pprep(t+1)
        for i in range(4):
            a(f"v_and_b32_dpp v{vXX+2*i}, v{vS+t}, v{vM0} quad_perm:[{i},{i},{i},{i}] row_mask:0xf bank_mask:0xf")
            a(f"v_and_b32_dpp v{vXX+2*i+1}, v{vS+t}, v{vM1} quad_perm:[{i},{i},{i},{i}] row_mask:0xf bank_mask:0xf")
        for i in range(4):
            wait((h, i if t == NT-1 else 3))
            a(f"v_mfma_f32_16x16x16_bf16 {vr(vA0,4)}, {vr(vXX+2*i,2)}, {ar(b+4*i,2)}, {'0' if t+i == 0 else vr(vA0,4)}")
            a(f"v_mfma_f32_16x16x16_bf16 {vr(vA1,4)}, {vr(vXX+2*i,2)}, {ar(b+4*i+2,2)}, {'0' if t+i == 0 else vr(vA1,4)}")
        free.append(slot[h])
        if t == wot: assert nxt[0] == 2*NT; woloads()
        depth = nxt[0] - (h+1)
        if nxt[0] < 2*NT and (depth < RV or (t % (vskip+1) == 0)): issue()
        if t == yget:
            a(f"v_lshrrev_b32 v{vT}, 5, v{vL}"); a(f"v_and_b32 v{vT2}, 1, v{vSL}"); a(f"v_lshl_add_u32 v{vT}, v{vT2}, 1, v{vT}")
            a(f"s_and_b32 s{sTMP}, s{sF}, 127"); a(f"s_lshl_b32 s{sTMP}, s{sTMP}, 2"); a(f"v_add_lshl_u32 v{vXO+1}, v{vT}, s{sTMP}, 1")
            a(f"s_cmp_ge_u32 s{sF}, 128"); a("s_cbranch_scc1 L_noyget")
            a(f"global_load_ushort v{vXO}, v{vXO+1}, {sr(sX,2)}")
            if otouch: a(f"global_load_ushort v{vXO+2}, v{vXO+1}, {sr(sOUT,2)}")
            a(f"s_lshl_b32 s{sRG}, s{sF}, 4"); a(f"s_add_u32 s{sRG}, s{sRG}, {Y_OFF}")
            for r in range(4): a(f"v_mov_b32 v{vGS+r}, 0")
            a(f"s_mov_b64 exec, {(1<<NRG)-1:#x}")
            a(f"buffer_load_dwordx4 {vr(vGS,4)}, v{vL2K}, {sr(rWS,4)}, s{sRG} offen sc1")
            a("s_mov_b64 exec, -1")
            a("L_noyget:")
            ymark = len(Q); ydone = False
        if t > yget and not ydone and done[0] > ymark:
            ydone = True
            C("final-stage wave: y = sum of the row-group partials, g = bf16(silu(bf16(y))); rows of 16 lanes hold columns (0,2,1,3)")
            a(f"s_cmp_ge_u32 s{sF}, 128"); a("s_cbranch_scc1 L_nog")
            a(f"s_mov_b64 exec, {(1<<NRG)-1:#x}")
            a("L_gchk:")
            for r in range(4): a(f"v_xor_b32 v{vGS+r}, s{sTB+r}, v{vGS+r}")
            a(f"v_or3_b32 v{vT}, v{vGS}, v{vGS+1}, v{vGS+2}"); a(f"v_or_b32 v{vT}, v{vT}, v{vGS+3}"); a(f"v_and_b32 v{vT}, v{vFF}, v{vT}")
            a(f"v_cmp_ne_u32 vcc, 0, v{vT}"); a("s_cbranch_vccnz L_gretry")
            a("L_gok:")
            a("s_mov_b64 exec, -1")
            a(f"v_permlane32_swap_b32 v{vGS}, v{vGS+1}"); a(f"v_permlane32_swap_b32 v{vGS+2}, v{vGS+3}")
            a(f"v_add_f32 v{vGS}, v{vGS}, v{vGS+1}"); a(f"v_add_f32 v{vGS+2}, v{vGS+2}, v{vGS+3}")
            a(f"v_permlane16_swap_b32 v{vGS}, v{vGS+2}"); a(f"v_add_f32 v{vGS}, v{vGS}, v{vGS+2}")
            rowreduce("v_add_f32", (vGS,))
            a(f"v_cvt_pk_bf16_f32 v{vGS}, v{vGS}, v{vGS}"); a(f"v_and_b32 v{vGS}, s{sHI}, v{vGS}")
            a(f"v_mul_f32 v{vT}, {f2u(-L2E):#x}, v{vGS}"); a(f"v_exp_f32 v{vT}, v{vT}"); a(f"v_add_f32 v{vT}, 1.0, v{vT}"); a(f"v_rcp_f32 v{vT}, v{vT}")
            a(f"v_mul_f32 v{vGS}, v{vGS}, v{vT}"); a(f"v_cvt_pk_bf16_f32 v{vGS}, v{vGS}, v{vGS}"); a(f"v_and_b32 v{vGS}, s{sHI}, v{vGS}")
            a(f"v_lshlrev_b32 v{vXO}, 16, v{vXO}")
            a(f"s_lshl_b32 s{sRG}, s{sF}, 4"); a(f"s_add_u32 s{sRG}, s{sRG}, {S_OFF}")
            a("L_nog:")
    assert ydone and nxt[0] == 2*NT
    stamp()
    if notail:
        for k in range(nst[0], nst[0]+4): a(f"s_memrealtime s[{sST+2*k}:{sST+2*k+1}]")
        a("s_branch L_fin")
    if amp:
        a("s_memrealtime s[98:99]")
    C("sum the four waves' partial o and publish it (128 granules of 4 d-values)")
    if la1:
        a(f"ds_write_b128 v{vOAW}, {vr(vA0,4)} offset:{L_OA}"); a(f"ds_write_b128 v{vOAW1}, {vr(vA1,4)} offset:{L_OA}")
        a(f"ds_add_rtn_u32 v{vT2}, v{vTA}, v{vTB_} offset:{L_CNT+256}")
        for hf in range(2):
            for w in range(4): a(f"ds_read_b128 {vr(vW+16*hf+4*w,4)}, v{vOAR} offset:{L_OA+2048*w+1024*hf}")
        a(f"s_cmp_eq_u32 s{sFAST}, 0")
        a("s_waitcnt lgkmcnt(8)")
        a(f"v_cmp_eq_u32 vcc, 3, v{vT2}"); a("s_cbranch_vccz L_notlast")
        for hf in range(2):
            b = vW+16*hf
            for w in range(1, 4): a(f"s_waitcnt lgkmcnt({7-4*hf-w})"); add4(b, b, b+4*w)
            for r in range(4): a(f"v_bfi_b32 v{vA0+4*hf+r}, v{vFF}, s{sTB+r}, v{b+r}")
            if hf == 0: a("s_cbranch_scc1 L_pub0slow"); a(f"buffer_store_dwordx4 {vr(vA0,4)}, v{vVO}, {sr(rWS,4)}, s{sPP} offen"); a("L_pub0done:")
        a("s_cbranch_scc1 L_pubslow")
        a(f"buffer_store_dwordx4 {vr(vA1,4)}, v{vVO}, {sr(rWS,4)}, s{sPP} offen offset:1024")
        a("L_notlast:")
        a("s_waitcnt lgkmcnt(0)")
    else:
        a(f"ds_write_b128 v{vOAW}, {vr(vA0,4)} offset:{L_OA}"); a(f"ds_write_b128 v{vOAW1}, {vr(vA1,4)} offset:{L_OA}")
        a("s_waitcnt lgkmcnt(0)")
        a("s_barrier")
        a(f"s_cmp_ge_u32 s{sW}, 2"); a("s_cbranch_scc1 L_pubdone")
        for w in range(4): a(f"ds_read_b128 {vr(vQ+4*w,4)}, v{vOAR} offset:{L_OA+2048*w}")
        a(f"s_cmp_eq_u32 s{sFAST}, 0")
        a("s_waitcnt lgkmcnt(2)")
        add4(vQ, vQ, vQ+4)
        a("s_waitcnt lgkmcnt(1)")
        add4(vQ, vQ, vQ+8)
        a("s_waitcnt lgkmcnt(0)")
        add4(vQ, vQ, vQ+12)
        for r in range(4): a(f"v_bfi_b32 v{vA0+r}, v{vFF}, s{sTB+r}, v{vQ+r}")
        a("s_cbranch_scc1 L_pubslow")
        a(f"buffer_store_dwordx4 {vr(vA0,4)}, v{vVO}, {sr(rWS,4)}, s{sPP} offen")
    a("L_pubdone:")
    if amp:
        a(f"s_cmp_lg_u32 s{sW}, 3"); a("s_cbranch_scc1 L_noamp")
        a("s_memrealtime s[98:99]"); a("s_waitcnt lgkmcnt(0)")
        a(f"v_mov_b32 v{vSS}, s96"); a(f"v_mov_b32 v{vSS+1}, s98"); a(f"s_lshl_b32 s{sTMP}, s2, 3"); a(f"s_add_u32 s{sTMP}, s{sTMP}, {ST_OFF}")
        a("s_mov_b64 exec, 1"); a(f"buffer_store_dwordx2 {vr(vSS,2)}, v{vVO}, {sr(rWS,4)}, s{sTMP} offen sc1"); a("s_mov_b64 exec, -1")
        a("L_noamp:")
    stamp()
    C("gather 4 heads x 4 d-values from the 32 splits, multiply with the wo tile (16 rows x 128 columns per wave)")
    O0, O1 = vW, vW+4
    if sep:
        mA, mB = sM1, sM2
        def chk(b, m):
            for i in range(4): a(f"v_xor_b32 v{b+i}, s{sTB+i}, v{b+i}")
            a(f"v_or3_b32 v{vT}, v{b}, v{b+1}, v{b+2}"); a(f"v_or_b32 v{vT}, v{vT}, v{b+3}"); a(f"v_and_b32 v{vT}, v{vFF}, v{vT}")
            a(f"v_cmp_ne_u32 {m}, 0, v{vT}")
        a("L_apoll:")
        a(f"s_mov_b64 exec, {sr(mA,2)}")
        a(f"buffer_load_dwordx4 {vr(O0,4)}, v{vGO}, {sr(rWS,4)}, s{sGO0} offen sc1")
        a(f"s_mov_b64 exec, {sr(mB,2)}")
        a(f"buffer_load_dwordx4 {vr(O1,4)}, v{vGO}, {sr(rWS,4)}, s{sGO1} offen sc1")
        a(f"s_mov_b64 exec, {sr(mA,2)}")
        a("s_waitcnt vmcnt(1)")
        chk(O0, sr(mA,2))
        a(f"s_mov_b64 exec, {sr(mB,2)}")
        a("s_waitcnt vmcnt(0)")
        chk(O1, "vcc")
        a("s_cbranch_vccz L_aonlyA")
        a(f"s_mov_b64 {sr(mB,2)}, vcc")
        a(f"s_cmp_eq_u64 {sr(mA,2)}, 0"); a("s_cbranch_scc1 L_aonlyB")
        timeout("L_apoll")
        a("s_branch L_aok")
        a("L_aonlyB:")
        a("s_mov_b64 exec, vcc")
        a(f"buffer_load_dwordx4 {vr(O1,4)}, v{vGO}, {sr(rWS,4)}, s{sGO1} offen sc1")
        a("s_waitcnt vmcnt(0)")
        chk(O1, "vcc")
        a("s_cbranch_vccz L_aok")
        timeout("L_aonlyB")
        a("s_branch L_aok")
        a("L_aonlyA:")
        a(f"s_mov_b64 vcc, {sr(mA,2)}")
        a(f"s_cmp_eq_u64 {sr(mA,2)}, 0"); a("s_cbranch_scc1 L_aok")
        a("L_aloopA:")
        a("s_mov_b64 exec, vcc")
        a(f"buffer_load_dwordx4 {vr(O0,4)}, v{vGO}, {sr(rWS,4)}, s{sGO0} offen sc1")
        a("s_waitcnt vmcnt(0)")
        chk(O0, "vcc")
        a("s_cbranch_vccz L_aok")
        timeout("L_aloopA")
    elif DA == 1:
        a("L_apoll:")
        a(f"buffer_load_dwordx4 {vr(O0,4)}, v{vGO}, {sr(rWS,4)}, s{sGO0} offen sc1")
        a(f"buffer_load_dwordx4 {vr(O1,4)}, v{vGO}, {sr(rWS,4)}, s{sGO1} offen sc1")
        a("s_waitcnt vmcnt(1)")
        for i in range(4): a(f"v_xor_b32 v{O0+i}, s{sTB+i}, v{O0+i}")
        a(f"v_or3_b32 v{vT}, v{O0}, v{O0+1}, v{O0+2}")
        a("s_waitcnt vmcnt(0)")
        for i in range(4): a(f"v_xor_b32 v{O1+i}, s{sTB+i}, v{O1+i}")
        a(f"v_or3_b32 v{vT}, v{vT}, v{O0+3}, v{O1}"); a(f"v_or3_b32 v{vT2}, v{O1+1}, v{O1+2}, v{O1+3}")
        a(f"v_or_b32 v{vT}, v{vT}, v{vT2}"); a(f"v_and_b32 v{vT}, v{vFF}, v{vT}")
        a(f"v_cmp_ne_u32 vcc, 0, v{vT}"); a("s_cbranch_vccz L_aok")
        a("s_mov_b64 exec, vcc")
        if pa: a(f"s_sleep {pa}")
        timeout("L_apoll")
    else:
        def ldo(b):
            a(f"buffer_load_dwordx4 {vr(b,4)}, v{vGO}, {sr(rWS,4)}, s{sGO0} offen sc1")
            a(f"buffer_load_dwordx4 {vr(b+4,4)}, v{vGO}, {sr(rWS,4)}, s{sGO1} offen sc1")
        for k in range(DA-1): ldo(vS+8*k)
        a("L_apoll:")
        for k in range(DA):
            b = vS+8*k
            ldo(vS+8*((k+DA-1)%DA))
            a(f"s_waitcnt vmcnt({2*(DA-1)})")
            for i in range(8): a(f"v_xor_b32 v{O0+i}, s{sTB+(i&3)}, v{b+i}")
            a(f"v_or3_b32 v{vT}, v{O0}, v{O0+1}, v{O0+2}"); a(f"v_or3_b32 v{vT2}, v{O0+3}, v{O1}, v{O1+1}"); a(f"v_or3_b32 v{vT}, v{vT}, v{O1+2}, v{O1+3}")
            a(f"v_or_b32 v{vT}, v{vT}, v{vT2}"); a(f"v_and_b32 v{vT}, v{vFF}, v{vT}")
            a(f"v_cmp_ne_u32 vcc, 0, v{vT}"); a("s_cbranch_vccz L_aok")
            a("s_mov_b64 exec, vcc")
            if pa: a(f"s_sleep {pa}")
        timeout("L_apoll")
    a("L_aok:")
    a("s_mov_b64 exec, -1")
    stamp()
    add4(O0, O0, O1)
    if adj:
        a(f"v_permlane32_swap_b32 v{O0}, v{O0+1}"); a(f"v_permlane32_swap_b32 v{O0+2}, v{O0+3}")
        a(f"v_add_f32 v{O0}, v{O0}, v{O0+1}"); a(f"v_add_f32 v{O0+2}, v{O0+2}, v{O0+3}")
        a(f"v_permlane16_swap_b32 v{O0}, v{O0+2}"); a(f"v_add_f32 v{O0}, v{O0}, v{O0+2}")
        rowreduce("v_add_f32", (O0,), (8, 4))
        a(f"v_cvt_pk_bf16_f32 v{O0}, v{O0}, v{O0}")
        for r in range(4):
            for t in range(4): a(f"v_and_b32_dpp v{vQ+4*r+t}, v{O0}, v{vMK+t} quad_perm:[{r},{r},{r},{r}] row_mask:0xf bank_mask:0xf")
            if r > 0: a(f"v_mfma_f32_16x16x32_bf16 {vr(vA0,4)}, {vr(vQ+4*(r-1),4)}, {vr(vWO+4*(r-1),4)}, {'0' if r == 1 else vr(vA0,4)}")
    else:
        rowreduce("v_add_f32", [O0+r for r in range(4)])
        for r in range(4): a(f"v_cvt_pk_bf16_f32 v{O0+r}, v{O0+r}, v{O0+r}")
        for r in range(4):
            for t in range(4): a(f"v_and_b32 v{vQ+4*r+t}, v{O0+r}, v{vMK+t}")
            if r > 0: a(f"v_mfma_f32_16x16x32_bf16 {vr(vA0,4)}, {vr(vQ+4*(r-1),4)}, {vr(vWO+4*(r-1),4)}, {'0' if r == 1 else vr(vA0,4)}")
    a(f"v_mfma_f32_16x16x32_bf16 {vr(vA0,4)}, {vr(vQ+12,4)}, {vr(vWO+12,4)}, {vr(vA0,4)}")
    a("s_mov_b32 exec_hi, 0")
    if la2:
        C("the wave whose LDS ticket is the last one sums and publishes")
        a(f"ds_write_b128 v{vSRW}, {vr(vA0,4)} offset:{L_SR}")
        a(f"ds_add_rtn_u32 v{vT2}, v{vTA}, v{vTB_} offset:{L_CNT}")
        for w in range(4): a(f"ds_read_b128 {vr(vQ+4*w,4)}, v{vVO} offset:{L_SR+512*w}")
        a("s_waitcnt lgkmcnt(4)")
        a(f"v_cmp_eq_u32 vcc, 3, v{vT2}"); a("s_cbranch_vccz L_nopub")
    else:
        a(f"ds_write_b128 v{vSRW}, {vr(vA0,4)} offset:{L_SR}")
        a("s_waitcnt lgkmcnt(0)")
        a("s_barrier")
        a(f"s_cmp_lg_u32 s{sW}, 0"); a("s_cbranch_scc1 L_nopub")
        for w in range(4): a(f"ds_read_b128 {vr(vQ+4*w,4)}, v{vVO} offset:{L_SR+512*w}")
    a("s_waitcnt lgkmcnt(2)")
    add4(vQ, vQ, vQ+4)
    a("s_waitcnt lgkmcnt(1)")
    add4(vQ, vQ, vQ+8)
    a("s_waitcnt lgkmcnt(0)")
    add4(vQ, vQ, vQ+12)
    for r in range(4): a(f"v_bfi_b32 v{vQ+r}, v{vFF}, s{sTB+r}, v{vQ+r}")
    a(f"s_not_b32 exec_lo, s{sLOC}")
    a(f"buffer_store_dwordx4 {vr(vQ,4)}, v{vVO}, {sr(rWS,4)}, s{sPS} offen sc1")
    a(f"s_cmp_eq_u32 s{sLOC}, 0"); a("s_cbranch_scc1 L_nopub")
    a(f"s_mov_b32 exec_lo, s{sLOC}")
    a(f"buffer_store_dwordx4 {vr(vQ,4)}, v{vVO}, {sr(rWS,4)}, s{sPS} offen")
    a("L_nopub:")
    if wb:
        a(f"s_lshl_b32 s{sTMP}, s{sJ}, 2"); a(f"s_add_u32 s{sTMP}, s{sTMP}, s{sW}"); a(f"s_cmp_lg_u32 s{sTMP}, 127"); a("s_cbranch_scc1 L_nowb")
        a("buffer_wbl2 sc1")
        a("L_nowb:")
    if fine: stamp()
    a("s_mov_b64 exec, -1")
    a(f"s_cmp_ge_u32 s{sF}, 128"); a("s_cbranch_scc1 L_fin")
    C("final stage: s = sum of 64 partials, out = bf16(x + bf16(bf16(s) * g))")
    if bdelay: a(f"s_sleep {bdelay}")
    a("L_bpoll:")
    a(f"buffer_load_dwordx4 {vr(vSS,4)}, v{vL2K}, {sr(rWS,4)}, s{sRG} offen sc1")
    a("s_waitcnt vmcnt(0)")
    for r in range(4): a(f"v_xor_b32 v{vSS+r}, s{sTB+r}, v{vSS+r}")
    a(f"v_or3_b32 v{vT}, v{vSS}, v{vSS+1}, v{vSS+2}"); a(f"v_or_b32 v{vT}, v{vT}, v{vSS+3}"); a(f"v_and_b32 v{vT}, v{vFF}, v{vT}")
    a(f"v_cmp_ne_u32 vcc, 0, v{vT}"); a("s_cbranch_vccz L_bok")
    a("s_mov_b64 exec, vcc")
    if pb: a(f"s_sleep {pb}")
    timeout("L_bpoll")
    a("L_bok:")
    a("s_mov_b64 exec, -1")
    a(f"v_permlane32_swap_b32 v{vSS}, v{vSS+1}"); a(f"v_permlane32_swap_b32 v{vSS+2}, v{vSS+3}")
    a(f"v_add_f32 v{vSS}, v{vSS}, v{vSS+1}"); a(f"v_add_f32 v{vSS+2}, v{vSS+2}, v{vSS+3}")
    a(f"v_permlane16_swap_b32 v{vSS}, v{vSS+2}"); a(f"v_add_f32 v{vSS}, v{vSS}, v{vSS+2}")
    rowreduce("v_add_f32", (vSS,))
    a(f"v_cvt_pk_bf16_f32 v{vSS}, v{vSS}, v{vSS}"); a(f"v_and_b32 v{vSS}, s{sHI}, v{vSS}")
    a(f"v_mul_f32 v{vSS}, v{vSS}, v{vGS}")
    a(f"v_cvt_pk_bf16_f32 v{vSS}, v{vSS}, v{vSS}"); a(f"v_and_b32 v{vSS}, s{sHI}, v{vSS}")
    a(f"v_add_f32 v{vSS}, v{vSS}, v{vXO}")
    a(f"v_cvt_pk_bf16_f32 v{vSS}, v{vSS}, v{vSS}")
    a("s_mov_b32 exec_lo, 0x00010001"); a("s_mov_b32 exec_hi, 0x00010001")
    a(f"global_store_short v{vXO+1}, v{vSS}, {sr(sOUT,2)} {ost}")
    C("every workgroup has read the epoch word by now (all of them fed this sum): advance it")
    a(f"s_cmp_lg_u32 s{sF}, 0"); a("s_cbranch_scc1 L_fin")
    a("s_mov_b64 exec, 1")
    a(f"v_mov_b32 v{vT}, s{sT}"); a(f"s_mov_b32 s{sTMP}, {E_OFF}")
    a(f"buffer_store_dword v{vT}, v{vVO}, {sr(rWS,4)}, s{sTMP} offen {est}")
    if amp:
        kind, mult = amp
        a("s_memrealtime s[98:99]")
        a("s_mov_b64 exec, -1")
        a(f"s_mov_b32 s{sTMP}, {ST_OFF}"); a(f"v_lshlrev_b32 v{vT}, 5, v{vL}")
        a(f"buffer_load_dwordx4 {vr(vW,4)}, v{vT}, {sr(rWS,4)}, s{sTMP} offen sc1"); a(f"buffer_load_dwordx4 {vr(vW+4,4)}, v{vT}, {sr(rWS,4)}, s{sTMP} offen offset:16 sc1")
        a("s_waitcnt vmcnt(0) lgkmcnt(0)")
        for i in range(8): a(f"v_subrev_u32 v{vW+i}, s96, v{vW+i}")
        def red(op, dst, o):
            a(f"{op} v{dst}, v{vW+o}, v{vW+2+o}"); a(f"{op} v{dst}, v{dst}, v{vW+4+o}"); a(f"{op} v{dst}, v{dst}, v{vW+6+o}")
            rowreduce(op, (dst,)); allreduce_rows(op, dst, vT)
        red("v_min_i32", vSS, 0); red("v_max_i32", vSS+1, 0); red("v_max_i32", vSS+2, 1); red("v_add_u32", vSS+3, 1); red("v_add_u32", vTT, 0)
        for i in range(4): a(f"v_readfirstlane_b32 s{90+i}, v{vSS+i}")
        a(f"v_readfirstlane_b32 s94, v{vTT}")
        a("s_nop 3")
        a("s_sub_u32 s88, s98, s96")
        if kind == "span": a("s_sub_u32 s88, s88, s90")
        if kind == "skew": a("s_sub_u32 s88, s91, s90")
        if kind == "endmax": a("s_sub_u32 s88, s92, s90")
        if kind == "endmean": a("s_ashr_i32 s93, s93, 8"); a("s_sub_u32 s88, s93, s90")
        if kind == "startmean": a("s_ashr_i32 s94, s94, 8"); a("s_sub_u32 s88, s94, s90")
        a(f"s_mul_i32 s88, s88, {mult}"); a("s_min_u32 s88, s88, 200000"); a("s_add_u32 s88, s88, s90"); a("s_add_u32 s88, s88, 6000")
        a("L_spin:")
        a("s_memrealtime s[98:99]"); a("s_waitcnt lgkmcnt(0)"); a("s_sub_u32 s98, s98, s96"); a("s_cmp_lt_i32 s98, s88"); a("s_cbranch_scc1 L_spin")
    a("L_fin:")
    if stamps:
        a("s_memrealtime s[100:101]")
        a("s_mov_b64 exec, -1")
        a("s_waitcnt lgkmcnt(0)")
        for i in range(nst[0]): a(f"v_writelane_b32 v{vTS}, s{sST+2*i}, {i}")
        a(f"v_writelane_b32 v{vTS}, s100, {nst[0]}")
        a(f"v_writelane_b32 v{vTS}, s{sTMO}, 15"); a(f"v_writelane_b32 v{vTS}, s{sFAST}, 14")
        a(f"s_lshl_b32 s{sTMP}, s2, 2"); a(f"s_add_u32 s{sTMP}, s{sTMP}, s{sW}"); a(f"s_lshl_b32 s{sTMP}, s{sTMP}, 8"); a(f"s_add_u32 s{sTMP}, s{sTMP}, {ST_OFF}")
        a(f"v_lshlrev_b32 v{vTT}, 2, v{vL}")
        a(f"buffer_store_dword v{vTS}, v{vTT}, {sr(rWS,4)}, s{sTMP} offen")
    a("L_done:")
    a("s_endpgm")
    C("out of line: write-through publishing and re-polls")
    if la1:
        a("L_pub0slow:"); a(f"buffer_store_dwordx4 {vr(vA0,4)}, v{vVO}, {sr(rWS,4)}, s{sPP} offen sc1"); a("s_branch L_pub0done")
    a("L_pubslow:")
    a(f"buffer_store_dwordx4 {vr(vA1 if la1 else vA0,4)}, v{vVO}, {sr(rWS,4)}, s{sPP} offen {'offset:1024 ' if la1 else ''}sc1")
    a("s_branch L_pubdone")
    if yfull:
        a("L_yslow:")
        a(f"buffer_store_dwordx4 {vr(vW,4)}, v{vVO}, {sr(rWS,4)}, s{sTMP} offen sc1")
        a("s_branch L_ydone")
    a("L_mlslow:")
    a(f"buffer_store_dwordx4 {vr(vA1,4)}, v{vVO}, {sr(rWS,4)}, s{sPM} offen sc1")
    a("s_branch L_mldone")
    for h, b in ool:
        a(f"L_es{h}:")
        for i in range(4):
            for k in range(2): a(f"buffer_load_dwordx2 {ar(b+4*i+2*k,2)}, v{vVW}, {sr(rV,4)}, s{sOF} offen offset:{1024*i+8*k} {kvflags}")
        a(f"s_branch L_ej{h}")
    def retry(lbl, ok, chk, loads):
        a(f"{lbl}:")
        a(f"s_sub_u32 s{sTMO}, s{sTMO}, 1"); a(f"s_cmp_le_i32 s{sTMO}, 0"); a(f"s_cbranch_scc1 {ok}")
        loads(); a("s_waitcnt vmcnt(0)"); a(f"s_branch {chk}")
    retry("L_qretry", "L_qok", "L_qchk", lambda: qloads("sc1", False))
    retry("L_mretry", "L_mok", "L_mchk", lambda: mloads("sc1", False))
    retry("L_gretry", "L_gok", "L_gchk", lambda: a(f"buffer_load_dwordx4 {vr(vGS,4)}, v{vL2K}, {sr(rWS,4)}, s{sRG} offen sc1"))
    body = a.finish()
    txt = HEADER + f"; @launch grid=(256,1,1) block=(256,1,1) lds={lds}\n"
    txt += f'.amdgcn_target "amdgcn-amd-amdhsa--gfx950"\n.text\n.globl {NAME}_kernel\n.p2align 8\n.type {NAME}_kernel,@function\n'
    txt += body + "L_codeend:\n"
    txt += f'''.section .rodata,"a"
.p2align 6
.amdhsa_kernel {NAME}_kernel
  .amdhsa_next_free_vgpr {NV + 16*NS}
  .amdhsa_next_free_sgpr 102
  .amdhsa_accum_offset {NV}
  .amdhsa_group_segment_fixed_size 0
  .amdhsa_kernarg_size 96
  .amdhsa_user_sgpr_count 2
  .amdhsa_user_sgpr_kernarg_segment_ptr 1
  .amdhsa_system_sgpr_workgroup_id_x 1
  .amdhsa_float_denorm_mode_32 3
.end_amdhsa_kernel
'''
    return txt

if __name__ == "__main__":
    kw = {}
    for x in sys.argv[2:]:
        k, v = x.split("=", 1)
        try: v = eval(v)
        except Exception: pass
        kw[k] = v
    open(sys.argv[1], "w").write(gen(**kw))
```

```python
import sys, struct
from asmlib import Asm
NAME = "recurrent_scan__gqa_block_cached__glu_gated_glu__decode"
def f2u(x): return struct.unpack("<I", struct.pack("<f", x))[0]
HEADER = open("cdna_kernels/%s.s.ref" % NAME).read().split("; Override launch")[0]
L2E = 1.4426950408889634

DOC = """;
"""

def gen(NS=16, RD=5, RV=8, first=1, pre=4, qpos=11, mpos=12, kskip=3, vskip=2, yt=4, xget=18, yget=18, wot=27,
        kseq="h"*8+"rh"*12, vseq="sc"*12+"a"*6+"cc", cpos=20, cthr=(0, 3, 10, 18, 25, 29), cbase=0,
        final="atom", gpos=None, gt=8, lds=20480, tmo=1<<20, abits=4,
        stamps=False, tstamps=False, force=None, amp=None, notail=False, est="", ost="", otouch=False, aflags="sc0 sc1"):
    NT = 32; kvf = wf = "nt"; atom = final == "atom"
    a = Asm()
    def C(text): a("; " + text)
    E_OFF, A1_OFF, Y_OFF, ML_OFF, X_OFF, G_OFF, S_OFF, P_OFF, ST_OFF = 0, 0x1000, 0x10000, 0x20000, 0x30000, 0x38000, 0x40000, 0x80000, 0x100000
    L_S1, L_Y, L_CF, L_ML, L_OA, L_SR, L_Q, L_CNT = 0, 2048, 4096, 4224, 4608, 12800, 14848, 18944
    assert L_CNT + 512 <= lds
    GST = 1280; HALF = 7680*4; AM = (1 << abits) - 1
    sX, sWQ, sWO, sG, sU, sDN, sOUT, sWS = 4, 10, 12, 16, 18, 20, 22, 26
    rK, rV, rW1, rWS, rDN = 28, 32, 36, 40, 44
    sW, sKVH, sJ, sOF, sOF0, sCB, sSTR, sT, sTMP, sTMP2, sFAST, sXV = range(48, 60)
    sA, sB, sSC, sL2E, sTB = 60, 61, 62, 63, 64
    sHI, sLOC, sTMO, sCOL, sRG, sF, sPP, sPM, sPS, sPC = 68, 69, 70, 72, 73, 74, 75, 76, 77, 78
    sM1, sM2, sM3, sMO = 16, 18, 10, 6
    sGO0, sGO1, sGM, sNF, sGG = 24, 25, 3, 14, 15
    sTN = (8, 9, 71, 79); sST = 80
    vL, vKO, vVO, vM0, vM1, vNM, vLS, vT = range(8)
    vA0, vA1, vSS, vTT, vXX, vQ = 8, 12, 16, 20, 24, 32
    vSL, vE, vBK, vN, vFF, vOAW, vOAR, vMLW, vMLR, vGO, vGM, vSRW, vL2K, vWOO, vDGA, vT2 = range(48, 64)
    vW, vD, vCF, vGV, vGA, vAA, vWO, vMK, vGS, vXO, vF = 64, 96, 104, 105, 106, 107, 108, 124, 128, 132, 136
    vTS, vVW, vKH, vXG, vQH, vS, vOAW1, vTA, vTB, vSRR = 144, 145, 146, 147, 148, 156, 188, 189, 190, 191
    NV = 192; vGU = vF
    def vr(b, n): return f"v[{b}:{b+n-1}]"
    def ar(b, n): return f"a[{b}:{b+n-1}]"
    def sr(b, n): return f"s[{b}:{b+n-1}]"
    WS = sr(rWS, 4)
    nst = [0]
    def stamp():
        if stamps: a(f"s_memrealtime s[{sST+2*nst[0]}:{sST+2*nst[0]+1}]"); nst[0] += 1
    Q = []; done = [0]
    def vm(tag, text): a(text); Q.append(tag)
    def wait(tag):
        idx = max(i for i, t in enumerate(Q) if t == tag)
        if idx < done[0]: return
        n = min(len(Q) - 1 - idx, 63)
        a(f"s_waitcnt vmcnt({n})"); done[0] = len(Q) - n
    DP = "row_mask:0xf bank_mask:0xf"
    def allreduce_rows(op, v, t):
        for sw in (16, 32): a(f"v_mov_b32 v{t}, v{v}"); a(f"v_permlane{sw}_swap_b32 v{v}, v{t}"); a(f"{op} v{v}, v{v}, v{t}")
    def allreduce_quad(op, v):
        for qp in ("[1,0,3,2]", "[2,3,0,1]"): a(f"{op}_dpp v{v}, v{v}, v{v} quad_perm:{qp} {DP}")
    def rowreduce(op, vs, steps=(8, 4, 2, 1)):
        for st in steps:
            for v in vs: a(f"{op}_dpp v{v}, v{v}, v{v} row_ror:{st} {DP}")
    def fold4(b):
        a(f"v_permlane32_swap_b32 v{b}, v{b+1}"); a(f"v_permlane32_swap_b32 v{b+2}, v{b+3}")
        a(f"v_add_f32 v{b}, v{b}, v{b+1}"); a(f"v_add_f32 v{b+2}, v{b+2}, v{b+3}")
        a(f"v_permlane16_swap_b32 v{b}, v{b+2}"); a(f"v_add_f32 v{b}, v{b}, v{b+2}")
    def unpack(dst, src, n):
        for i in range(n): a(f"v_lshlrev_b32 v{dst+2*i}, 16, v{src+i}"); a(f"v_and_b32 v{dst+2*i+1}, s{sHI}, v{src+i}")
    def rbf(v): a(f"v_cvt_pk_bf16_f32 v{v}, v{v}, v{v}"); a(f"v_and_b32 v{v}, s{sHI}, v{v}")
    def sel4(dst, x0, x1, x2, x3):
        a(f"v_cndmask_b32 v{dst}, v{x0}, v{x1}, {sr(sM1,2)}"); a(f"v_cndmask_b32 v{dst}, v{dst}, v{x2}, {sr(sM2,2)}"); a(f"v_cndmask_b32 v{dst}, v{dst}, v{x3}, {sr(sM3,2)}")
    def add4(d, x, y):
        for r in (0, 2): a(f"v_pk_add_f32 {vr(d+r,2)}, {vr(x+r,2)}, {vr(y+r,2)}")
    def untag4(b):
        for r in range(4): a(f"v_xor_b32 v{b+r}, s{sTB+r}, v{b+r}")
        a(f"v_or3_b32 v{vT}, v{b}, v{b+1}, v{b+2}"); a(f"v_or_b32 v{vT}, v{vT}, v{b+3}"); a(f"v_and_b32 v{vT}, v{vFF}, v{vT}")
        a(f"v_cmp_ne_u32 vcc, 0, v{vT}")
    def timeout(lbl):
        a(f"s_sub_u32 s{sTMO}, s{sTMO}, 1"); a(f"s_cmp_gt_i32 s{sTMO}, 0"); a(f"s_cbranch_scc1 {lbl}")
    def only(w, lbl): a(f"s_cmp_lg_u32 s{sW}, {w}"); a(f"s_cbranch_scc1 {lbl}")
    def gemv_store(base):
        a("s_mov_b32 exec_lo, 0x00ff00ff"); a("s_mov_b32 exec_hi, 0xff00ff00")
        a(f"ds_write_b128 v{vDGA}, {vr(vA0,4)} offset:{base}"); a("s_mov_b64 exec, -1")
    def gemv_reduce(base, tmp):
        for p in range(8): a(f"ds_read_b128 {vr(tmp+4*p,4)}, v{vVO} offset:{base+256*p}")
        a("s_waitcnt lgkmcnt(0)")
        for step in (16, 8, 4):
            for r in range(0, step, 4): add4(tmp+r, tmp+r, tmp+step+r)
    ool = []
    def store_group(lbl, text):
        a(f"s_cbranch_scc1 L_{lbl}slow"); a(text); a(f"L_{lbl}done:")
        ool.append((f"L_{lbl}slow", lambda: a(text + " sc1"), f"L_{lbl}done"))
    def retry(lbl, loads):
        def body():
            a(f"s_sub_u32 s{sTMO}, s{sTMO}, 1"); a(f"s_cmp_le_i32 s{sTMO}, 0"); a(f"s_cbranch_scc1 L_{lbl}ok")
            loads(); a("s_waitcnt vmcnt(0)")
        a(f"s_cbranch_vccnz L_{lbl}retry"); a(f"L_{lbl}ok:")
        ool.append((f"L_{lbl}retry", body, f"L_{lbl}chk"))
    free = list(range(NS)); slot = {}; nxt = [0]; na = [0]
    def issue():
        h = nxt[0]; nxt[0] += 1
        s = slot[h] = free.pop(0); b = 16*s
        pat = (kseq + vseq)[h]
        if h == NT: a(f"s_mov_b32 s{sOF}, s{sOF0}")
        if h == NT + cpos:
            C("progress flag: the more members of the group passed this point earlier, the more whole-line V loads this wave uses below")
            a(f"s_lshl_b32 s{sTMP}, s{sKVH}, 9"); a(f"s_add_u32 s{sTMP}, s{sTMP}, {X_OFF+128}")
            only(1, "L_noflag")
            a(f"s_lshl_b32 s{sTMP2}, s{sJ}, 2"); a(f"s_add_u32 s{sTMP2}, s{sTMP2}, s{sTMP}"); a(f"v_mov_b32 v{vT}, s{sT}")
            a("s_mov_b64 exec, 1"); a(f"buffer_store_dword v{vT}, v{vVO}, {WS}, s{sTMP2} offen"); a("s_mov_b64 exec, -1")
            a("L_noflag:")
            a(f"v_and_b32 v{vT2}, 31, v{vL}"); a(f"v_lshlrev_b32 v{vT2}, 2, v{vT2}")
            vm("cf", f"buffer_load_dword v{vCF}, v{vT2}, {WS}, s{sTMP} offen sc1")
        if atom and gpos is not None and h == NT + gpos:
            vm("gg", f"global_load_ushort v{vXO}, v{vXO+1}, {sr(sX,2)}")
            vm("gg", f"buffer_load_dword v{vGV}, v{vGA}, {WS}, s{sGG} offen")
        def whole(e):
            for i in range(4): e((h, i), f"buffer_load_dwordx4 {ar(b+4*i,4)}, v{vVW}, {sr(rV,4)}, s{sOF} offen offset:{1024*i} {kvf}")
        def split(e):
            for i in range(4):
                for k in range(2): e((h, i), f"buffer_load_dwordx2 {ar(b+4*i+2*k,2)}, v{vVW}, {sr(rV,4)}, s{sOF} offen offset:{1024*i+8*k} {kvf}")
        if pat == "r":
            for i in range(4): vm((h, i), f"buffer_load_dwordx4 {ar(b+4*i,4)}, v{vKO}, {sr(rK,4)}, s{sOF} offen offset:{64*i} {kvf}")
        elif pat == "h":
            for i in range(4): vm((h, i), f"buffer_load_dwordx4 {ar(b+4*i,4)}, v{vKH}, {sr(rK,4)}, s{sOF} offen offset:{2048*(i>>1)+128*(i&1)} {kvf}")
        elif pat == "c": whole(vm)
        elif pat == "s": split(vm)
        else:
            if na[0] == 0:
                wait("cf")
                a(f"v_cmp_eq_u32 vcc, s{sT}, v{vCF}"); a(f"s_bcnt1_i32_b32 s{sTMP}, vcc_lo"); a(f"s_mov_b32 s{sNF}, {cbase}")
                if stamps: a(f"v_writelane_b32 v{vTS}, s{sTMP}, 13")
                for th in cthr: a(f"s_cmp_gt_u32 s{sTMP}, {th}"); a(f"s_addc_u32 s{sNF}, s{sNF}, 0")
            k_ = na[0]; na[0] += 1
            a(f"s_cmp_le_u32 s{sNF}, {k_//2 if k_ % 2 else vseq.count('a')-1-k_//2}"); a(f"s_cbranch_scc1 L_vs{h}")
            whole(vm); a(f"L_vj{h}:")
            ool.append((f"L_vs{h}", lambda: split(lambda tag, text: a(text)), f"L_vj{h}"))
        if h % NT < NT-1: a(f"s_add_u32 s{sOF}, s{sOF}, 0x4000")
        if tstamps and h % 2 == 1:
            a("s_memrealtime s[100:101]"); a("s_waitcnt lgkmcnt(0)"); a(f"v_writelane_b32 v{vTS}, s100, {16+h//2}")

    a(f"{NAME}_kernel:")
    if amp: a("s_memrealtime s[96:97]")
    stamp()
    a(f"s_load_dwordx2 {sr(rK,2)}, s[0:1], 8"); a(f"s_load_dwordx2 {sr(rV,2)}, s[0:1], 16")
    a("s_load_dwordx16 s[4:19], s[0:1], 0"); a("s_load_dwordx8 s[20:27], s[0:1], 64")
    a("s_cmpk_ge_u32 s2, 256"); a("s_cbranch_scc1 L_done")
    a(f"s_and_b32 s{sKVH}, s2, 7"); a(f"s_lshr_b32 s{sJ}, s2, 3")
    C("pull this kernel's code into L2 (each workgroup touches 8 lines)")
    a(f"s_getpc_b64 {sr(sPC,2)}")
    a("L_pc:")
    a(f"v_and_b32 v{vA0}, 7, v0"); a(f"v_lshl_add_u32 v{vA0}, s{sJ}, 3, v{vA0}"); a(f"v_lshlrev_b32 v{vA0}, 7, v{vA0}")
    a(f"v_min_u32 v{vA0}, L_codeend-L_pc-4, v{vA0}")
    vm("pf", f"global_load_dword v{vA0+1}, v{vA0}, {sr(sPC,2)}")
    C("wave w takes the 16-key tiles w, w+4, ... of the split")
    a(f"s_lshl_b32 s{sOF}, s{sKVH}, 24"); a(f"s_lshl_b32 s{sTMP}, s{sJ}, 19"); a(f"s_or_b32 s{sOF}, s{sOF}, s{sTMP}"); a(f"s_mov_b32 s{sOF0}, s{sOF}")
    a(f"v_lshrrev_b32 v{vT2}, 6, v0"); a(f"v_and_b32 v{vL}, 63, v0")
    a(f"v_lshrrev_b32 v{vSL}, 4, v{vL}"); a(f"v_bfe_u32 v{vBK}, v{vL}, 2, 2")
    a(f"v_lshlrev_b32 v{vT}, 12, v{vT2}"); a(f"v_lshl_add_u32 v{vT}, v{vSL}, 4, v{vT}"); a(f"v_lshl_add_u32 v{vT}, v{vBK}, 8, v{vT}")
    a(f"v_and_b32 v{vKH}, 1, v{vL}"); a(f"v_lshl_add_u32 v{vKH}, v{vKH}, 6, v{vT}"); a(f"v_and_b32 v{vE}, 2, v{vL}"); a(f"v_lshl_add_u32 v{vKH}, v{vE}, 9, v{vKH}")
    a(f"s_lshl_b32 s{rK+2}, 1, 27"); a(f"s_mov_b32 s{rK+3}, 0x20000")
    a("s_waitcnt lgkmcnt(0)"); stamp()
    assert kseq[:first] == "h"*first
    for _ in range(first): issue()
    a(f"v_readfirstlane_b32 s{sW}, v{vT2}")
    a(f"s_lshl_b32 s{rV+2}, 1, 27"); a(f"s_mov_b32 s{rV+3}, 0x20000")
    a(f"v_and_b32 v{vE}, 3, v{vL}"); a(f"v_and_b32 v{vN}, 15, v{vL}")
    a(f"v_lshl_add_u32 v{vKO}, v{vE}, 10, v{vT}")
    a(f"v_lshlrev_b32 v{vVO}, 4, v{vL}"); a(f"v_lshl_add_u32 v{vVW}, v{vT2}, 12, v{vVO}")
    C("stage 1: 120 blocks of 64 columns x 2 row halves; cb = (wg&7)*30 + j for j < 30, block cb>>1, half cb&1")
    a(f"s_mul_i32 s{sCB}, s{sKVH}, 30"); a(f"s_add_u32 s{sCB}, s{sCB}, s{sJ}")
    a(f"s_movk_i32 s{sCOL}, 184"); a(f"s_cmp_lt_u32 s{sCB}, s{sCOL}"); a(f"s_cselect_b32 s{sCOL}, 128, s{sCOL}")
    a(f"s_cselect_b64 {sr(rW1,2)}, {sr(sG,2)}, {sr(sU,2)}")
    a(f"s_cmp_lt_u32 s{sCB}, 128"); a(f"s_cselect_b32 s{sCOL}, 0, s{sCOL}")
    a(f"s_cselect_b64 {sr(rW1,2)}, {sr(sWQ,2)}, {sr(rW1,2)}")
    a(f"s_movk_i32 s{sSTR}, 3584"); a(f"s_cselect_b32 s{sSTR}, 8192, s{sSTR}")
    a(f"s_sub_u32 s{sCOL}, s{sCB}, s{sCOL}"); a(f"s_lshr_b32 s{sCOL}, s{sCOL}, 1"); a(f"s_lshl_b32 s{sCOL}, s{sCOL}, 7")
    a(f"s_and_b32 s{sTMP2}, s{sCB}, 1"); a(f"s_lshl_b32 s{sTMP2}, s{sTMP2}, 2"); a(f"s_add_u32 s{sTMP2}, s{sTMP2}, s{sW}"); a(f"s_lshl_b32 s{sTMP2}, s{sTMP2}, 6")
    a(f"s_mul_i32 s{sTMP}, s{sTMP2}, s{sSTR}"); a(f"s_add_u32 s{sCOL}, s{sCOL}, s{sTMP}")
    a(f"v_lshrrev_b32 v{vT2}, 3, v{vL}")
    a(f"s_lshl_b32 s{sTMP2}, s{sTMP2}, 1"); a(f"v_lshl_add_u32 v{vGO}, v{vT2}, 4, s{sTMP2}")
    a(f"s_lshl_b32 s{sTMP}, s{sSTR}, 3")
    a(f"v_mul_u32_u24 v{vGM}, s{sTMP}, v{vT2}"); a(f"v_and_b32 v{vT}, 7, v{vL}"); a(f"v_lshl_add_u32 v{vGM}, v{vT}, 4, v{vGM}")
    a(f"v_mov_b32 v{vNM}, {E_OFF}")
    a(f"s_mov_b32 s{rW1+3}, 0x20000")
    a(f"s_lshl_b32 s{rW1+2}, s{sSTR}, 9"); a(f"s_cmp_lt_u32 s{sJ}, 30"); a(f"s_cselect_b32 s{rW1+2}, s{rW1+2}, 0")
    vm("x", f"global_load_dword v{vNM}, v{vNM}, {sr(sWS,2)} sc1")
    vm("x", f"global_load_dwordx4 {vr(vSS,4)}, v{vVO}, {sr(sX,2)}")
    vm("x", f"global_load_dwordx4 {vr(vTT,4)}, v{vGO}, {sr(sX,2)}")
    if atom:
        C("wave 0 of the producers of gate blocks 0-3 (half 0) zeroes the output accumulators of column group 0-3; the stores are older than")
        C("its weight loads, hence complete before it publishes g, and every atomic add below is ordered after that hand-off")
        a(f"s_and_b32 s{sTMP}, s{sCB}, 0xf9"); a(f"s_lshl_b32 s{sTMP2}, s{sW}, 8"); a(f"s_or_b32 s{sTMP}, s{sTMP}, s{sTMP2}"); a(f"s_cmpk_lg_u32 s{sTMP}, 128"); a("s_cbranch_scc1 L_noinit")
        a(f"s_lshl_b32 s{sTMP}, s{sCB}, 12"); a(f"s_add_u32 s{sTMP}, s{sTMP}, {(S_OFF - (128 << 12)) & 0xffffffff:#x}")
        a(f"v_lshrrev_b32 v{vA1}, 2, v{vL}"); a(f"v_lshlrev_b32 v{vA1}, 8, v{vA1}"); a(f"v_lshl_add_u32 v{vA1}, v{vE}, 4, v{vA1}"); a(f"v_add_u32 v{vA1}, s{sTMP}, v{vA1}")
        a(f"v_add_u32 v{vA1+1}, 0x1000, v{vA1}")
        for r in range(4): a(f"v_mov_b32 v{vXX+r}, 0")
        a(f"global_store_dwordx4 v{vA1}, {vr(vXX,4)}, {sr(sWS,2)} sc1"); a(f"global_store_dwordx4 v{vA1+1}, {vr(vXX,4)}, {sr(sWS,2)} sc1")
        a("L_noinit:")
    for i in range(8):
        vm(("w1", i), f"buffer_load_dwordx4 {vr(vW+4*i,4)}, v{vGM}, {sr(rW1,4)}, s{sCOL} offen {wf}")
        if i < 7: a(f"s_add_u32 s{sCOL}, s{sCOL}, s{sSTR}")
    C("w_down tile: rows j*64 + 16w + 2*(l>>3) + i, columns (wg&7)*64 + 8*(l&7); j >= 28 lies outside the buffer and reads 0")
    a(f"s_mov_b64 {sr(rDN,2)}, {sr(sDN,2)}"); a(f"s_mov_b32 s{rDN+2}, {1792*1024}"); a(f"s_mov_b32 s{rDN+3}, 0x20000")
    a(f"s_lshl_b32 s{sSTR}, s{sJ}, 2"); a(f"s_add_u32 s{sSTR}, s{sSTR}, s{sW}")
    a(f"s_lshl_b32 s{sTMP}, s{sSTR}, 14"); a(f"s_lshl_b32 s{sTMP2}, s{sKVH}, 7"); a(f"s_add_u32 s{sTMP}, s{sTMP}, s{sTMP2}")
    a(f"v_lshlrev_b32 v{vT}, 4, v{vT}"); a(f"v_lshl_add_u32 v{vT}, v{vT2}, 11, v{vT}")
    for i in range(2): vm(("dn", i), f"buffer_load_dwordx4 {vr(vD+4*i,4)}, v{vT}, {sr(rDN,4)}, s{sTMP} offen offset:{1024*i} {wf}")
    issue()
    for k, m in ((sM1, 0x22222222), (sM2, 0x44444444), (sM3, 0x88888888), (sMO, 0xaaaaaaaa)):
        a(f"s_mov_b32 s{k}, {m:#x}"); a(f"s_mov_b32 s{k+1}, s{k}")
    a(f"s_mov_b32 s{sHI}, 0xffff0000"); a(f"s_mov_b32 s{sSC}, {f2u(128**-0.5):#x}"); a(f"s_mov_b32 s{sL2E}, {f2u(L2E):#x}")
    a(f"s_mov_b32 s{sTMO}, {tmo}")
    a(f"s_mov_b64 {sr(rWS,2)}, {sr(sWS,2)}"); a(f"s_mov_b32 s{rWS+2}, 0x20000000"); a(f"s_mov_b32 s{rWS+3}, 0x20000")
    C("masks that place one bf16 at element l&3 (K=16 MFMA) / l&7 (K=32 MFMA) of an A operand")
    a(f"v_and_b32 v{vT}, 1, v{vL}"); a(f"v_lshlrev_b32 v{vT}, 4, v{vT}"); a(f"v_mov_b32 v{vM1}, 0xffff")
    a(f"v_lshlrev_b32 v{vT2}, v{vT}, v{vM1}")
    a(f"v_cmp_gt_u32 vcc, 2, v{vE}"); a(f"v_cndmask_b32 v{vM0}, 0, v{vT2}, vcc"); a(f"v_xor_b32 v{vM1}, v{vT2}, v{vM0}")
    a(f"v_bfe_u32 v{vT}, v{vL}, 1, 2")
    for t in range(4):
        a(f"v_cmp_eq_u32 vcc, {t}, v{vT}"); a(f"v_cndmask_b32 v{vMK+t}, 0, v{vT2}, vcc")
    wait("x")
    a(f"v_readfirstlane_b32 s{sT}, v{vNM}")
    C("LayerNorm (bf16 rounding after every step, as the reference does)")
    F = vF
    unpack(F, vSS, 4)
    a(f"v_add_f32 v{vA0}, v{F}, v{F+1}")
    for i in range(2, 8): a(f"v_add_f32 v{vA0}, v{vA0}, v{F+i}")
    rowreduce("v_add_f32", (vA0,)); allreduce_rows("v_add_f32", vA0, vT)
    a(f"v_mul_f32 v{vA0}, {f2u(1/512):#x}, v{vA0}")
    for i in range(8): a(f"v_sub_f32 v{F+i}, v{F+i}, v{vA0}")
    a(f"v_mul_f32 v{vA1}, v{F}, v{F}")
    for i in range(1, 8): a(f"v_fmac_f32 v{vA1}, v{F+i}, v{F+i}")
    rowreduce("v_add_f32", (vA1,)); allreduce_rows("v_add_f32", vA1, vT)
    a(f"v_mul_f32 v{vA1}, {f2u(1/512):#x}, v{vA1}")
    a(f"v_cvt_pk_bf16_f32 v{vA0}, v{vA0}, v{vA1}")
    a(f"v_and_b32 v{vA1}, s{sHI}, v{vA0}"); a(f"v_lshlrev_b32 v{vA0}, 16, v{vA0}")
    a(f"v_add_f32 v{vA1}, {f2u(1e-5):#x}, v{vA1}"); rbf(vA1)
    a(f"v_sqrt_f32 v{vA1}, v{vA1}"); rbf(vA1)
    a(f"v_rcp_f32 v{vA1}, v{vA1}")
    unpack(F, vTT, 4)
    for i in range(8): a(f"v_sub_f32 v{F+i}, v{F+i}, v{vA0}")
    for i in range(4): a(f"v_cvt_pk_bf16_f32 v{vTT+i}, v{F+2*i}, v{F+2*i+1}")
    unpack(F, vTT, 4)
    for i in range(8): a(f"v_mul_f32 v{F+i}, v{F+i}, v{vA1}")
    for i in range(8): a(f"v_cvt_pk_bf16_f32 v{F+i}, v{F+i}, v{F+i}")
    for i in range(8):
        for t in range(4): a(f"v_and_b32 v{vS+4*i+t}, v{F+i}, v{vMK+t}")
    while nxt[0] < pre: issue()
    C("stage-1 GEMV: 64 rows x 64 columns per wave")
    for i in range(8):
        wait(("w1", i))
        a(f"v_mfma_f32_16x16x32_bf16 {vr(vA0,4)}, {vr(vS+4*i,4)}, {vr(vW+4*i,4)}, {'0' if i == 0 else vr(vA0,4)}")
    C("tag of this launch = epoch word + 0x01010101 (every byte differs from the previous launch's tag)")
    a(f"s_add_u32 s{sT}, s{sT}, 0x01010101")
    for k in range(4): a(f"s_bfe_u32 s{sTB+k}, s{sT}, {(8<<16)|(8*k):#x}")
    for k in range(4): a(f"s_and_b32 s{sTN[k]}, s{sTB+k}, {AM}")
    a(f"v_mov_b32 v{vFF}, 0xff")
    C("lanes with (l>>5) == ((l>>3)&1) hold columns 8*(l&7) + 4*((l>>4)&1) + r of row group l>>5")
    a(f"s_lshl_b32 s{sTMP}, s{sW}, 9")
    a(f"v_and_b32 v{vT}, 7, v{vL}"); a(f"v_lshl_add_u32 v{vT}, v{vT}, 5, s{sTMP}"); a(f"v_and_b32 v{vT2}, 16, v{vL}"); a(f"v_add_u32 v{vT}, v{vT}, v{vT2}")
    a(f"v_and_b32 v{vT2}, 32, v{vL}"); a(f"v_lshl_add_u32 v{vDGA}, v{vT2}, 3, v{vT}")
    gemv_store(L_S1)
    a("s_waitcnt lgkmcnt(0)"); a("s_barrier")
    only(0, "L_pub1_done")
    a(f"s_cmp_eq_u32 s{rW1+2}, 0"); a("s_cbranch_scc1 L_pub1_done")
    a("s_mov_b64 exec, 0xffff")
    a(f"s_lshr_b32 s{sTMP}, s{sCB}, 1"); a(f"s_lshl_b32 s{sTMP}, s{sTMP}, 8"); a(f"s_and_b32 s{sTMP2}, s{sCB}, 1"); a(f"s_mul_i32 s{sTMP2}, s{sTMP2}, {HALF}")
    a(f"s_add_u32 s{sTMP}, s{sTMP}, s{sTMP2}"); a(f"s_add_u32 s{sTMP}, s{sTMP}, {A1_OFF}")
    gemv_reduce(L_S1, vW)
    a(f"v_mov_b32 v{vT}, {AM}")
    for r in range(4): a(f"v_add_u32 v{vW+r}, {(AM+1)//2}, v{vW+r}")
    for r in range(4): a(f"v_bfi_b32 v{vA0+r}, v{vT}, s{sTB+r}, v{vW+r}")
    a(f"buffer_store_dwordx4 {vr(vA0,4)}, v{vVO}, {WS}, s{sTMP} offen sc1")
    a("s_mov_b64 exec, -1")
    a("L_pub1_done:")
    C("wave 1 posts {tag, XCD id}; a workgroup that later reads its own value from all 32 members of its group")
    C("knows that they share one L2 and may hand data over with plain stores; otherwise it writes through (sc1)")
    only(1, "L_nox")
    a(f"s_getreg_b32 s{sTMP}, hwreg(HW_REG_XCC_ID, 0, 4)"); a(f"s_lshl_b32 s{sXV}, s{sT}, 4"); a(f"s_or_b32 s{sXV}, s{sXV}, s{sTMP}")
    a(f"s_lshl_b32 s{sTMP}, s{sKVH}, 9"); a(f"s_lshl_b32 s{sTMP2}, s{sJ}, 2"); a(f"s_add_u32 s{sTMP}, s{sTMP}, s{sTMP2}"); a(f"s_add_u32 s{sTMP}, s{sTMP}, {X_OFF}")
    a(f"v_mov_b32 v{vT}, s{sXV}")
    a("s_mov_b64 exec, 1"); a(f"buffer_store_dword v{vT}, v{vVO}, {WS}, s{sTMP} offen"); a("s_mov_b64 exec, -1")
    a("L_nox:")
    a("s_barrier")
    stamp()
    issue(); issue()
    C("addresses used by the later hand-offs")
    a(f"v_and_b32 v{vT}, 7, v{vL}"); a(f"v_xor_b32 v{vT}, v{vT}, v{vSL}"); a(f"v_lshlrev_b32 v{vT}, 4, v{vT}")
    a(f"v_lshl_add_u32 v{vOAW}, v{vN}, 7, v{vT}"); a(f"s_lshl_b32 s{sTMP}, s{sW}, 11"); a(f"v_add_u32 v{vOAW}, s{sTMP}, v{vOAW}"); a(f"v_xor_b32 v{vOAW1}, 64, v{vOAW}")
    a(f"v_lshrrev_b32 v{vT2}, 3, v{vL}"); a(f"v_xor_b32 v{vOAR}, v{vT2}, v{vL}"); a(f"v_and_b32 v{vOAR}, 7, v{vOAR}"); a(f"v_lshlrev_b32 v{vOAR}, 4, v{vOAR}")
    a(f"v_lshl_add_u32 v{vOAR}, v{vT2}, 7, v{vOAR}")
    a(f"s_lshl_b32 s{sPM}, s{sKVH}, 5"); a(f"s_add_u32 s{sPM}, s{sPM}, s{sJ}")
    a(f"s_lshl_b32 s{sPP}, s{sPM}, 11"); a(f"s_add_u32 s{sPP}, s{sPP}, {P_OFF}")
    if atom:
        C("output columns of this wave: 128*(j&3) + 32w + (l>>1); accumulator pair {sum, count} at 64-byte blocks spread over the channels")
        a(f"s_and_b32 s{sTMP}, s{sSTR}, 15")
        a(f"s_lshl_b32 s{sPS}, s{sTMP}, 11"); a(f"s_add_u32 s{sPS}, s{sPS}, {S_OFF}")
        a(f"s_mul_i32 s{sGG}, s{sTMP}, {GST}"); a(f"s_add_u32 s{sGG}, s{sGG}, {G_OFF}")
        a(f"v_and_b32 v{vAA}, 7, v{vL}"); a(f"v_lshlrev_b32 v{vAA}, 3, v{vAA}"); a(f"v_lshl_add_u32 v{vAA}, v{vT2}, 8, v{vAA}")
        a(f"v_and_b32 v{vT}, 62, v{vL}"); a(f"v_lshlrev_b32 v{vGA}, 1, v{vT}")
        a(f"s_lshl_b32 s{sTMP}, s{sTMP}, 6"); a(f"v_add_u32 v{vXO+1}, s{sTMP}, v{vT}")
        a(f"s_lshl_b32 s{sTMP}, s{sW}, 7"); a(f"s_add_u32 s{sTMP}, s{sTMP}, {L_SR}"); a(f"v_add_u32 v{vSRR}, s{sTMP}, v{vGA}")
    else:
        a(f"s_lshl_b32 s{sPS}, s{sPM}, 9"); a(f"s_add_u32 s{sPS}, s{sPS}, {S_OFF}")
    a(f"s_lshl_b32 s{sPM}, s{sPM}, 6"); a(f"s_add_u32 s{sPM}, s{sPM}, {ML_OFF}")
    a(f"s_lshl_b32 s{sTMP}, s{sW}, 2"); a(f"s_add_u32 s{sTMP}, s{sTMP}, {L_ML}"); a(f"v_lshl_add_u32 v{vMLW}, v{vBK}, 4, s{sTMP}"); a(f"v_lshlrev_b32 v{vMLR}, 4, v{vE}")
    a(f"v_lshl_add_u32 v{vSRW}, v{vN}, 1, v{vSL}"); a(f"v_lshlrev_b32 v{vSRW}, 4, v{vSRW}"); a(f"s_lshl_b32 s{sTMP}, s{sW}, 9"); a(f"v_add_u32 v{vSRW}, s{sTMP}, v{vSRW}")
    a(f"v_lshlrev_b32 v{vL2K}, 11, v{vL}")
    C("wo tile: instruction i = head i, lane row (l>>4) = d offset (0,2,1,3)")
    a(f"v_lshrrev_b32 v{vT}, 5, v{vL}"); a(f"v_and_b32 v{vWOO}, 16, v{vL}"); a(f"v_lshlrev_b32 v{vWOO}, 7, v{vWOO}"); a(f"v_lshl_add_u32 v{vWOO}, v{vT}, 10, v{vWOO}"); a(f"v_lshl_add_u32 v{vWOO}, v{vN}, 4, v{vWOO}")
    if atom:
        C("wave 2 of workgroups 30 and 31 of the group owns 32 columns of the GLU gate: line f = (wg&7)*2 + (j&1)")
        a(f"s_lshl_b32 s{sF}, s{sKVH}, 1"); a(f"s_and_b32 s{sTMP}, s{sJ}, 1"); a(f"s_add_u32 s{sF}, s{sF}, s{sTMP}")
        a(f"s_lshl_b32 s{sRG}, s{sF}, 7"); a(f"s_add_u32 s{sRG}, s{sRG}, {Y_OFF}")
        a(f"v_and_b32 v{vT}, 7, v{vL}"); a(f"v_lshlrev_b32 v{vT}, 4, v{vT}"); a(f"v_lshl_add_u32 v{vL2K}, v{vT2}, 11, v{vT}")
        a(f"s_cmp_ge_u32 s{sJ}, 30"); a(f"s_cselect_b32 s{sF}, s{sF}, 999")
        a(f"s_cmp_eq_u32 s{sW}, 2"); a(f"s_cselect_b32 s{sF}, s{sF}, 999")
    else:
        C("wave 2 of workgroups with j >= 16 owns columns 4f..4f+3 of the GLU gate, f = (wg&7)*16 + (j&15)")
        a(f"s_lshl_b32 s{sF}, s{sKVH}, 4"); a(f"s_and_b32 s{sTMP}, s{sJ}, 15"); a(f"s_add_u32 s{sF}, s{sF}, s{sTMP}")
        if not atom:
            a(f"v_and_b32 v{vXO+1}, 1, v{vSL}"); a(f"v_lshl_add_u32 v{vT}, v{vXO+1}, 1, v{vT}"); a(f"s_lshl_b32 s{sTMP}, s{sF}, 2"); a(f"v_add_lshl_u32 v{vXO+1}, v{vT}, s{sTMP}, 1")
        a(f"s_lshl_b32 s{sRG}, s{sF}, 4"); a(f"s_add_u32 s{sRG}, s{sRG}, {Y_OFF}")
        a(f"s_cmp_ge_u32 s{sJ}, 16"); a(f"s_cselect_b32 s{sF}, s{sF}, 999")
        a(f"s_cmp_eq_u32 s{sW}, 2"); a(f"s_cselect_b32 s{sF}, s{sF}, 999")
    while nxt[0] < qpos: issue()
    C("gather: wave w sums, rounds and shares dims 32w..32w+31 of q (MFMA B layout, head = (l>>2)&3); plus this wave's g / u rows")
    a(f"v_lshlrev_b32 v{vGO}, 9, v{vBK}"); a(f"v_lshl_add_u32 v{vGO}, v{vSL}, 5, v{vGO}")
    a(f"s_lshl_b32 s{sCB}, s{sKVH}, 11"); a(f"s_lshl_b32 s{sTMP}, s{sW}, 7"); a(f"s_add_u32 s{sCB}, s{sCB}, s{sTMP}"); a(f"s_add_u32 s{sCB}, s{sCB}, {A1_OFF}"); a(f"s_add_u32 s{sGM}, s{sCB}, {HALF}")
    a(f"v_lshlrev_b32 v{vGM}, 3, v{vT2}")
    a(f"s_min_u32 s{sTMP}, s{sSTR}, 111")
    a(f"s_lshl_b32 s{sGO0}, s{sTMP}, 6"); a(f"s_add_u32 s{sGO0}, s{sGO0}, {A1_OFF + 4096*4}"); a(f"s_add_u32 s{sGO1}, s{sGO0}, {1792*4}")
    a(f"s_add_u32 s{sA}, s{sGO0}, {HALF}"); a(f"s_add_u32 s{sB}, s{sGO1}, {HALF}")
    def qloads(fl, e):
        for half, so in enumerate((sCB, sGM)):
            for h in range(2): e("q", f"buffer_load_dwordx4 {vr(vW+8*half+4*h,4)}, v{vGO}, {WS}, s{so} offen offset:{16*h} {fl}")
        for k, so in enumerate((sGO0, sGO1, sA, sB)): e("q", f"buffer_load_dwordx2 {vr(vGU+2*k,2)}, v{vGM}, {WS}, s{so} offen {fl}")
    raw = lambda tag, text: a(text)
    qloads("", vm)
    while nxt[0] < NS: issue()
    a(f"v_and_b32 v{vT}, 8, v{vL}"); a(f"v_lshlrev_b32 v{vT}, 1, v{vT}"); a(f"v_lshrrev_b32 v{vT}, v{vT}, s{sT}")
    a(f"v_and_b32 v{vTA}, {AM}, v{vT}"); a(f"v_bfe_u32 v{vTB}, v{vT}, 8, {abits}")
    a(f"s_lshl_b32 s{sTMP}, s{sW}, 10"); a(f"v_add_u32 v{vXG}, s{sTMP}, v{vVO}")
    wait("q")
    a("L_qchk:")
    for i in range(16): a(f"v_xor_b32 v{vW+i}, s{sTN[i&3]}, v{vW+i}")
    for i in range(8): a(f"v_xor_b32 v{vGU+i}, v{vTB if i&1 else vTA}, v{vGU+i}")
    a(f"v_or_b32 v{vT}, v{vW}, v{vW+1}")
    for i in range(2, 16, 2): a(f"v_or3_b32 v{vT}, v{vT}, v{vW+i}, v{vW+i+1}")
    for i in range(0, 8, 2): a(f"v_or3_b32 v{vT}, v{vT}, v{vGU+i}, v{vGU+i+1}")
    a(f"v_and_b32 v{vT}, {AM}, v{vT}")
    a(f"v_cmp_ne_u32 vcc, 0, v{vT}")
    retry("q", lambda: qloads("sc1", raw))
    add4(vW, vW, vW+8); add4(vW+4, vW+4, vW+12)
    for i in range(4): a(f"v_cvt_pk_bf16_f32 v{vW+i}, v{vW+2*i}, v{vW+2*i+1}")
    a(f"ds_write_b128 v{vXG}, {vr(vW,4)} offset:{L_Q}")
    add4(vGU, vGU, vGU+4)
    for i in range(4): a(f"v_cvt_pk_bf16_f32 v{vGU+i}, v{vGU+i}, v{vGU+i}")
    a("s_waitcnt lgkmcnt(0)"); a("s_barrier")
    for jj in range(4): a(f"ds_read_b128 {vr(vQ+4*jj,4)}, v{vVO} offset:{L_Q+1024*jj}")
    a("s_waitcnt lgkmcnt(0)")
    for b in range(2):
        for t in range(4): a(f"v_cndmask_b32 v{vQH+4*b+t}, v{vQ+8*b+t}, v{vQ+8*b+4+t}, {sr(sMO,2)}")
    stamp()
    C("pass 1: scores.  lane l keeps s[key 4*(l&3) + (l>>4) of the tile][head (l>>2)&3], one register per tile")
    for t in range(NT):
        b = 16*slot[t]
        wait((t, 3))
        if kseq[t] == "r":
            for i in range(4): a(f"v_mfma_f32_16x16x32_bf16 {vr(vSS,4)}, {ar(b+4*i,4)}, {vr(vQ+4*i,4)}, {'0' if i == 0 else vr(vSS,4)}")
        else:
            for i in (0, 2, 1, 3): a(f"v_mfma_f32_16x16x32_bf16 {vr(vSS+4*(i>>1),4)}, {ar(b+4*i,4)}, {vr(vQH+4*(i&1),4)}, {'0' if i&1 == 0 else vr(vSS+4*(i>>1),4)}")
        free.append(slot[t])
        if nxt[0] - (t+1) < RD or t % (kskip+1) == 0: issue()
        x = vS + t
        if kseq[t] == "r": sel4(x, vSS, vSS+1, vSS+2, vSS+3)
        else:
            sel4(vT, vSS+2, vSS+1, vSS+6, vSS+5); sel4(x, vSS, vSS+3, vSS+4, vSS+7)
            a(f"v_add_f32_dpp v{x}, v{vT}, v{x} quad_perm:[1,0,3,2] {DP}")
        rbf(x); a(f"v_mul_f32 v{x}, s{sSC}, v{x}"); rbf(x)
        if t == 1: a(f"v_max_f32 v{vNM}, v{x-1}, v{x}")
        elif t % 2 == 1: a(f"v_max3_f32 v{vNM}, v{vNM}, v{x-1}, v{x}")
        if t == yt:
            C("GLU: h = bf16(bf16(sigmoid(g)) * u), partial y = h @ w_down tile")
            for i in range(4): a(f"v_and_b32 v{vGU+i}, s{sHI}, v{vGU+i}")
            for op in (f"v_mul_f32 v{{0}}, {f2u(-L2E):#x}, v{{0}}", "v_exp_f32 v{0}, v{0}", "v_add_f32 v{0}, 1.0, v{0}", "v_rcp_f32 v{0}, v{0}",
                       "v_cvt_pk_bf16_f32 v{0}, v{0}, v{0}", f"v_and_b32 v{{0}}, s{sHI}, v{{0}}", "v_mul_f32 v{0}, v{0}, v{1}", "v_cvt_pk_bf16_f32 v{0}, v{0}, v{0}"):
                for i in range(2): a(op.format(vGU+i, vGU+2+i))
            for i in range(2):
                for k in range(4): a(f"v_and_b32 v{vXX+4*i+k}, v{vGU+i}, v{vMK+k}")
            for i in range(2):
                wait(("dn", i)); a(f"v_mfma_f32_16x16x32_bf16 {vr(vA0,4)}, {vr(vXX+4*i,4)}, {vr(vD+4*i,4)}, {'0' if i == 0 else vr(vA0,4)}")
            C("gather addresses: (m,l) lane = (producer 4*(l>>4)+(l&3), head (l>>2)&3); o lane = (producer l>>2, head l&3)")
            a(f"v_lshrrev_b32 v{vGO}, 2, v{vL}"); a(f"v_lshlrev_b32 v{vGO}, 11, v{vGO}"); a(f"v_lshl_add_u32 v{vGO}, v{vE}, 4, v{vGO}")
            a(f"v_lshlrev_b32 v{vGM}, 4, v{vBK}"); a(f"v_lshl_add_u32 v{vGM}, v{vE}, 6, v{vGM}"); a(f"v_lshl_add_u32 v{vGM}, v{vSL}, 8, v{vGM}")
            a(f"s_and_b32 s{sTMP}, s{sJ}, 28"); a(f"s_add_u32 s{sA}, s{sTMP}, s{sW}")
            a(f"s_lshl_b32 s{sTMP}, s{sKVH}, 16"); a(f"s_lshl_b32 s{sTMP2}, s{sA}, 6"); a(f"s_add_u32 s{sGO0}, s{sTMP}, s{sTMP2}")
            a(f"s_add_u32 s{sGO0}, s{sGO0}, {P_OFF}"); a(f"s_add_u32 s{sGO1}, s{sGO0}, 0x8000")
            a(f"s_lshl_b32 s{sGM}, s{sKVH}, 11"); a(f"s_add_u32 s{sGM}, s{sGM}, {ML_OFF}")
            a(f"s_lshl_b32 s{sTMP}, s{sKVH}, 19"); a(f"s_lshl_b32 s{sTMP2}, s{sA}, 12"); a(f"s_add_u32 s{sCB}, s{sTMP}, s{sTMP2}")
            a(f"s_and_b32 s{sTMP}, s{sJ}, 3"); a(f"s_lshl_b32 s{sTMP}, s{sTMP}, 8"); a(f"s_add_u32 s{sCB}, s{sCB}, s{sTMP}")
            a(f"s_mov_b64 {sr(rDN,2)}, {sr(sWO,2)}"); a(f"s_mov_b32 s{rDN+2}, {4096*1024}")
            gemv_store(L_Y)
        if t == xget:
            C("wave 1: lanes 0-31 read the group's XCD words, lanes 32-63 pull the progress-flag line into L2")
            only(1, "L_noxg")
            a(f"s_lshl_b32 s{sTMP}, s{sKVH}, 9"); a(f"s_add_u32 s{sTMP}, s{sTMP}, {X_OFF}"); a(f"v_lshlrev_b32 v{vT}, 2, v{vL}")
            a(f"buffer_load_dword v{vXG}, v{vT}, {WS}, s{sTMP} offen sc1")
            a("L_noxg:"); xmark = len(Q)
        if t == xget + RD + 1:
            assert done[0] > xmark
            only(1, "L_noxg2")
            a(f"v_cmp_ne_u32 vcc, s{sXV}, v{vXG}"); a("s_cmp_eq_u32 vcc_lo, 0"); a(f"s_cselect_b32 s{sTMP}, 1, 0")
            if force is not None: a(f"s_mov_b32 s{sTMP}, {force}")
            a(f"v_mov_b32 v{vT}, 0"); a(f"v_mov_b32 v{vT2}, s{sTMP}"); a(f"ds_write_b32 v{vT}, v{vT2} offset:{L_CF}")
            a("L_noxg2:")
    C("wave max per head, e = exp(s - max), wave sum")
    allreduce_quad("v_max_f32", vNM); allreduce_rows("v_max_f32", vNM, vT)
    a(f"v_mul_f32 v{vNM}, {f2u(-L2E):#x}, v{vNM}")
    for t0 in range(0, NT, 4):
        for t in range(t0, t0+4): a(f"v_fma_f32 v{vS+t}, v{vS+t}, s{sL2E}, v{vNM}")
        for t in range(t0, t0+4): a(f"v_exp_f32 v{vS+t}, v{vS+t}")
        if t0 == 0: a(f"v_add_f32 v{vLS}, v{vS}, v{vS+1}"); a(f"v_add_f32 v{vT2}, v{vS+2}, v{vS+3}")
        else:
            for t in range(t0, t0+4): a(f"v_add_f32 v{vLS if t&1 else vT2}, v{vLS if t&1 else vT2}, v{vS+t}")
    a(f"v_add_f32 v{vLS}, v{vLS}, v{vT2}")
    allreduce_quad("v_add_f32", vLS); allreduce_rows("v_add_f32", vLS, vT)
    C("wave 0 merges and publishes the four (-max, sum) pairs, wave 3 the y partial; the others hold their loads until the stores are out")
    a(f"ds_write2_b32 v{vMLW}, v{vNM}, v{vLS} offset0:0 offset1:16")
    a(f"v_lshlrev_b32 v{vTA}, 2, v{vL}"); a(f"v_mov_b32 v{vTB}, 1"); a(f"v_mov_b32 v{vT}, 0")
    a(f"ds_write_b32 v{vTA}, v{vT} offset:{L_CNT}")
    if not atom: a(f"ds_write_b32 v{vTA}, v{vT} offset:{L_CNT+256}")
    a("s_waitcnt lgkmcnt(0)"); a("s_barrier")
    a(f"ds_read_b32 v{vT2}, v{vT} offset:{L_CF}"); a("s_waitcnt lgkmcnt(0)"); a(f"v_readfirstlane_b32 s{sFAST}, v{vT2}")
    only(3, "L_noypub")
    a(f"s_cmp_ge_u32 s{sJ}, 28"); a("s_cbranch_scc1 L_noypub")
    a("s_mov_b64 exec, 0xffff")
    a(f"s_lshl_b32 s{sTMP}, s{sJ}, 11"); a(f"s_lshl_b32 s{sTMP2}, s{sKVH}, 8"); a(f"s_add_u32 s{sTMP}, s{sTMP}, s{sTMP2}"); a(f"s_add_u32 s{sTMP}, s{sTMP}, {Y_OFF}")
    gemv_reduce(L_Y, vW)
    for r in range(4): a(f"v_add_u32 v{vW+r}, 0x80, v{vW+r}")
    for r in range(4): a(f"v_bfi_b32 v{vW+r}, v{vFF}, s{sTB+r}, v{vW+r}")
    a(f"s_cmp_eq_u32 s{sFAST}, 0")
    store_group("y", f"buffer_store_dwordx4 {vr(vW,4)}, v{vVO}, {WS}, s{sTMP} offen")
    a("s_mov_b64 exec, -1")
    a("L_noypub:")
    only(0, "L_nomlpub")
    a(f"ds_read_b128 {vr(vSS,4)}, v{vMLR} offset:{L_ML}"); a(f"ds_read_b128 {vr(vTT,4)}, v{vMLR} offset:{L_ML+64}")
    a("s_waitcnt lgkmcnt(0)")
    a(f"v_min3_f32 v{vA1}, v{vSS}, v{vSS+1}, v{vSS+2}"); a(f"v_min_f32 v{vA1}, v{vA1}, v{vSS+3}")
    for w in range(4): a(f"v_sub_f32 v{vSS+w}, v{vA1}, v{vSS+w}")
    for w in range(4): a(f"v_exp_f32 v{vSS+w}, v{vSS+w}")
    a(f"v_mov_b32 v{vA1+2}, s{sT}"); a(f"v_mov_b32 v{vA1+3}, s{sT}")
    a(f"v_mul_f32 v{vA1+1}, v{vSS}, v{vTT}")
    for w in range(1, 4): a(f"v_fmac_f32 v{vA1+1}, v{vSS+w}, v{vTT+w}")
    a("s_mov_b64 exec, 0xf")
    a(f"s_cmp_eq_u32 s{sFAST}, 0")
    store_group("ml", f"buffer_store_dwordx4 {vr(vA1,4)}, v{vVO}, {WS}, s{sPM} offen")
    a("s_mov_b64 exec, -1")
    a("L_nomlpub:")
    a("s_barrier")
    stamp()
    if not atom:
        C("lanes of the s-partial store whose consumers are members of this (proven local) group")
        a(f"s_and_b32 s{sTMP}, s{sJ}, 3"); a(f"s_lshr_b32 s{sTMP2}, s{sKVH}, 1"); a(f"s_cmp_eq_u32 s{sTMP}, s{sTMP2}"); a(f"s_cselect_b32 s{sLOC}, s{sFAST}, 0")
        a(f"s_mul_i32 s{sLOC}, s{sLOC}, 0xffff"); a(f"s_and_b32 s{sTMP}, s{sKVH}, 1"); a(f"s_lshl_b32 s{sTMP}, s{sTMP}, 4"); a(f"s_lshl_b32 s{sLOC}, s{sLOC}, s{sTMP}")
    yload = f"buffer_load_dwordx4 {vr(vGS,4)}, v{vL2K}, {WS}, s{sRG} offen sc1"
    def yget_block():
        a(f"s_cmp_ge_u32 s{sF}, 128"); a("s_cbranch_scc1 L_noyget")
        if not atom: a(f"global_load_ushort v{vXO}, v{vXO+1}, {sr(sX,2)}")
        for r in range(4): a(f"v_mov_b32 v{vGS+r}, 0")
        a("s_mov_b64 exec, 0xfffffff"); a(yload); a("s_mov_b64 exec, -1")
        a("L_noyget:")
    def gate_block():
        C("gate owner: y = sum of the 28 row-group partials, g = bf16(silu(bf16(y))); rows of 16 lanes hold columns (0,2,1,3)")
        a(f"s_cmp_ge_u32 s{sF}, 128"); a("s_cbranch_scc1 L_nog")
        a("s_mov_b64 exec, 0xfffffff")
        a("L_ychk:")
        untag4(vGS)
        retry("y", lambda: a(yload))
        a("s_mov_b64 exec, -1")
        fold4(vGS); rowreduce("v_add_f32", (vGS,)); rbf(vGS)
        a(f"v_mul_f32 v{vT}, {f2u(-L2E):#x}, v{vGS}"); a(f"v_exp_f32 v{vT}, v{vT}"); a(f"v_add_f32 v{vT}, 1.0, v{vT}"); a(f"v_rcp_f32 v{vT}, v{vT}")
        a(f"v_mul_f32 v{vGS}, v{vGS}, v{vT}"); rbf(vGS)
        if atom:
            a(f"s_and_b32 s{sA}, s{sT}, 0xffff"); a(f"s_lshr_b32 s{sB}, s{sT}, 16")
            for r, ln in ((1, 32), (2, 16), (3, 48), (0, 0)):
                a(f"v_readlane_b32 s{sTMP}, v{vGS}, {ln}"); a(f"s_or_b32 s{sTMP}, s{sTMP}, s{sB if r&1 else sA}"); a(f"v_mov_b32 v{vGS+r}, s{sTMP}")
            a(f"s_add_u32 s{sRG}, s{sRG}, {G_OFF - Y_OFF}")
            a("s_mov_b64 exec, 1"); a(f"buffer_store_dwordx4 {vr(vGS,4)}, v{vVO}, {WS}, s{sRG} offen sc1"); a("s_mov_b64 exec, -1")
        else:
            a(f"v_lshlrev_b32 v{vXO}, 16, v{vXO}"); a(f"s_add_u32 s{sRG}, s{sRG}, {S_OFF - Y_OFF}")
        a("L_nog:")
    if atom:
        vY = vQ
        def yloads():
            for i in range(4):
                if i == 3: a("s_mov_b32 exec_hi, 0")
                a(f"s_add_u32 s{sTMP}, s{sRG}, {16384*i}"); a(f"buffer_load_dwordx4 {vr(vY+4*i,4)}, v{vL2K}, {WS}, s{sTMP} offen sc1")
            a("s_mov_b64 exec, -1")
        def yget_block():
            a(f"s_cmp_ge_u32 s{sF}, 128"); a("s_cbranch_scc1 L_noyget")
            for r in range(4): a(f"v_mov_b32 v{vY+12+r}, 0")
            yloads()
            a("L_noyget:")
        def gate_block():
            C("gate owner: y = sum of the 28 row-group partials, g = bf16(silu(bf16(y))), published as one line of {bf16, tag} words")
            a(f"s_cmp_ge_u32 s{sF}, 128"); a("s_cbranch_scc1 L_nog")
            a("L_ychk:")
            a("s_mov_b32 exec_hi, 0")
            for r in range(4): a(f"v_xor_b32 v{vY+12+r}, s{sTB+r}, v{vY+12+r}")
            a("s_mov_b64 exec, -1")
            for r in range(12): a(f"v_xor_b32 v{vY+r}, s{sTB+(r&3)}, v{vY+r}")
            a(f"v_or_b32 v{vT}, v{vY}, v{vY+1}")
            for r in range(2, 16, 2): a(f"v_or3_b32 v{vT}, v{vT}, v{vY+r}, v{vY+r+1}")
            a(f"v_and_b32 v{vT}, v{vFF}, v{vT}"); a(f"v_cmp_ne_u32 vcc, 0, v{vT}")
            retry("y", yloads)
            add4(vY, vY, vY+4); add4(vY+8, vY+8, vY+12); add4(vY, vY, vY+8)
            rowreduce("v_add_f32", [vY+r for r in range(4)], (8,))
            for sw in (16, 32):
                for r in range(4): a(f"v_mov_b32 v{vY+4+r}, v{vY+r}")
                for r in range(4): a(f"v_permlane{sw}_swap_b32 v{vY+r}, v{vY+4+r}")
                add4(vY, vY, vY+4)
            for op in ("v_cvt_pk_bf16_f32 v{0}, v{0}, v{0}", f"v_and_b32 v{{0}}, s{sHI}, v{{0}}", f"v_mul_f32 v{{1}}, {f2u(-L2E):#x}, v{{0}}", "v_exp_f32 v{1}, v{1}",
                       "v_add_f32 v{1}, 1.0, v{1}", "v_rcp_f32 v{1}, v{1}", "v_mul_f32 v{0}, v{0}, v{1}", "v_cvt_pk_bf16_f32 v{0}, v{0}, v{0}"):
                for r in range(4): a(op.format(vY+r, vY+4+r))
            a(f"s_and_b32 s{sA}, s{sT}, 0xffff"); a(f"s_lshr_b32 s{sB}, s{sT}, 16")
            for r in range(4): a(f"v_lshl_or_b32 v{vY+r}, v{vY+r}, 16, s{sB if r&1 else sA}")
            a(f"s_mul_i32 s{sTMP}, s{sF}, {GST}"); a(f"s_add_u32 s{sTMP}, s{sTMP}, {G_OFF}")
            a("s_mov_b64 exec, 0xff"); a(f"buffer_store_dwordx4 {vr(vY,4)}, v{vVO}, {WS}, s{sTMP} offen sc1"); a("s_mov_b64 exec, -1")
            a("L_nog:")
    while nxt[0] < NT + mpos: issue()
    if atom: yget_block()
    def mloads(fl, e):
        e("m", f"buffer_load_dwordx4 {vr(vW,4)}, v{vGM}, {WS}, s{sGM} offen {fl}")
        e("m", f"buffer_load_dwordx4 {vr(vW+4,4)}, v{vGM}, {WS}, s{sGM} offen offset:1024 {fl}")
    mloads("", vm)
    while nxt[0] < NT + NS: issue()
    wait("m")
    a("L_mchk:")
    a(f"v_xor_b32 v{vT}, s{sT}, v{vW+2}"); a(f"v_xor_b32 v{vT2}, s{sT}, v{vW+6}"); a(f"v_or_b32 v{vT}, v{vT}, v{vT2}")
    a(f"v_cmp_ne_u32 vcc, 0, v{vT}")
    retry("m", lambda: mloads("sc1", raw))
    C("row max M and row sum L over all 65536 keys; p = bf16(e * exp(m_wave - M) / L)")
    a(f"v_min_f32 v{vT2}, v{vW}, v{vW+4}")
    allreduce_quad("v_min_f32", vT2); allreduce_rows("v_min_f32", vT2, vT)
    a(f"v_sub_f32 v{vW}, v{vT2}, v{vW}"); a(f"v_sub_f32 v{vW+4}, v{vT2}, v{vW+4}"); a(f"v_sub_f32 v{vNM}, v{vT2}, v{vNM}")
    a(f"v_exp_f32 v{vW}, v{vW}"); a(f"v_exp_f32 v{vW+4}, v{vW+4}"); a(f"v_exp_f32 v{vNM}, v{vNM}")
    a(f"v_mul_f32 v{vLS}, v{vW}, v{vW+1}"); a(f"v_fmac_f32 v{vLS}, v{vW+4}, v{vW+5}")
    allreduce_quad("v_add_f32", vLS); allreduce_rows("v_add_f32", vLS, vT)
    a(f"v_rcp_f32 v{vLS}, v{vLS}")
    a(f"v_mul_f32 v{vNM}, v{vNM}, v{vLS}")
    stamp()
    C("pass 2: o[head l>>4][d = 8*(l&15) + 4a + r] += p * V  (A operand: p at element l&3 of row 4*head + (l&3))")
    def gcheck():
        C("gate value and x element of this lane's output column")
        a(f"v_and_b32 v{vT2}, 2, v{vL}"); a(f"v_lshlrev_b32 v{vT2}, 3, v{vT2}"); a(f"v_lshrrev_b32 v{vT2}, v{vT2}, s{sT}")
        a("L_gchk:")
        a(f"v_xor_b32 v{vT}, v{vT2}, v{vGV}"); a(f"v_and_b32 v{vT}, 0xffff, v{vT}"); a(f"v_cmp_ne_u32 vcc, 0, v{vT}")
        retry("g", lambda: a(f"buffer_load_dword v{vGV}, v{vGA}, {WS}, s{sGG} offen sc1"))
        a(f"v_and_b32 v{vGV}, s{sHI}, v{vGV}"); a(f"v_lshlrev_b32 v{vXO}, 16, v{vXO}")
        a(f"s_mov_b32 s{sA}, {f2u(64.0):#x}")
    def pprep(t): a(f"v_mul_f32 v{vS+t}, v{vS+t}, v{vNM}"); a(f"v_cvt_pk_bf16_f32 v{vS+t}, v{vS+t}, v{vS+t}")
    pprep(0); ymark = None; gdone = not atom or gpos is None
    for t in range(NT):
        h = NT + t; b = 16*slot[h]
        if t+1 < NT: pprep(t+1)
        for i in range(4):
            for k, m in enumerate((vM0, vM1)): a(f"v_and_b32_dpp v{vXX+2*i+k}, v{vS+t}, v{m} quad_perm:[{i},{i},{i},{i}] {DP}")
        for i in range(4):
            wait((h, i if t == NT-1 else 3))
            for k, acc in enumerate((vA0, vA1)): a(f"v_mfma_f32_16x16x16_bf16 {vr(acc,4)}, {vr(vXX+2*i,2)}, {ar(b+4*i+2*k,2)}, {'0' if t+i == 0 else vr(acc,4)}")
        free.append(slot[h])
        if t == wot:
            assert nxt[0] == 2*NT
            for r in range(4):
                vm("wo", f"buffer_load_dwordx4 {vr(vWO+4*r,4)}, v{vWOO}, {sr(rDN,4)}, s{sCB} offen {wf}")
                if r < 3: a(f"s_add_u32 s{sCB}, s{sCB}, {128*1024}")
        if nxt[0] < 2*NT and (nxt[0] - (h+1) < RV or t % (vskip+1) == 0): issue()
        if atom:
            if t == gt: gate_block()
            if not gdone and "gg" in Q and done[0] > max(i for i, x in enumerate(Q) if x == "gg"):
                gdone = True
                gcheck()
        else:
            if t == yget: yget_block(); ymark = len(Q)
            elif ymark is not None and done[0] > ymark: gate_block(); ymark = None
    assert gdone and ymark is None and nxt[0] == 2*NT
    stamp()
    if notail:
        for k in range(nst[0], nst[0]+3): a(f"s_memrealtime s[{sST+2*k}:{sST+2*k+1}]")
        a("s_branch L_fin")
    if atom and gpos is None:
        a(f"global_load_ushort v{vXO}, v{vXO+1}, {sr(sX,2)}"); a(f"buffer_load_dword v{vGV}, v{vGA}, {WS}, s{sGG} offen")
        if otouch: a(f"global_load_ushort v{vXO+2}, v{vXO+1}, {sr(sOUT,2)}")
    C("the wave whose LDS ticket is the last one sums the four partial o and publishes them (128 granules of 4 d-values)")
    a(f"ds_write_b128 v{vOAW}, {vr(vA0,4)} offset:{L_OA}"); a(f"ds_write_b128 v{vOAW1}, {vr(vA1,4)} offset:{L_OA}")
    a(f"ds_add_rtn_u32 v{vT2}, v{vTA}, v{vTB} offset:{L_CNT}")
    for hf in range(2):
        for w in range(4): a(f"ds_read_b128 {vr(vW+16*hf+4*w,4)}, v{vOAR} offset:{L_OA+2048*w+1024*hf}")
    a(f"s_cmp_eq_u32 s{sFAST}, 0")
    a("s_waitcnt lgkmcnt(8)")
    a(f"v_cmp_eq_u32 vcc, 3, v{vT2}"); a("s_cbranch_vccz L_notlast")
    for hf in range(2):
        b = vW+16*hf
        for w in range(1, 4): a(f"s_waitcnt lgkmcnt({7-4*hf-w})"); add4(b, b, b+4*w)
        for r in range(4): a(f"v_bfi_b32 v{vA0+4*hf+r}, v{vFF}, s{sTB+r}, v{b+r}")
        store_group(f"p{hf}", f"buffer_store_dwordx4 {vr(vA0+4*hf,4)}, v{vVO}, {WS}, s{sPP} offen offset:{1024*hf}")
    a("L_notlast:")
    a("s_waitcnt lgkmcnt(0)")
    if amp:
        only(3, "L_noamp")
        a("s_memrealtime s[98:99]"); a("s_waitcnt lgkmcnt(0)")
        a(f"v_mov_b32 v{vSS}, s96"); a(f"v_mov_b32 v{vSS+1}, s98"); a(f"s_lshl_b32 s{sTMP}, s2, 3"); a(f"s_add_u32 s{sTMP}, s{sTMP}, {ST_OFF}")
        a("s_mov_b64 exec, 1"); a(f"buffer_store_dwordx2 {vr(vSS,2)}, v{vVO}, {WS}, s{sTMP} offen sc1"); a("s_mov_b64 exec, -1")
        a("L_noamp:")
    stamp()
    C("gather 4 heads x 4 d-values from the 32 splits, multiply with the wo tile (16 rows x 128 columns per wave)")
    O0, O1 = vW, vW+4
    a("L_apoll:")
    a(f"buffer_load_dwordx4 {vr(O0,4)}, v{vGO}, {WS}, s{sGO0} offen sc1")
    a(f"buffer_load_dwordx4 {vr(O1,4)}, v{vGO}, {WS}, s{sGO1} offen sc1")
    a("s_waitcnt vmcnt(1)")
    for i in range(4): a(f"v_xor_b32 v{O0+i}, s{sTB+i}, v{O0+i}")
    a(f"v_or3_b32 v{vT}, v{O0}, v{O0+1}, v{O0+2}")
    a("s_waitcnt vmcnt(0)")
    for i in range(4): a(f"v_xor_b32 v{O1+i}, s{sTB+i}, v{O1+i}")
    a(f"v_or3_b32 v{vT}, v{vT}, v{O0+3}, v{O1}"); a(f"v_or3_b32 v{vT2}, v{O1+1}, v{O1+2}, v{O1+3}")
    a(f"v_or_b32 v{vT}, v{vT}, v{vT2}"); a(f"v_and_b32 v{vT}, v{vFF}, v{vT}")
    a(f"v_cmp_ne_u32 vcc, 0, v{vT}"); a("s_cbranch_vccz L_aok")
    a("s_mov_b64 exec, vcc")
    timeout("L_apoll")
    a("L_aok:")
    a("s_mov_b64 exec, -1")
    stamp()
    add4(O0, O0, O1); fold4(O0); rowreduce("v_add_f32", (O0,), (8, 4))
    a(f"v_cvt_pk_bf16_f32 v{O0}, v{O0}, v{O0}")
    for r in range(5):
        if r < 4:
            for t in range(4): a(f"v_and_b32_dpp v{vQ+4*r+t}, v{O0}, v{vMK+t} quad_perm:[{r},{r},{r},{r}] {DP}")
        if r > 0: a(f"v_mfma_f32_16x16x32_bf16 {vr(vA0,4)}, {vr(vQ+4*(r-1),4)}, {vr(vWO+4*(r-1),4)}, {'0' if r == 1 else vr(vA0,4)}")
    a("s_mov_b32 exec_hi, 0")
    a(f"ds_write_b128 v{vSRW}, {vr(vA0,4)} offset:{L_SR}")
    def epilogue(v, g):
        rbf(v); a(f"v_mul_f32 v{v}, v{v}, v{g}"); rbf(v); a(f"v_add_f32 v{v}, v{v}, v{vXO}"); a(f"v_cvt_pk_bf16_f32 v{v}, v{v}, v{v}")
    def epoch():
        C("every workgroup has read the epoch word by now (all of them fed this sum): advance it")
        a("s_mov_b64 exec, 1")
        a(f"v_mov_b32 v{vT}, s{sT}"); a(f"buffer_store_dword v{vT}, v{vVO}, {WS}, 0 offen {est}")
    if atom:
        C("even lanes add this workgroup's s partial, odd lanes add 1 to the pair's counter; whoever completes the 64 adds holds the full sum")
        a("s_mov_b32 exec_hi, -1")
        a("s_waitcnt lgkmcnt(0)"); a("s_barrier")
        a(f"ds_read2st64_b32 {vr(vSS,2)}, v{vSRR} offset0:0 offset1:2"); a(f"ds_read2st64_b32 {vr(vSS+2,2)}, v{vSRR} offset0:4 offset1:6")
        a("s_waitcnt lgkmcnt(0)")
        a(f"v_pk_add_f32 {vr(vSS,2)}, {vr(vSS,2)}, {vr(vSS+2,2)}"); a(f"v_add_f32 v{vSS}, v{vSS}, v{vSS+1}")
        a(f"v_cndmask_b32 v{vSS}, v{vSS}, 1.0, {sr(sMO,2)}")
        a(f"v_cvt_f64_f32 {vr(vTT,2)}, v{vSS}")
        a(f"buffer_atomic_add_f64 {vr(vTT,2)}, v{vAA}, {WS}, s{sPS} offen {aflags}")
        stamp()
        a(f"v_cvt_f64_f32 {vr(vTT+2,2)}, v{vSS}")
        if gpos is None: gcheck()
        a("s_waitcnt vmcnt(0)")
        a(f"v_add_f64 {vr(vTT,2)}, {vr(vTT,2)}, {vr(vTT+2,2)}")
        a(f"v_cvt_f32_f64 v{vSS}, {vr(vTT,2)}")
        a(f"v_cmp_eq_f32 vcc, s{sA}, v{vSS}")
        C("out = bf16(x + bf16(bf16(s) * g))")
        epilogue(vSS, vGV)
        a(f"s_and_b64 vcc, vcc, {sr(sMO,2)}"); a("s_lshr_b64 exec, vcc, 1"); a("s_cbranch_execz L_fin")
        a(f"global_store_short v{vXO+1}, v{vSS}, {sr(sOUT,2)} {ost}")
        a(f"s_cmp_lg_u32 s{sPS}, {S_OFF}"); a("s_cbranch_scc1 L_fin")
        a("s_bitcmp0_b32 exec_lo, 0"); a("s_cbranch_scc1 L_fin")
        epoch()
    else:
        C("the wave whose LDS ticket is the last one sums and publishes the s partial")
        a(f"ds_add_rtn_u32 v{vT2}, v{vTA}, v{vTB} offset:{L_CNT+256}")
        for w in range(4): a(f"ds_read_b128 {vr(vQ+4*w,4)}, v{vVO} offset:{L_SR+512*w}")
        a("s_waitcnt lgkmcnt(4)")
        a(f"v_cmp_eq_u32 vcc, 3, v{vT2}"); a("s_cbranch_vccz L_nopub")
        for w in range(1, 4): a(f"s_waitcnt lgkmcnt({3-w})"); add4(vQ, vQ, vQ+4*w)
        for r in range(4): a(f"v_bfi_b32 v{vQ+r}, v{vFF}, s{sTB+r}, v{vQ+r}")
        a(f"s_not_b32 exec_lo, s{sLOC}")
        a(f"buffer_store_dwordx4 {vr(vQ,4)}, v{vVO}, {WS}, s{sPS} offen sc1")
        a(f"s_cmp_eq_u32 s{sLOC}, 0"); a("s_cbranch_scc1 L_nopub")
        a(f"s_mov_b32 exec_lo, s{sLOC}")
        a(f"buffer_store_dwordx4 {vr(vQ,4)}, v{vVO}, {WS}, s{sPS} offen")
        a("L_nopub:")
        stamp()
        a("s_mov_b64 exec, -1")
        a(f"s_cmp_ge_u32 s{sF}, 128"); a("s_cbranch_scc1 L_fin")
        C("gate owner: s = sum of 64 partials, out = bf16(x + bf16(bf16(s) * g))")
        a("L_bpoll:")
        a(f"buffer_load_dwordx4 {vr(vSS,4)}, v{vL2K}, {WS}, s{sRG} offen sc1")
        a("s_waitcnt vmcnt(0)")
        untag4(vSS); a("s_cbranch_vccz L_bok")
        a("s_mov_b64 exec, vcc")
        timeout("L_bpoll")
        a("L_bok:")
        a("s_mov_b64 exec, -1")
        fold4(vSS); rowreduce("v_add_f32", (vSS,))
        epilogue(vSS, vGS)
        a("s_mov_b32 exec_lo, 0x00010001"); a("s_mov_b32 exec_hi, 0x00010001")
        a(f"global_store_short v{vXO+1}, v{vSS}, {sr(sOUT,2)} {ost}")
        a(f"s_cmp_lg_u32 s{sF}, 0"); a("s_cbranch_scc1 L_fin")
        epoch()
    if amp:
        a("s_memrealtime s[98:99]"); a("s_mov_b64 exec, -1")
        a(f"s_mov_b32 s{sTMP}, {ST_OFF}"); a(f"v_lshlrev_b32 v{vT}, 5, v{vL}")
        a(f"buffer_load_dwordx4 {vr(vW,4)}, v{vT}, {WS}, s{sTMP} offen sc1"); a(f"buffer_load_dwordx4 {vr(vW+4,4)}, v{vT}, {WS}, s{sTMP} offen offset:16 sc1")
        a("s_waitcnt vmcnt(0) lgkmcnt(0)")
        for i in range(8): a(f"v_subrev_u32 v{vW+i}, s96, v{vW+i}")
        a(f"v_min_i32 v{vSS}, v{vW}, v{vW+2}"); a(f"v_min3_i32 v{vSS}, v{vSS}, v{vW+4}, v{vW+6}"); rowreduce("v_min_i32", (vSS,)); allreduce_rows("v_min_i32", vSS, vT)
        a(f"v_readfirstlane_b32 s90, v{vSS}"); a("s_nop 3"); a("s_max_i32 s90, s90, -300")
        a("s_sub_u32 s88, s98, s96"); a("s_sub_u32 s88, s88, s90")
        a(f"s_mul_i32 s88, s88, {amp}"); a("s_min_u32 s88, s88, 200000"); a("s_add_u32 s88, s88, s90"); a("s_add_u32 s88, s88, 6000")
        a("L_spin:")
        a("s_memrealtime s[98:99]"); a("s_waitcnt lgkmcnt(0)"); a("s_sub_u32 s98, s98, s96"); a("s_cmp_lt_i32 s98, s88"); a("s_cbranch_scc1 L_spin")
    a("L_fin:")
    if stamps:
        a("s_memrealtime s[100:101]"); a("s_mov_b64 exec, -1"); a("s_waitcnt lgkmcnt(0)")
        for i in range(nst[0]): a(f"v_writelane_b32 v{vTS}, s{sST+2*i}, {i}")
        a(f"v_writelane_b32 v{vTS}, s100, {nst[0]}")
        a(f"v_writelane_b32 v{vTS}, s{sTMO}, 15"); a(f"v_writelane_b32 v{vTS}, s{sFAST}, 14")
        a(f"s_lshl_b32 s{sTMP}, s2, 2"); a(f"s_add_u32 s{sTMP}, s{sTMP}, s{sW}"); a(f"s_lshl_b32 s{sTMP}, s{sTMP}, 8"); a(f"s_add_u32 s{sTMP}, s{sTMP}, {ST_OFF}")
        a(f"v_lshlrev_b32 v{vTT}, 2, v{vL}")
        a(f"buffer_store_dword v{vTS}, v{vTT}, {WS}, s{sTMP} offen")
    a("L_done:")
    a("s_endpgm")
    C("out of line: write-through stores, re-polls, half-line V loads")
    for lbl, body, back in ool:
        a(f"{lbl}:"); body(); a(f"s_branch {back}")
    txt = HEADER + f"; @launch grid=(256,1,1) block=(256,1,1) lds={lds}\n" + DOC
    txt += f'.amdgcn_target "amdgcn-amd-amdhsa--gfx950"\n.text\n.globl {NAME}_kernel\n.p2align 8\n.type {NAME}_kernel,@function\n'
    txt += a.finish() + "L_codeend:\n"
    txt += f'''.section .rodata,"a"
.p2align 6
.amdhsa_kernel {NAME}_kernel
  .amdhsa_next_free_vgpr {NV + 16*NS}
  .amdhsa_next_free_sgpr 102
  .amdhsa_accum_offset {NV}
  .amdhsa_group_segment_fixed_size 0
  .amdhsa_kernarg_size 96
  .amdhsa_user_sgpr_count 2
  .amdhsa_user_sgpr_kernarg_segment_ptr 1
  .amdhsa_system_sgpr_workgroup_id_x 1
  .amdhsa_float_denorm_mode_32 3
.end_amdhsa_kernel
'''
    return txt

if __name__ == "__main__":
    kw = {}
    for x in sys.argv[2:]:
        k, v = x.split("=", 1)
        try: v = eval(v)
        except Exception: pass
        kw[k] = v
    open(sys.argv[1], "w").write(gen(**kw))
```

```python
import sys, struct
from asmlib import Asm
NAME = "recurrent_scan__gqa_block_cached__glu_gated_glu__decode"
def f2u(x): return struct.unpack("<I", struct.pack("<f", x))[0]
HEADER = open("cdna_kernels/%s.s.ref" % NAME).read().split("; Override launch")[0]
L2E = 1.4426950408889634

DOC = """;
"""

def gen(NS=16, RD=5, RV=8, first=1, pre=4, qpos=11, mpos=12, kskip=3, vskip=2, yt=4, xget=18, yget=18, wot=27,
        kseq="h"*6+"rh"*13, vseq="sc"*5+"a"*6+"sc"*4+"b"*6+"cc", ctrl=((6, (3, 12, 22, 28, 30), 1), (20, (3, 13, 24, 29, 30), 1)),
        final="atom", gpos=None, gt=8, lds=20480, tmo=1<<20, abits=4,
        stamps=False, tstamps=False, force=None, amp=None, notail=False, est="", ost="", otouch=False, aflags="sc0 sc1", wb=(15, 13), sb=(12, 16, 14, 17, 18), gx=((4, 18),), ib=(10, 11), bar=()):
    NT = 32; kvf = wf = "nt"; atom = final == "atom"
    a = Asm()
    def C(text): a("; " + text)
    E_OFF, A1_OFF, Y_OFF, ML_OFF, X_OFF, G_OFF, S_OFF, P_OFF, ST_OFF = 0, 0x1000, 0x10000, 0x20000, 0x30000, 0x38000, 0x40000, 0x80000, 0x100000
    L_S1, L_Y, L_CF, L_ML, L_OA, L_SR, L_Q, L_CNT = 0, 2048, 4096, 4224, 4608, 12800, 14848, 18944
    assert L_CNT + 512 <= lds
    GST = 1280; HALF = 7680*4; AM = (1 << abits) - 1
    sX, sWQ, sWO, sG, sU, sDN, sOUT, sWS = 4, 10, 12, 16, 18, 20, 22, 26
    rK, rV, rW1, rWS, rDN = 28, 32, 36, 40, 44
    sW, sKVH, sJ, sOF, sOF0, sCB, sSTR, sT, sTMP, sTMP2, sFAST, sXV = range(48, 60)
    sA, sB, sSC, sL2E, sTB = 60, 61, 62, 63, 64
    sHI, sLOC, sTMO, sCOL, sRG, sF, sPP, sPM, sPS, sPC = 68, 69, 70, 72, 73, 74, 75, 76, 77, 78
    sM1, sM2, sM3, sMO = 16, 18, 10, 6
    sGO0, sGO1, sGM, sNF, sGG = 24, 25, 3, 14, 15
    sTN = (8, 9, 71, 79); sST = 80; sOFX = (0, 1, 69)
    vL, vKO, vVO, vM0, vM1, vNM, vLS, vT = range(8)
    vA0, vA1, vSS, vTT, vXX, vQ = 8, 12, 16, 20, 24, 32
    vSL, vE, vBK, vN, vFF, vOAW, vOAR, vMLW, vMLR, vGO, vGM, vSRW, vL2K, vWOO, vDGA, vT2 = range(48, 64)
    vW, vD, vCF, vGV, vGA, vAA, vWO, vMK, vGS, vXO, vF = 64, 96, 104, 105, 106, 107, 108, 124, 128, 132, 136
    vTS, vVW, vKH, vXG, vQH, vS, vOAW1, vTA, vTB, vSRR = 144, 145, 146, 147, 148, 156, 188, 189, 190, 191
    NV = 192; vGU = vF
    def vr(b, n): return f"v[{b}:{b+n-1}]"
    def ar(b, n): return f"a[{b}:{b+n-1}]"
    def sr(b, n): return f"s[{b}:{b+n-1}]"
    WS = sr(rWS, 4)
    nst = [0]
    def stamp():
        if stamps: a(f"s_memrealtime s[{sST+2*nst[0]}:{sST+2*nst[0]+1}]"); nst[0] += 1
    Q = []; done = [0]
    def vm(tag, text): a(text); Q.append(tag)
    def wait(tag):
        idx = max(i for i, t in enumerate(Q) if t == tag)
        if idx < done[0]: return
        n = min(len(Q) - 1 - idx, 63)
        a(f"s_waitcnt vmcnt({n})"); done[0] = len(Q) - n
    DP = "row_mask:0xf bank_mask:0xf"
    def allreduce_rows(op, v, t):
        for sw in (16, 32): a(f"v_mov_b32 v{t}, v{v}"); a(f"v_permlane{sw}_swap_b32 v{v}, v{t}"); a(f"{op} v{v}, v{v}, v{t}")
    def allreduce_quad(op, v):
        for qp in ("[1,0,3,2]", "[2,3,0,1]"): a(f"{op}_dpp v{v}, v{v}, v{v} quad_perm:{qp} {DP}")
    def rowreduce(op, vs, steps=(8, 4, 2, 1)):
        for st in steps:
            for v in vs: a(f"{op}_dpp v{v}, v{v}, v{v} row_ror:{st} {DP}")
    def fold4(b):
        a(f"v_permlane32_swap_b32 v{b}, v{b+1}"); a(f"v_permlane32_swap_b32 v{b+2}, v{b+3}")
        a(f"v_add_f32 v{b}, v{b}, v{b+1}"); a(f"v_add_f32 v{b+2}, v{b+2}, v{b+3}")
        a(f"v_permlane16_swap_b32 v{b}, v{b+2}"); a(f"v_add_f32 v{b}, v{b}, v{b+2}")
    def unpack(dst, src, n):
        for i in range(n): a(f"v_lshlrev_b32 v{dst+2*i}, 16, v{src+i}"); a(f"v_and_b32 v{dst+2*i+1}, s{sHI}, v{src+i}")
    def rbf(v): a(f"v_cvt_pk_bf16_f32 v{v}, v{v}, v{v}"); a(f"v_and_b32 v{v}, s{sHI}, v{v}")
    def sel4(dst, x0, x1, x2, x3):
        a(f"v_cndmask_b32 v{dst}, v{x0}, v{x1}, {sr(sM1,2)}"); a(f"v_cndmask_b32 v{dst}, v{dst}, v{x2}, {sr(sM2,2)}"); a(f"v_cndmask_b32 v{dst}, v{dst}, v{x3}, {sr(sM3,2)}")
    def add4(d, x, y):
        for r in (0, 2): a(f"v_pk_add_f32 {vr(d+r,2)}, {vr(x+r,2)}, {vr(y+r,2)}")
    def untag4(b):
        for r in range(4): a(f"v_xor_b32 v{b+r}, s{sTB+r}, v{b+r}")
        a(f"v_or3_b32 v{vT}, v{b}, v{b+1}, v{b+2}"); a(f"v_or_b32 v{vT}, v{vT}, v{b+3}"); a(f"v_and_b32 v{vT}, v{vFF}, v{vT}")
        a(f"v_cmp_ne_u32 vcc, 0, v{vT}")
    def timeout(lbl):
        a(f"s_sub_u32 s{sTMO}, s{sTMO}, 1"); a(f"s_cmp_gt_i32 s{sTMO}, 0"); a(f"s_cbranch_scc1 {lbl}")
    def only(w, lbl): a(f"s_cmp_lg_u32 s{sW}, {w}"); a(f"s_cbranch_scc1 {lbl}")
    def gemv_store(base):
        a("s_mov_b32 exec_lo, 0x00ff00ff"); a("s_mov_b32 exec_hi, 0xff00ff00")
        a(f"ds_write_b128 v{vDGA}, {vr(vA0,4)} offset:{base}"); a("s_mov_b64 exec, -1")
    def gemv_reduce(base, tmp):
        for p in range(8): a(f"ds_read_b128 {vr(tmp+4*p,4)}, v{vVO} offset:{base+256*p}")
        a("s_waitcnt lgkmcnt(0)")
        for step in (16, 8, 4):
            for r in range(0, step, 4): add4(tmp+r, tmp+r, tmp+step+r)
    ool = []
    def store_group(lbl, text):
        a(f"s_cbranch_scc1 L_{lbl}slow"); a(text); a(f"L_{lbl}done:")
        ool.append((f"L_{lbl}slow", lambda: a(text + " sc1"), f"L_{lbl}done"))
    def retry(lbl, loads):
        def body():
            a(f"s_sub_u32 s{sTMO}, s{sTMO}, 1"); a(f"s_cmp_le_i32 s{sTMO}, 0"); a(f"s_cbranch_scc1 L_{lbl}ok")
            loads(); a("s_waitcnt vmcnt(0)")
        a(f"s_cbranch_vccnz L_{lbl}retry"); a(f"L_{lbl}ok:")
        ool.append((f"L_{lbl}retry", body, f"L_{lbl}chk"))
    free = list(range(NS)); slot = {}; nxt = [0]; na = [0, 0, 0]
    def issue():
        h = nxt[0]; nxt[0] += 1
        s = slot[h] = free.pop(0); b = 16*s
        pat = (kseq + vseq)[h]
        if h in bar: a("s_barrier")
        for ci, (cpos, _, _) in enumerate(ctrl):
            if h != NT + cpos: continue
            C("progress flag: the more members of the group passed this point earlier, the more whole-line V loads this wave uses below")
            a(f"s_lshl_b32 s{sTMP}, s{sKVH}, 9"); a(f"s_add_u32 s{sTMP}, s{sTMP}, {X_OFF+128*(ci+1)}")
            only((1, 3, 2)[ci], f"L_noflag{ci}")
            a(f"s_lshl_b32 s{sTMP2}, s{sJ}, 2"); a(f"s_add_u32 s{sTMP2}, s{sTMP2}, s{sTMP}"); a(f"v_mov_b32 v{vT}, s{sT}")
            a("s_mov_b64 exec, 1"); a(f"buffer_store_dword v{vT}, v{vVO}, {WS}, s{sTMP2} offen"); a("s_mov_b64 exec, -1")
            a(f"L_noflag{ci}:")
            a(f"v_and_b32 v{vT2}, 31, v{vL}"); a(f"v_lshlrev_b32 v{vT2}, 2, v{vT2}")
            vm(("cf", ci), f"buffer_load_dword v{vCF}, v{vT2}, {WS}, s{sTMP} offen sc1")
        if atom and gpos is not None and h == NT + gpos:
            vm("gg", f"global_load_ushort v{vXO}, v{vXO+1}, {sr(sX,2)}")
            vm("gg", f"buffer_load_dword v{vGV}, v{vGA}, {WS}, s{sGG} offen")
        made = {0: sOF}
        def so(off, pre=False):
            hi, lo = off & ~4095, off & 4095
            if hi not in made:
                assert pre
                made[hi] = sOFX[len(made)-1]; a(f"s_or_b32 s{made[hi]}, s{sOF}, {hi:#x}")
            return f"s{made[hi]} offen offset:{lo}"
        go = [((i & 1) << ib[0]) + ((i >> 1) << ib[1]) for i in range(4)]
        if h < NT: offs = [go[i & 2] + 128*(i & 1) for i in range(4)]; vo, rs = vKH, rK
        else: offs = go; vo, rs = vVW, rV
        if pat != "r":
            for x in offs: so(x, True)
        def whole(e):
            for i in range(4): e((h, i), f"buffer_load_dwordx4 {ar(b+4*i,4)}, v{vo}, {sr(rs,4)}, {so(offs[i])} {kvf}")
        def split(e):
            for i in range(4):
                for k in range(2): e((h, i), f"buffer_load_dwordx2 {ar(b+4*i+2*k,2)}, v{vo}, {sr(rs,4)}, {so(offs[i]+8*k)} {kvf}")
        if pat == "r":
            for i in range(4): vm((h, i), f"buffer_load_dwordx4 {ar(b+4*i,4)}, v{vKO}, {sr(rK,4)}, s{sOF} offen offset:{64*i} {kvf}")
        elif pat in "hc": whole(vm)
        elif pat in "zs": split(vm)
        else:
            ci = "abd".index(pat); _, cthr, cbase = ctrl[ci]
            if na[ci] == 0:
                wait(("cf", ci))
                a(f"v_cmp_eq_u32 vcc, s{sT}, v{vCF}"); a(f"s_bcnt1_i32_b32 s{sTMP}, vcc_lo"); a(f"s_mov_b32 s{sNF}, {cbase}")
                if stamps: a(f"v_writelane_b32 v{vTS}, s{sTMP}, {13-ci}")
                for th in cthr: a(f"s_cmp_gt_u32 s{sTMP}, {th}"); a(f"s_addc_u32 s{sNF}, s{sNF}, 0")
            k_ = na[ci]; na[ci] += 1
            a(f"s_cmp_le_u32 s{sNF}, {k_//2 if k_ % 2 else (kseq+vseq).count(pat)-1-k_//2}"); a(f"s_cbranch_scc1 L_vs{h}")
            whole(vm); a(f"L_vj{h}:")
            ool.append((f"L_vs{h}", lambda: split(lambda tag, text: a(text)), f"L_vj{h}"))
        if h < 2*NT-1: a(f"s_xor_b32 s{sOF}, s{sOF0}, {sum(((((h+1) % NT) >> k) & 1) << sb[k] for k in range(5)):#x}")
        if tstamps and h % 2 == 1:
            a("s_memrealtime s[100:101]"); a("s_waitcnt lgkmcnt(0)"); a(f"v_writelane_b32 v{vTS}, s100, {16+h//2}")

    a(f"{NAME}_kernel:")
    if amp: a("s_memrealtime s[96:97]")
    stamp()
    a(f"s_load_dwordx2 {sr(rK,2)}, s[0:1], 8"); a(f"s_load_dwordx2 {sr(rV,2)}, s[0:1], 16")
    a("s_load_dwordx16 s[4:19], s[0:1], 0"); a("s_load_dwordx8 s[20:27], s[0:1], 64")
    a("s_cmpk_ge_u32 s2, 256"); a("s_cbranch_scc1 L_done")
    a(f"s_and_b32 s{sKVH}, s2, 7"); a(f"s_lshr_b32 s{sJ}, s2, 3")
    C("pull this kernel's code into L2 (each workgroup touches 8 lines)")
    a(f"s_getpc_b64 {sr(sPC,2)}")
    a("L_pc:")
    a(f"v_and_b32 v{vA0}, 7, v0"); a(f"v_lshl_add_u32 v{vA0}, s{sJ}, 3, v{vA0}"); a(f"v_lshlrev_b32 v{vA0}, 7, v{vA0}")
    a(f"v_min_u32 v{vA0}, L_codeend-L_pc-4, v{vA0}")
    vm("pf", f"global_load_dword v{vA0+1}, v{vA0}, {sr(sPC,2)}")
    C(f"16-key tiles = four 1-KiB key groups at address bits {ib}; bits {wb} = wave, bits {sb} = step: data sharing DRAM rows is fetched close in time")
    assert sorted(ib + wb + sb) == list(range(10, 19))
    a(f"s_lshl_b32 s{sOF}, s{sKVH}, 24"); a(f"s_lshl_b32 s{sTMP}, s{sJ}, 19"); a(f"s_or_b32 s{sOF}, s{sOF}, s{sTMP}")
    sh = {}
    for jb, ab in gx: assert ab in sb; sh[ab-jb] = sh.get(ab-jb, 0) | (1 << jb)
    for d, m in sh.items(): a(f"s_and_b32 s{sTMP}, s{sJ}, {m}"); a(f"s_lshl_b32 s{sTMP}, s{sTMP}, {d}"); a(f"s_xor_b32 s{sOF}, s{sOF}, s{sTMP}")
    a(f"s_mov_b32 s{sOF0}, s{sOF}")
    a(f"v_lshrrev_b32 v{vT2}, 6, v0"); a(f"v_and_b32 v{vL}, 63, v0")
    a(f"v_lshrrev_b32 v{vSL}, 4, v{vL}"); a(f"v_bfe_u32 v{vBK}, v{vL}, 2, 2")
    a(f"v_lshrrev_b32 v{vVW}, 1, v{vT2}"); a(f"v_lshlrev_b32 v{vVW}, {wb[1]}, v{vVW}"); a(f"v_and_b32 v{vT}, 1, v{vT2}"); a(f"v_lshl_add_u32 v{vVW}, v{vT}, {wb[0]}, v{vVW}")
    a(f"v_lshl_add_u32 v{vT}, v{vSL}, 4, v{vVW}"); a(f"v_lshl_add_u32 v{vT}, v{vBK}, 8, v{vT}")
    a(f"v_and_b32 v{vKH}, 1, v{vL}"); a(f"v_lshl_add_u32 v{vKH}, v{vKH}, 6, v{vT}"); a(f"v_and_b32 v{vE}, 2, v{vL}"); a(f"v_lshl_add_u32 v{vKH}, v{vE}, {ib[0]-1}, v{vKH}")
    a(f"s_lshl_b32 s{rK+2}, 1, 27"); a(f"s_mov_b32 s{rK+3}, 0x20000")
    a("s_waitcnt lgkmcnt(0)"); stamp()
    assert kseq[:first] == "h"*first
    for _ in range(first): issue()
    a(f"v_readfirstlane_b32 s{sW}, v{vT2}")
    a(f"s_lshl_b32 s{rV+2}, 1, 27"); a(f"s_mov_b32 s{rV+3}, 0x20000")
    a(f"v_lshl_add_u32 v{vKO}, v{vE}, {ib[1]-1}, v{vT}"); a(f"v_and_b32 v{vN}, 1, v{vL}"); a(f"v_lshl_add_u32 v{vKO}, v{vN}, {ib[0]}, v{vKO}")
    a(f"v_and_b32 v{vE}, 3, v{vL}"); a(f"v_and_b32 v{vN}, 15, v{vL}")
    a(f"v_lshlrev_b32 v{vVO}, 4, v{vL}"); a(f"v_add_u32 v{vVW}, v{vVW}, v{vVO}")
    C("stage 1: 120 blocks of 64 columns x 2 row halves; cb = (wg&7)*30 + j for j < 30, block cb>>1, half cb&1")
    a(f"s_mul_i32 s{sCB}, s{sKVH}, 30"); a(f"s_add_u32 s{sCB}, s{sCB}, s{sJ}")
    a(f"s_movk_i32 s{sCOL}, 184"); a(f"s_cmp_lt_u32 s{sCB}, s{sCOL}"); a(f"s_cselect_b32 s{sCOL}, 128, s{sCOL}")
    a(f"s_cselect_b64 {sr(rW1,2)}, {sr(sG,2)}, {sr(sU,2)}")
    a(f"s_cmp_lt_u32 s{sCB}, 128"); a(f"s_cselect_b32 s{sCOL}, 0, s{sCOL}")
    a(f"s_cselect_b64 {sr(rW1,2)}, {sr(sWQ,2)}, {sr(rW1,2)}")
    a(f"s_movk_i32 s{sSTR}, 3584"); a(f"s_cselect_b32 s{sSTR}, 8192, s{sSTR}")
    a(f"s_sub_u32 s{sCOL}, s{sCB}, s{sCOL}"); a(f"s_lshr_b32 s{sCOL}, s{sCOL}, 1"); a(f"s_lshl_b32 s{sCOL}, s{sCOL}, 7")
    a(f"s_and_b32 s{sTMP2}, s{sCB}, 1"); a(f"s_lshl_b32 s{sTMP2}, s{sTMP2}, 2"); a(f"s_add_u32 s{sTMP2}, s{sTMP2}, s{sW}"); a(f"s_lshl_b32 s{sTMP2}, s{sTMP2}, 6")
    a(f"s_mul_i32 s{sTMP}, s{sTMP2}, s{sSTR}"); a(f"s_add_u32 s{sCOL}, s{sCOL}, s{sTMP}")
    a(f"v_lshrrev_b32 v{vT2}, 3, v{vL}")
    a(f"s_lshl_b32 s{sTMP2}, s{sTMP2}, 1"); a(f"v_lshl_add_u32 v{vGO}, v{vT2}, 4, s{sTMP2}")
    a(f"s_lshl_b32 s{sTMP}, s{sSTR}, 3")
    a(f"v_mul_u32_u24 v{vGM}, s{sTMP}, v{vT2}"); a(f"v_and_b32 v{vT}, 7, v{vL}"); a(f"v_lshl_add_u32 v{vGM}, v{vT}, 4, v{vGM}")
    a(f"v_mov_b32 v{vNM}, {E_OFF}")
    a(f"s_mov_b32 s{rW1+3}, 0x20000")
    a(f"s_lshl_b32 s{rW1+2}, s{sSTR}, 9"); a(f"s_cmp_lt_u32 s{sJ}, 30"); a(f"s_cselect_b32 s{rW1+2}, s{rW1+2}, 0")
    vm("x", f"global_load_dword v{vNM}, v{vNM}, {sr(sWS,2)} sc1")
    vm("x", f"global_load_dwordx4 {vr(vSS,4)}, v{vVO}, {sr(sX,2)}")
    vm("x", f"global_load_dwordx4 {vr(vTT,4)}, v{vGO}, {sr(sX,2)}")
    if atom:
        C("wave 0 of the producers of gate blocks 0-3 (half 0) zeroes the output accumulators of column group 0-3; the stores are older than")
        C("its weight loads, hence complete before it publishes g, and every atomic add below is ordered after that hand-off")
        a(f"s_and_b32 s{sTMP}, s{sCB}, 0xf9"); a(f"s_lshl_b32 s{sTMP2}, s{sW}, 8"); a(f"s_or_b32 s{sTMP}, s{sTMP}, s{sTMP2}"); a(f"s_cmpk_lg_u32 s{sTMP}, 128"); a("s_cbranch_scc1 L_noinit")
        a(f"s_lshl_b32 s{sTMP}, s{sCB}, 12"); a(f"s_add_u32 s{sTMP}, s{sTMP}, {(S_OFF - (128 << 12)) & 0xffffffff:#x}")
        a(f"v_lshrrev_b32 v{vA1}, 2, v{vL}"); a(f"v_lshlrev_b32 v{vA1}, 8, v{vA1}"); a(f"v_lshl_add_u32 v{vA1}, v{vE}, 4, v{vA1}"); a(f"v_add_u32 v{vA1}, s{sTMP}, v{vA1}")
        a(f"v_add_u32 v{vA1+1}, 0x1000, v{vA1}")
        for r in range(4): a(f"v_mov_b32 v{vXX+r}, 0")
        a(f"global_store_dwordx4 v{vA1}, {vr(vXX,4)}, {sr(sWS,2)} sc1"); a(f"global_store_dwordx4 v{vA1+1}, {vr(vXX,4)}, {sr(sWS,2)} sc1")
        a("L_noinit:")
    for i in range(8):
        vm(("w1", i), f"buffer_load_dwordx4 {vr(vW+4*i,4)}, v{vGM}, {sr(rW1,4)}, s{sCOL} offen {wf}")
        if i < 7: a(f"s_add_u32 s{sCOL}, s{sCOL}, s{sSTR}")
    C("w_down tile: rows j*64 + 16w + 2*(l>>3) + i, columns (wg&7)*64 + 8*(l&7); j >= 28 lies outside the buffer and reads 0")
    a(f"s_mov_b64 {sr(rDN,2)}, {sr(sDN,2)}"); a(f"s_mov_b32 s{rDN+2}, {1792*1024}"); a(f"s_mov_b32 s{rDN+3}, 0x20000")
    a(f"s_lshl_b32 s{sSTR}, s{sJ}, 2"); a(f"s_add_u32 s{sSTR}, s{sSTR}, s{sW}")
    a(f"s_lshl_b32 s{sTMP}, s{sSTR}, 14"); a(f"s_lshl_b32 s{sTMP2}, s{sKVH}, 7"); a(f"s_add_u32 s{sTMP}, s{sTMP}, s{sTMP2}")
    a(f"v_lshlrev_b32 v{vT}, 4, v{vT}"); a(f"v_lshl_add_u32 v{vT}, v{vT2}, 11, v{vT}")
    for i in range(2): vm(("dn", i), f"buffer_load_dwordx4 {vr(vD+4*i,4)}, v{vT}, {sr(rDN,4)}, s{sTMP} offen offset:{1024*i} {wf}")
    issue()
    for k, m in ((sM1, 0x22222222), (sM2, 0x44444444), (sM3, 0x88888888), (sMO, 0xaaaaaaaa)):
        a(f"s_mov_b32 s{k}, {m:#x}"); a(f"s_mov_b32 s{k+1}, s{k}")
    a(f"s_mov_b32 s{sHI}, 0xffff0000"); a(f"s_mov_b32 s{sSC}, {f2u(128**-0.5):#x}"); a(f"s_mov_b32 s{sL2E}, {f2u(L2E):#x}")
    a(f"s_mov_b32 s{sTMO}, {tmo}")
    a(f"s_mov_b64 {sr(rWS,2)}, {sr(sWS,2)}"); a(f"s_mov_b32 s{rWS+2}, 0x20000000"); a(f"s_mov_b32 s{rWS+3}, 0x20000")
    C("masks that place one bf16 at element l&3 (K=16 MFMA) / l&7 (K=32 MFMA) of an A operand")
    a(f"v_and_b32 v{vT}, 1, v{vL}"); a(f"v_lshlrev_b32 v{vT}, 4, v{vT}"); a(f"v_mov_b32 v{vM1}, 0xffff")
    a(f"v_lshlrev_b32 v{vT2}, v{vT}, v{vM1}")
    a(f"v_cmp_gt_u32 vcc, 2, v{vE}"); a(f"v_cndmask_b32 v{vM0}, 0, v{vT2}, vcc"); a(f"v_xor_b32 v{vM1}, v{vT2}, v{vM0}")
    a(f"v_bfe_u32 v{vT}, v{vL}, 1, 2")
    for t in range(4):
        a(f"v_cmp_eq_u32 vcc, {t}, v{vT}"); a(f"v_cndmask_b32 v{vMK+t}, 0, v{vT2}, vcc")
    wait("x")
    a(f"v_readfirstlane_b32 s{sT}, v{vNM}")
    C("LayerNorm (bf16 rounding after every step, as the reference does)")
    F = vF
    unpack(F, vSS, 4)
    a(f"v_add_f32 v{vA0}, v{F}, v{F+1}")
    for i in range(2, 8): a(f"v_add_f32 v{vA0}, v{vA0}, v{F+i}")
    rowreduce("v_add_f32", (vA0,)); allreduce_rows("v_add_f32", vA0, vT)
    a(f"v_mul_f32 v{vA0}, {f2u(1/512):#x}, v{vA0}")
    for i in range(8): a(f"v_sub_f32 v{F+i}, v{F+i}, v{vA0}")
    a(f"v_mul_f32 v{vA1}, v{F}, v{F}")
    for i in range(1, 8): a(f"v_fmac_f32 v{vA1}, v{F+i}, v{F+i}")
    rowreduce("v_add_f32", (vA1,)); allreduce_rows("v_add_f32", vA1, vT)
    a(f"v_mul_f32 v{vA1}, {f2u(1/512):#x}, v{vA1}")
    a(f"v_cvt_pk_bf16_f32 v{vA0}, v{vA0}, v{vA1}")
    a(f"v_and_b32 v{vA1}, s{sHI}, v{vA0}"); a(f"v_lshlrev_b32 v{vA0}, 16, v{vA0}")
    a(f"v_add_f32 v{vA1}, {f2u(1e-5):#x}, v{vA1}"); rbf(vA1)
    a(f"v_sqrt_f32 v{vA1}, v{vA1}"); rbf(vA1)
    a(f"v_rcp_f32 v{vA1}, v{vA1}")
    unpack(F, vTT, 4)
    for i in range(8): a(f"v_sub_f32 v{F+i}, v{F+i}, v{vA0}")
    for i in range(4): a(f"v_cvt_pk_bf16_f32 v{vTT+i}, v{F+2*i}, v{F+2*i+1}")
    unpack(F, vTT, 4)
    for i in range(8): a(f"v_mul_f32 v{F+i}, v{F+i}, v{vA1}")
    for i in range(8): a(f"v_cvt_pk_bf16_f32 v{F+i}, v{F+i}, v{F+i}")
    for i in range(8):
        for t in range(4): a(f"v_and_b32 v{vS+4*i+t}, v{F+i}, v{vMK+t}")
    while nxt[0] < pre: issue()
    C("stage-1 GEMV: 64 rows x 64 columns per wave")
    for i in range(8):
        wait(("w1", i))
        a(f"v_mfma_f32_16x16x32_bf16 {vr(vA0,4)}, {vr(vS+4*i,4)}, {vr(vW+4*i,4)}, {'0' if i == 0 else vr(vA0,4)}")
    C("tag of this launch = epoch word + 0x01010101 (every byte differs from the previous launch's tag)")
    a(f"s_add_u32 s{sT}, s{sT}, 0x01010101")
    for k in range(4): a(f"s_bfe_u32 s{sTB+k}, s{sT}, {(8<<16)|(8*k):#x}")
    for k in range(4): a(f"s_and_b32 s{sTN[k]}, s{sTB+k}, {AM}")
    a(f"v_mov_b32 v{vFF}, 0xff")
    C("lanes with (l>>5) == ((l>>3)&1) hold columns 8*(l&7) + 4*((l>>4)&1) + r of row group l>>5")
    a(f"s_lshl_b32 s{sTMP}, s{sW}, 9")
    a(f"v_and_b32 v{vT}, 7, v{vL}"); a(f"v_lshl_add_u32 v{vT}, v{vT}, 5, s{sTMP}"); a(f"v_and_b32 v{vT2}, 16, v{vL}"); a(f"v_add_u32 v{vT}, v{vT}, v{vT2}")
    a(f"v_and_b32 v{vT2}, 32, v{vL}"); a(f"v_lshl_add_u32 v{vDGA}, v{vT2}, 3, v{vT}")
    gemv_store(L_S1)
    a("s_waitcnt lgkmcnt(0)"); a("s_barrier")
    only(0, "L_pub1_done")
    a(f"s_cmp_eq_u32 s{rW1+2}, 0"); a("s_cbranch_scc1 L_pub1_done")
    a("s_mov_b64 exec, 0xffff")
    a(f"s_lshr_b32 s{sTMP}, s{sCB}, 1"); a(f"s_lshl_b32 s{sTMP}, s{sTMP}, 8"); a(f"s_and_b32 s{sTMP2}, s{sCB}, 1"); a(f"s_mul_i32 s{sTMP2}, s{sTMP2}, {HALF}")
    a(f"s_add_u32 s{sTMP}, s{sTMP}, s{sTMP2}"); a(f"s_add_u32 s{sTMP}, s{sTMP}, {A1_OFF}")
    gemv_reduce(L_S1, vW)
    a(f"v_mov_b32 v{vT}, {AM}")
    for r in range(4): a(f"v_add_u32 v{vW+r}, {(AM+1)//2}, v{vW+r}")
    for r in range(4): a(f"v_bfi_b32 v{vA0+r}, v{vT}, s{sTB+r}, v{vW+r}")
    a(f"buffer_store_dwordx4 {vr(vA0,4)}, v{vVO}, {WS}, s{sTMP} offen sc1")
    a("s_mov_b64 exec, -1")
    a("L_pub1_done:")
    C("wave 1 posts {tag, XCD id}; a workgroup that later reads its own value from all 32 members of its group")
    C("knows that they share one L2 and may hand data over with plain stores; otherwise it writes through (sc1)")
    only(1, "L_nox")
    a(f"s_getreg_b32 s{sTMP}, hwreg(HW_REG_XCC_ID, 0, 4)"); a(f"s_lshl_b32 s{sXV}, s{sT}, 4"); a(f"s_or_b32 s{sXV}, s{sXV}, s{sTMP}")
    a(f"s_lshl_b32 s{sTMP}, s{sKVH}, 9"); a(f"s_lshl_b32 s{sTMP2}, s{sJ}, 2"); a(f"s_add_u32 s{sTMP}, s{sTMP}, s{sTMP2}"); a(f"s_add_u32 s{sTMP}, s{sTMP}, {X_OFF}")
    a(f"v_mov_b32 v{vT}, s{sXV}")
    a("s_mov_b64 exec, 1"); a(f"buffer_store_dword v{vT}, v{vVO}, {WS}, s{sTMP} offen"); a("s_mov_b64 exec, -1")
    a("L_nox:")
    a("s_barrier")
    stamp()
    issue(); issue()
    C("addresses used by the later hand-offs")
    a(f"v_and_b32 v{vT}, 7, v{vL}"); a(f"v_xor_b32 v{vT}, v{vT}, v{vSL}"); a(f"v_lshlrev_b32 v{vT}, 4, v{vT}")
    a(f"v_lshl_add_u32 v{vOAW}, v{vN}, 7, v{vT}"); a(f"s_lshl_b32 s{sTMP}, s{sW}, 11"); a(f"v_add_u32 v{vOAW}, s{sTMP}, v{vOAW}"); a(f"v_xor_b32 v{vOAW1}, 64, v{vOAW}")
    a(f"v_lshrrev_b32 v{vT2}, 3, v{vL}"); a(f"v_xor_b32 v{vOAR}, v{vT2}, v{vL}"); a(f"v_and_b32 v{vOAR}, 7, v{vOAR}"); a(f"v_lshlrev_b32 v{vOAR}, 4, v{vOAR}")
    a(f"v_lshl_add_u32 v{vOAR}, v{vT2}, 7, v{vOAR}")
    a(f"s_lshl_b32 s{sPM}, s{sKVH}, 5"); a(f"s_add_u32 s{sPM}, s{sPM}, s{sJ}")
    a(f"s_lshl_b32 s{sPP}, s{sPM}, 11"); a(f"s_add_u32 s{sPP}, s{sPP}, {P_OFF}")
    if atom:
        C("output columns of this wave: 128*(j&3) + 32w + (l>>1); accumulator pair {sum, count} at 64-byte blocks spread over the channels")
        a(f"s_and_b32 s{sTMP}, s{sSTR}, 15")
        a(f"s_lshl_b32 s{sPS}, s{sTMP}, 11"); a(f"s_add_u32 s{sPS}, s{sPS}, {S_OFF}")
        a(f"s_mul_i32 s{sGG}, s{sTMP}, {GST}"); a(f"s_add_u32 s{sGG}, s{sGG}, {G_OFF}")
        a(f"v_and_b32 v{vAA}, 7, v{vL}"); a(f"v_lshlrev_b32 v{vAA}, 3, v{vAA}"); a(f"v_lshl_add_u32 v{vAA}, v{vT2}, 8, v{vAA}")
        a(f"v_and_b32 v{vT}, 62, v{vL}"); a(f"v_lshlrev_b32 v{vGA}, 1, v{vT}")
        a(f"s_lshl_b32 s{sTMP}, s{sTMP}, 6"); a(f"v_add_u32 v{vXO+1}, s{sTMP}, v{vT}")
        a(f"s_lshl_b32 s{sTMP}, s{sW}, 7"); a(f"s_add_u32 s{sTMP}, s{sTMP}, {L_SR}"); a(f"v_add_u32 v{vSRR}, s{sTMP}, v{vGA}")
    else:
        a(f"s_lshl_b32 s{sPS}, s{sPM}, 9"); a(f"s_add_u32 s{sPS}, s{sPS}, {S_OFF}")
    a(f"s_lshl_b32 s{sPM}, s{sPM}, 6"); a(f"s_add_u32 s{sPM}, s{sPM}, {ML_OFF}")
    a(f"s_lshl_b32 s{sTMP}, s{sW}, 2"); a(f"s_add_u32 s{sTMP}, s{sTMP}, {L_ML}"); a(f"v_lshl_add_u32 v{vMLW}, v{vBK}, 4, s{sTMP}"); a(f"v_lshlrev_b32 v{vMLR}, 4, v{vE}")
    a(f"v_lshl_add_u32 v{vSRW}, v{vN}, 1, v{vSL}"); a(f"v_lshlrev_b32 v{vSRW}, 4, v{vSRW}"); a(f"s_lshl_b32 s{sTMP}, s{sW}, 9"); a(f"v_add_u32 v{vSRW}, s{sTMP}, v{vSRW}")
    a(f"v_lshlrev_b32 v{vL2K}, 11, v{vL}")
    C("wo tile: instruction i = head i, lane row (l>>4) = d offset (0,2,1,3)")
    a(f"v_lshrrev_b32 v{vT}, 5, v{vL}"); a(f"v_and_b32 v{vWOO}, 16, v{vL}"); a(f"v_lshlrev_b32 v{vWOO}, 7, v{vWOO}"); a(f"v_lshl_add_u32 v{vWOO}, v{vT}, 10, v{vWOO}"); a(f"v_lshl_add_u32 v{vWOO}, v{vN}, 4, v{vWOO}")
    if atom:
        C("wave 2 of workgroups 30 and 31 of the group owns 32 columns of the GLU gate: line f = (wg&7)*2 + (j&1)")
        a(f"s_lshl_b32 s{sF}, s{sKVH}, 1"); a(f"s_and_b32 s{sTMP}, s{sJ}, 1"); a(f"s_add_u32 s{sF}, s{sF}, s{sTMP}")
        a(f"s_lshl_b32 s{sRG}, s{sF}, 7"); a(f"s_add_u32 s{sRG}, s{sRG}, {Y_OFF}")
        a(f"v_and_b32 v{vT}, 7, v{vL}"); a(f"v_lshlrev_b32 v{vT}, 4, v{vT}"); a(f"v_lshl_add_u32 v{vL2K}, v{vT2}, 11, v{vT}")
        a(f"s_cmp_ge_u32 s{sJ}, 30"); a(f"s_cselect_b32 s{sF}, s{sF}, 999")
        a(f"s_cmp_eq_u32 s{sW}, 2"); a(f"s_cselect_b32 s{sF}, s{sF}, 999")
    else:
        C("wave 2 of workgroups with j >= 16 owns columns 4f..4f+3 of the GLU gate, f = (wg&7)*16 + (j&15)")
        a(f"s_lshl_b32 s{sF}, s{sKVH}, 4"); a(f"s_and_b32 s{sTMP}, s{sJ}, 15"); a(f"s_add_u32 s{sF}, s{sF}, s{sTMP}")
        if not atom:
            a(f"v_and_b32 v{vXO+1}, 1, v{vSL}"); a(f"v_lshl_add_u32 v{vT}, v{vXO+1}, 1, v{vT}"); a(f"s_lshl_b32 s{sTMP}, s{sF}, 2"); a(f"v_add_lshl_u32 v{vXO+1}, v{vT}, s{sTMP}, 1")
        a(f"s_lshl_b32 s{sRG}, s{sF}, 4"); a(f"s_add_u32 s{sRG}, s{sRG}, {Y_OFF}")
        a(f"s_cmp_ge_u32 s{sJ}, 16"); a(f"s_cselect_b32 s{sF}, s{sF}, 999")
        a(f"s_cmp_eq_u32 s{sW}, 2"); a(f"s_cselect_b32 s{sF}, s{sF}, 999")
    while nxt[0] < qpos: issue()
    C("gather: wave w sums, rounds and shares dims 32w..32w+31 of q (MFMA B layout, head = (l>>2)&3); plus this wave's g / u rows")
    a(f"v_lshlrev_b32 v{vGO}, 9, v{vBK}"); a(f"v_lshl_add_u32 v{vGO}, v{vSL}, 5, v{vGO}")
    a(f"s_lshl_b32 s{sCB}, s{sKVH}, 11"); a(f"s_lshl_b32 s{sTMP}, s{sW}, 7"); a(f"s_add_u32 s{sCB}, s{sCB}, s{sTMP}"); a(f"s_add_u32 s{sCB}, s{sCB}, {A1_OFF}"); a(f"s_add_u32 s{sGM}, s{sCB}, {HALF}")
    a(f"v_lshlrev_b32 v{vGM}, 3, v{vT2}")
    a(f"s_min_u32 s{sTMP}, s{sSTR}, 111")
    a(f"s_lshl_b32 s{sGO0}, s{sTMP}, 6"); a(f"s_add_u32 s{sGO0}, s{sGO0}, {A1_OFF + 4096*4}"); a(f"s_add_u32 s{sGO1}, s{sGO0}, {1792*4}")
    a(f"s_add_u32 s{sA}, s{sGO0}, {HALF}"); a(f"s_add_u32 s{sB}, s{sGO1}, {HALF}")
    def qloads(fl, e):
        for half, so in enumerate((sCB, sGM)):
            for h in range(2): e("q", f"buffer_load_dwordx4 {vr(vW+8*half+4*h,4)}, v{vGO}, {WS}, s{so} offen offset:{16*h} {fl}")
        for k, so in enumerate((sGO0, sGO1, sA, sB)): e("q", f"buffer_load_dwordx2 {vr(vGU+2*k,2)}, v{vGM}, {WS}, s{so} offen {fl}")
    raw = lambda tag, text: a(text)
    qloads("", vm)
    while nxt[0] < NS: issue()
    a(f"v_and_b32 v{vT}, 8, v{vL}"); a(f"v_lshlrev_b32 v{vT}, 1, v{vT}"); a(f"v_lshrrev_b32 v{vT}, v{vT}, s{sT}")
    a(f"v_and_b32 v{vTA}, {AM}, v{vT}"); a(f"v_bfe_u32 v{vTB}, v{vT}, 8, {abits}")
    a(f"s_lshl_b32 s{sTMP}, s{sW}, 10"); a(f"v_add_u32 v{vXG}, s{sTMP}, v{vVO}")
    wait("q")
    a("L_qchk:")
    for i in range(16): a(f"v_xor_b32 v{vW+i}, s{sTN[i&3]}, v{vW+i}")
    for i in range(8): a(f"v_xor_b32 v{vGU+i}, v{vTB if i&1 else vTA}, v{vGU+i}")
    a(f"v_or_b32 v{vT}, v{vW}, v{vW+1}")
    for i in range(2, 16, 2): a(f"v_or3_b32 v{vT}, v{vT}, v{vW+i}, v{vW+i+1}")
    for i in range(0, 8, 2): a(f"v_or3_b32 v{vT}, v{vT}, v{vGU+i}, v{vGU+i+1}")
    a(f"v_and_b32 v{vT}, {AM}, v{vT}")
    a(f"v_cmp_ne_u32 vcc, 0, v{vT}")
    retry("q", lambda: qloads("sc1", raw))
    add4(vW, vW, vW+8); add4(vW+4, vW+4, vW+12)
    for i in range(4): a(f"v_cvt_pk_bf16_f32 v{vW+i}, v{vW+2*i}, v{vW+2*i+1}")
    a(f"ds_write_b128 v{vXG}, {vr(vW,4)} offset:{L_Q}")
    add4(vGU, vGU, vGU+4)
    for i in range(4): a(f"v_cvt_pk_bf16_f32 v{vGU+i}, v{vGU+i}, v{vGU+i}")
    a("s_waitcnt lgkmcnt(0)"); a("s_barrier")
    for jj in range(4): a(f"ds_read_b128 {vr(vQ+4*jj,4)}, v{vVO} offset:{L_Q+1024*jj}")
    a("s_waitcnt lgkmcnt(0)")
    for b in range(2):
        for t in range(4): a(f"v_cndmask_b32 v{vQH+4*b+t}, v{vQ+8*b+t}, v{vQ+8*b+4+t}, {sr(sMO,2)}")
    stamp()
    C("pass 1: scores.  lane l keeps s[key 4*(l&3) + (l>>4) of the tile][head (l>>2)&3], one register per tile")
    for t in range(NT):
        b = 16*slot[t]
        wait((t, 3))
        if kseq[t] == "r":
            for i in range(4): a(f"v_mfma_f32_16x16x32_bf16 {vr(vSS,4)}, {ar(b+4*i,4)}, {vr(vQ+4*i,4)}, {'0' if i == 0 else vr(vSS,4)}")
        else:
            for i in (0, 2, 1, 3): a(f"v_mfma_f32_16x16x32_bf16 {vr(vSS+4*(i>>1),4)}, {ar(b+4*i,4)}, {vr(vQH+4*(i&1),4)}, {'0' if i&1 == 0 else vr(vSS+4*(i>>1),4)}")
        free.append(slot[t])
        if nxt[0] - (t+1) < RD or t % (kskip+1) == 0: issue()
        x = vS + t
        if kseq[t] == "r": sel4(x, vSS, vSS+1, vSS+2, vSS+3)
        else:
            sel4(vT, vSS+2, vSS+1, vSS+6, vSS+5); sel4(x, vSS, vSS+3, vSS+4, vSS+7)
            a(f"v_add_f32_dpp v{x}, v{vT}, v{x} quad_perm:[1,0,3,2] {DP}")
        rbf(x); a(f"v_mul_f32 v{x}, s{sSC}, v{x}"); rbf(x)
        if t == 1: a(f"v_max_f32 v{vNM}, v{x-1}, v{x}")
        elif t % 2 == 1: a(f"v_max3_f32 v{vNM}, v{vNM}, v{x-1}, v{x}")
        if t == yt:
            C("GLU: h = bf16(bf16(sigmoid(g)) * u), partial y = h @ w_down tile")
            for i in range(4): a(f"v_and_b32 v{vGU+i}, s{sHI}, v{vGU+i}")
            for op in (f"v_mul_f32 v{{0}}, {f2u(-L2E):#x}, v{{0}}", "v_exp_f32 v{0}, v{0}", "v_add_f32 v{0}, 1.0, v{0}", "v_rcp_f32 v{0}, v{0}",
                       "v_cvt_pk_bf16_f32 v{0}, v{0}, v{0}", f"v_and_b32 v{{0}}, s{sHI}, v{{0}}", "v_mul_f32 v{0}, v{0}, v{1}", "v_cvt_pk_bf16_f32 v{0}, v{0}, v{0}"):
                for i in range(2): a(op.format(vGU+i, vGU+2+i))
            for i in range(2):
                for k in range(4): a(f"v_and_b32 v{vXX+4*i+k}, v{vGU+i}, v{vMK+k}")
            for i in range(2):
                wait(("dn", i)); a(f"v_mfma_f32_16x16x32_bf16 {vr(vA0,4)}, {vr(vXX+4*i,4)}, {vr(vD+4*i,4)}, {'0' if i == 0 else vr(vA0,4)}")
            C("gather addresses: (m,l) lane = (producer 4*(l>>4)+(l&3), head (l>>2)&3); o lane = (producer l>>2, head l&3)")
            a(f"v_lshrrev_b32 v{vGO}, 2, v{vL}"); a(f"v_lshlrev_b32 v{vGO}, 11, v{vGO}"); a(f"v_lshl_add_u32 v{vGO}, v{vE}, 4, v{vGO}")
            a(f"v_lshlrev_b32 v{vGM}, 4, v{vBK}"); a(f"v_lshl_add_u32 v{vGM}, v{vE}, 6, v{vGM}"); a(f"v_lshl_add_u32 v{vGM}, v{vSL}, 8, v{vGM}")
            a(f"s_and_b32 s{sTMP}, s{sJ}, 28"); a(f"s_add_u32 s{sA}, s{sTMP}, s{sW}")
            a(f"s_lshl_b32 s{sTMP}, s{sKVH}, 16"); a(f"s_lshl_b32 s{sTMP2}, s{sA}, 6"); a(f"s_add_u32 s{sGO0}, s{sTMP}, s{sTMP2}")
            a(f"s_add_u32 s{sGO0}, s{sGO0}, {P_OFF}"); a(f"s_add_u32 s{sGO1}, s{sGO0}, 0x8000")
            a(f"s_lshl_b32 s{sGM}, s{sKVH}, 11"); a(f"s_add_u32 s{sGM}, s{sGM}, {ML_OFF}")
            a(f"s_lshl_b32 s{sTMP}, s{sKVH}, 19"); a(f"s_lshl_b32 s{sTMP2}, s{sA}, 12"); a(f"s_add_u32 s{sCB}, s{sTMP}, s{sTMP2}")
            a(f"s_and_b32 s{sTMP}, s{sJ}, 3"); a(f"s_lshl_b32 s{sTMP}, s{sTMP}, 8"); a(f"s_add_u32 s{sCB}, s{sCB}, s{sTMP}")
            a(f"s_mov_b64 {sr(rDN,2)}, {sr(sWO,2)}"); a(f"s_mov_b32 s{rDN+2}, {4096*1024}")
            gemv_store(L_Y)
        if t == xget:
            C("wave 1: lanes 0-31 read the group's XCD words, lanes 32-63 pull the progress-flag line into L2")
            only(1, "L_noxg")
            a(f"s_lshl_b32 s{sTMP}, s{sKVH}, 9"); a(f"s_add_u32 s{sTMP}, s{sTMP}, {X_OFF}"); a(f"v_lshlrev_b32 v{vT}, 2, v{vL}")
            if len(ctrl) > 1:
                a(f"v_min_u32 v{vT2}, {len(ctrl)}, v{vE}"); a(f"v_lshlrev_b32 v{vT2}, 7, v{vT2}"); a(f"v_cmp_gt_u32 vcc, 32, v{vL}"); a(f"v_cndmask_b32 v{vT}, v{vT2}, v{vT}, vcc")
            a(f"buffer_load_dword v{vXG}, v{vT}, {WS}, s{sTMP} offen sc1")
            a("L_noxg:"); xmark = len(Q)
        if t > xget and xmark is not None and done[0] > xmark:
            xmark = None
            only(1, "L_noxg2")
            a(f"v_cmp_ne_u32 vcc, s{sXV}, v{vXG}"); a("s_cmp_eq_u32 vcc_lo, 0"); a(f"s_cselect_b32 s{sTMP}, 1, 0")
            if force is not None: a(f"s_mov_b32 s{sTMP}, {force}")
            a(f"v_mov_b32 v{vT}, 0"); a(f"v_mov_b32 v{vT2}, s{sTMP}"); a(f"ds_write_b32 v{vT}, v{vT2} offset:{L_CF}")
            a("L_noxg2:")
    C("wave max per head, e = exp(s - max), wave sum")
    allreduce_quad("v_max_f32", vNM); allreduce_rows("v_max_f32", vNM, vT)
    a(f"v_mul_f32 v{vNM}, {f2u(-L2E):#x}, v{vNM}")
    for t0 in range(0, NT, 4):
        for t in range(t0, t0+4): a(f"v_fma_f32 v{vS+t}, v{vS+t}, s{sL2E}, v{vNM}")
        for t in range(t0, t0+4): a(f"v_exp_f32 v{vS+t}, v{vS+t}")
        if t0 == 0: a(f"v_add_f32 v{vLS}, v{vS}, v{vS+1}"); a(f"v_add_f32 v{vT2}, v{vS+2}, v{vS+3}")
        else:
            for t in range(t0, t0+4): a(f"v_add_f32 v{vLS if t&1 else vT2}, v{vLS if t&1 else vT2}, v{vS+t}")
    a(f"v_add_f32 v{vLS}, v{vLS}, v{vT2}")
    allreduce_quad("v_add_f32", vLS); allreduce_rows("v_add_f32", vLS, vT)
    C("wave 0 merges and publishes the four (-max, sum) pairs, wave 3 the y partial; the others hold their loads until the stores are out")
    a(f"ds_write2_b32 v{vMLW}, v{vNM}, v{vLS} offset0:0 offset1:16")
    a(f"v_lshlrev_b32 v{vTA}, 2, v{vL}"); a(f"v_mov_b32 v{vTB}, 1"); a(f"v_mov_b32 v{vT}, 0")
    a(f"ds_write_b32 v{vTA}, v{vT} offset:{L_CNT}")
    if not atom: a(f"ds_write_b32 v{vTA}, v{vT} offset:{L_CNT+256}")
    a("s_waitcnt lgkmcnt(0)"); a("s_barrier")
    a(f"ds_read_b32 v{vT2}, v{vT} offset:{L_CF}"); a("s_waitcnt lgkmcnt(0)"); a(f"v_readfirstlane_b32 s{sFAST}, v{vT2}")
    only(3, "L_noypub")
    a(f"s_cmp_ge_u32 s{sJ}, 28"); a("s_cbranch_scc1 L_noypub")
    a("s_mov_b64 exec, 0xffff")
    a(f"s_lshl_b32 s{sTMP}, s{sJ}, 11"); a(f"s_lshl_b32 s{sTMP2}, s{sKVH}, 8"); a(f"s_add_u32 s{sTMP}, s{sTMP}, s{sTMP2}"); a(f"s_add_u32 s{sTMP}, s{sTMP}, {Y_OFF}")
    gemv_reduce(L_Y, vW)
    for r in range(4): a(f"v_add_u32 v{vW+r}, 0x80, v{vW+r}")
    for r in range(4): a(f"v_bfi_b32 v{vW+r}, v{vFF}, s{sTB+r}, v{vW+r}")
    a(f"s_cmp_eq_u32 s{sFAST}, 0")
    store_group("y", f"buffer_store_dwordx4 {vr(vW,4)}, v{vVO}, {WS}, s{sTMP} offen")
    a("s_mov_b64 exec, -1")
    a("L_noypub:")
    only(0, "L_nomlpub")
    a(f"ds_read_b128 {vr(vSS,4)}, v{vMLR} offset:{L_ML}"); a(f"ds_read_b128 {vr(vTT,4)}, v{vMLR} offset:{L_ML+64}")
    a("s_waitcnt lgkmcnt(0)")
    a(f"v_min3_f32 v{vA1}, v{vSS}, v{vSS+1}, v{vSS+2}"); a(f"v_min_f32 v{vA1}, v{vA1}, v{vSS+3}")
    for w in range(4): a(f"v_sub_f32 v{vSS+w}, v{vA1}, v{vSS+w}")
    for w in range(4): a(f"v_exp_f32 v{vSS+w}, v{vSS+w}")
    a(f"v_mov_b32 v{vA1+2}, s{sT}"); a(f"v_mov_b32 v{vA1+3}, s{sT}")
    a(f"v_mul_f32 v{vA1+1}, v{vSS}, v{vTT}")
    for w in range(1, 4): a(f"v_fmac_f32 v{vA1+1}, v{vSS+w}, v{vTT+w}")
    a("s_mov_b64 exec, 0xf")
    a(f"s_cmp_eq_u32 s{sFAST}, 0")
    store_group("ml", f"buffer_store_dwordx4 {vr(vA1,4)}, v{vVO}, {WS}, s{sPM} offen")
    a("s_mov_b64 exec, -1")
    a("L_nomlpub:")
    a("s_barrier")
    stamp()
    if not atom:
        C("lanes of the s-partial store whose consumers are members of this (proven local) group")
        a(f"s_and_b32 s{sTMP}, s{sJ}, 3"); a(f"s_lshr_b32 s{sTMP2}, s{sKVH}, 1"); a(f"s_cmp_eq_u32 s{sTMP}, s{sTMP2}"); a(f"s_cselect_b32 s{sLOC}, s{sFAST}, 0")
        a(f"s_mul_i32 s{sLOC}, s{sLOC}, 0xffff"); a(f"s_and_b32 s{sTMP}, s{sKVH}, 1"); a(f"s_lshl_b32 s{sTMP}, s{sTMP}, 4"); a(f"s_lshl_b32 s{sLOC}, s{sLOC}, s{sTMP}")
    yload = f"buffer_load_dwordx4 {vr(vGS,4)}, v{vL2K}, {WS}, s{sRG} offen sc1"
    def yget_block():
        a(f"s_cmp_ge_u32 s{sF}, 128"); a("s_cbranch_scc1 L_noyget")
        if not atom: a(f"global_load_ushort v{vXO}, v{vXO+1}, {sr(sX,2)}")
        for r in range(4): a(f"v_mov_b32 v{vGS+r}, 0")
        a("s_mov_b64 exec, 0xfffffff"); a(yload); a("s_mov_b64 exec, -1")
        a("L_noyget:")
    def gate_block():
        C("gate owner: y = sum of the 28 row-group partials, g = bf16(silu(bf16(y))); rows of 16 lanes hold columns (0,2,1,3)")
        a(f"s_cmp_ge_u32 s{sF}, 128"); a("s_cbranch_scc1 L_nog")
        a("s_mov_b64 exec, 0xfffffff")
        a("L_ychk:")
        untag4(vGS)
        retry("y", lambda: a(yload))
        a("s_mov_b64 exec, -1")
        fold4(vGS); rowreduce("v_add_f32", (vGS,)); rbf(vGS)
        a(f"v_mul_f32 v{vT}, {f2u(-L2E):#x}, v{vGS}"); a(f"v_exp_f32 v{vT}, v{vT}"); a(f"v_add_f32 v{vT}, 1.0, v{vT}"); a(f"v_rcp_f32 v{vT}, v{vT}")
        a(f"v_mul_f32 v{vGS}, v{vGS}, v{vT}"); rbf(vGS)
        if atom:
            a(f"s_and_b32 s{sA}, s{sT}, 0xffff"); a(f"s_lshr_b32 s{sB}, s{sT}, 16")
            for r, ln in ((1, 32), (2, 16), (3, 48), (0, 0)):
                a(f"v_readlane_b32 s{sTMP}, v{vGS}, {ln}"); a(f"s_or_b32 s{sTMP}, s{sTMP}, s{sB if r&1 else sA}"); a(f"v_mov_b32 v{vGS+r}, s{sTMP}")
            a(f"s_add_u32 s{sRG}, s{sRG}, {G_OFF - Y_OFF}")
            a("s_mov_b64 exec, 1"); a(f"buffer_store_dwordx4 {vr(vGS,4)}, v{vVO}, {WS}, s{sRG} offen sc1"); a("s_mov_b64 exec, -1")
        else:
            a(f"v_lshlrev_b32 v{vXO}, 16, v{vXO}"); a(f"s_add_u32 s{sRG}, s{sRG}, {S_OFF - Y_OFF}")
        a("L_nog:")
    if atom:
        vY = vQ
        def yloads():
            for i in range(4):
                if i == 3: a("s_mov_b32 exec_hi, 0")
                a(f"s_add_u32 s{sTMP}, s{sRG}, {16384*i}"); a(f"buffer_load_dwordx4 {vr(vY+4*i,4)}, v{vL2K}, {WS}, s{sTMP} offen sc1")
            a("s_mov_b64 exec, -1")
        def yget_block():
            a(f"s_cmp_ge_u32 s{sF}, 128"); a("s_cbranch_scc1 L_noyget")
            for r in range(4): a(f"v_mov_b32 v{vY+12+r}, 0")
            yloads()
            a("L_noyget:")
        def gate_block():
            C("gate owner: y = sum of the 28 row-group partials, g = bf16(silu(bf16(y))), published as one line of {bf16, tag} words")
            a(f"s_cmp_ge_u32 s{sF}, 128"); a("s_cbranch_scc1 L_nog")
            a("L_ychk:")
            a("s_mov_b32 exec_hi, 0")
            for r in range(4): a(f"v_xor_b32 v{vY+12+r}, s{sTB+r}, v{vY+12+r}")
            a("s_mov_b64 exec, -1")
            for r in range(12): a(f"v_xor_b32 v{vY+r}, s{sTB+(r&3)}, v{vY+r}")
            a(f"v_or_b32 v{vT}, v{vY}, v{vY+1}")
            for r in range(2, 16, 2): a(f"v_or3_b32 v{vT}, v{vT}, v{vY+r}, v{vY+r+1}")
            a(f"v_and_b32 v{vT}, v{vFF}, v{vT}"); a(f"v_cmp_ne_u32 vcc, 0, v{vT}")
            retry("y", yloads)
            add4(vY, vY, vY+4); add4(vY+8, vY+8, vY+12); add4(vY, vY, vY+8)
            rowreduce("v_add_f32", [vY+r for r in range(4)], (8,))
            for sw in (16, 32):
                for r in range(4): a(f"v_mov_b32 v{vY+4+r}, v{vY+r}")
                for r in range(4): a(f"v_permlane{sw}_swap_b32 v{vY+r}, v{vY+4+r}")
                add4(vY, vY, vY+4)
            for op in ("v_cvt_pk_bf16_f32 v{0}, v{0}, v{0}", f"v_and_b32 v{{0}}, s{sHI}, v{{0}}", f"v_mul_f32 v{{1}}, {f2u(-L2E):#x}, v{{0}}", "v_exp_f32 v{1}, v{1}",
                       "v_add_f32 v{1}, 1.0, v{1}", "v_rcp_f32 v{1}, v{1}", "v_mul_f32 v{0}, v{0}, v{1}", "v_cvt_pk_bf16_f32 v{0}, v{0}, v{0}"):
                for r in range(4): a(op.format(vY+r, vY+4+r))
            a(f"s_and_b32 s{sA}, s{sT}, 0xffff"); a(f"s_lshr_b32 s{sB}, s{sT}, 16")
            for r in range(4): a(f"v_lshl_or_b32 v{vY+r}, v{vY+r}, 16, s{sB if r&1 else sA}")
            a(f"s_mul_i32 s{sTMP}, s{sF}, {GST}"); a(f"s_add_u32 s{sTMP}, s{sTMP}, {G_OFF}")
            a("s_mov_b64 exec, 0xff"); a(f"buffer_store_dwordx4 {vr(vY,4)}, v{vVO}, {WS}, s{sTMP} offen sc1"); a("s_mov_b64 exec, -1")
            a("L_nog:")
    while nxt[0] < NT + mpos: issue()
    if atom: yget_block()
    def mloads(fl, e):
        e("m", f"buffer_load_dwordx4 {vr(vW,4)}, v{vGM}, {WS}, s{sGM} offen {fl}")
        e("m", f"buffer_load_dwordx4 {vr(vW+4,4)}, v{vGM}, {WS}, s{sGM} offen offset:1024 {fl}")
    mloads("", vm)
    while nxt[0] < NT + NS: issue()
    wait("m")
    a("L_mchk:")
    a(f"v_xor_b32 v{vT}, s{sT}, v{vW+2}"); a(f"v_xor_b32 v{vT2}, s{sT}, v{vW+6}"); a(f"v_or_b32 v{vT}, v{vT}, v{vT2}")
    a(f"v_cmp_ne_u32 vcc, 0, v{vT}")
    retry("m", lambda: mloads("sc1", raw))
    C("row max M and row sum L over all 65536 keys; p = bf16(e * exp(m_wave - M) / L)")
    a(f"v_min_f32 v{vT2}, v{vW}, v{vW+4}")
    allreduce_quad("v_min_f32", vT2); allreduce_rows("v_min_f32", vT2, vT)
    a(f"v_sub_f32 v{vW}, v{vT2}, v{vW}"); a(f"v_sub_f32 v{vW+4}, v{vT2}, v{vW+4}"); a(f"v_sub_f32 v{vNM}, v{vT2}, v{vNM}")
    a(f"v_exp_f32 v{vW}, v{vW}"); a(f"v_exp_f32 v{vW+4}, v{vW+4}"); a(f"v_exp_f32 v{vNM}, v{vNM}")
    a(f"v_mul_f32 v{vLS}, v{vW}, v{vW+1}"); a(f"v_fmac_f32 v{vLS}, v{vW+4}, v{vW+5}")
    allreduce_quad("v_add_f32", vLS); allreduce_rows("v_add_f32", vLS, vT)
    a(f"v_rcp_f32 v{vLS}, v{vLS}")
    a(f"v_mul_f32 v{vNM}, v{vNM}, v{vLS}")
    stamp()
    C("pass 2: o[head l>>4][d = 8*(l&15) + 4a + r] += p * V  (A operand: p at element l&3 of row 4*head + (l&3))")
    def gcheck():
        C("gate value and x element of this lane's output column")
        a(f"v_and_b32 v{vT2}, 2, v{vL}"); a(f"v_lshlrev_b32 v{vT2}, 3, v{vT2}"); a(f"v_lshrrev_b32 v{vT2}, v{vT2}, s{sT}")
        a("L_gchk:")
        a(f"v_xor_b32 v{vT}, v{vT2}, v{vGV}"); a(f"v_and_b32 v{vT}, 0xffff, v{vT}"); a(f"v_cmp_ne_u32 vcc, 0, v{vT}")
        retry("g", lambda: a(f"buffer_load_dword v{vGV}, v{vGA}, {WS}, s{sGG} offen sc1"))
        a(f"v_and_b32 v{vGV}, s{sHI}, v{vGV}"); a(f"v_lshlrev_b32 v{vXO}, 16, v{vXO}")
        a(f"s_mov_b32 s{sA}, {f2u(64.0):#x}")
    def pprep(t): a(f"v_mul_f32 v{vS+t}, v{vS+t}, v{vNM}"); a(f"v_cvt_pk_bf16_f32 v{vS+t}, v{vS+t}, v{vS+t}")
    pprep(0); ymark = None; gdone = not atom or gpos is None
    for t in range(NT):
        h = NT + t; b = 16*slot[h]
        if t+1 < NT: pprep(t+1)
        for i in range(4):
            for k, m in enumerate((vM0, vM1)): a(f"v_and_b32_dpp v{vXX+2*i+k}, v{vS+t}, v{m} quad_perm:[{i},{i},{i},{i}] {DP}")
        for i in range(4):
            wait((h, i if t == NT-1 else 3))
            for k, acc in enumerate((vA0, vA1)): a(f"v_mfma_f32_16x16x16_bf16 {vr(acc,4)}, {vr(vXX+2*i,2)}, {ar(b+4*i+2*k,2)}, {'0' if t+i == 0 else vr(acc,4)}")
        free.append(slot[h])
        if t == wot:
            assert nxt[0] == 2*NT
            for r in range(4):
                vm("wo", f"buffer_load_dwordx4 {vr(vWO+4*r,4)}, v{vWOO}, {sr(rDN,4)}, s{sCB} offen {wf}")
                if r < 3: a(f"s_add_u32 s{sCB}, s{sCB}, {128*1024}")
        if nxt[0] < 2*NT and (nxt[0] - (h+1) < RV or t % (vskip+1) == 0): issue()
        if atom:
            if t == gt: gate_block()
            if not gdone and "gg" in Q and done[0] > max(i for i, x in enumerate(Q) if x == "gg"):
                gdone = True
                gcheck()
        else:
            if t == yget: yget_block(); ymark = len(Q)
            elif ymark is not None and done[0] > ymark: gate_block(); ymark = None
    assert gdone and ymark is None and nxt[0] == 2*NT
    stamp()
    if notail:
        for k in range(nst[0], nst[0]+3): a(f"s_memrealtime s[{sST+2*k}:{sST+2*k+1}]")
        a("s_branch L_fin")
    if atom and gpos is None:
        a(f"global_load_ushort v{vXO}, v{vXO+1}, {sr(sX,2)}"); a(f"buffer_load_dword v{vGV}, v{vGA}, {WS}, s{sGG} offen")
        if otouch: a(f"global_load_ushort v{vXO+2}, v{vXO+1}, {sr(sOUT,2)}")
    C("the wave whose LDS ticket is the last one sums the four partial o and publishes them (128 granules of 4 d-values)")
    a(f"ds_write_b128 v{vOAW}, {vr(vA0,4)} offset:{L_OA}"); a(f"ds_write_b128 v{vOAW1}, {vr(vA1,4)} offset:{L_OA}")
    a(f"ds_add_rtn_u32 v{vT2}, v{vTA}, v{vTB} offset:{L_CNT}")
    for hf in range(2):
        for w in range(4): a(f"ds_read_b128 {vr(vW+16*hf+4*w,4)}, v{vOAR} offset:{L_OA+2048*w+1024*hf}")
    a(f"s_cmp_eq_u32 s{sFAST}, 0")
    a("s_waitcnt lgkmcnt(8)")
    a(f"v_cmp_eq_u32 vcc, 3, v{vT2}"); a("s_cbranch_vccz L_notlast")
    for hf in range(2):
        b = vW+16*hf
        for w in range(1, 4): a(f"s_waitcnt lgkmcnt({7-4*hf-w})"); add4(b, b, b+4*w)
        for r in range(4): a(f"v_bfi_b32 v{vA0+4*hf+r}, v{vFF}, s{sTB+r}, v{b+r}")
        store_group(f"p{hf}", f"buffer_store_dwordx4 {vr(vA0+4*hf,4)}, v{vVO}, {WS}, s{sPP} offen offset:{1024*hf}")
    a("L_notlast:")
    a("s_waitcnt lgkmcnt(0)")
    if amp:
        only(3, "L_noamp")
        a("s_memrealtime s[98:99]"); a("s_waitcnt lgkmcnt(0)")
        a(f"v_mov_b32 v{vSS}, s96"); a(f"v_mov_b32 v{vSS+1}, s98"); a(f"s_lshl_b32 s{sTMP}, s2, 3"); a(f"s_add_u32 s{sTMP}, s{sTMP}, {ST_OFF}")
        a("s_mov_b64 exec, 1"); a(f"buffer_store_dwordx2 {vr(vSS,2)}, v{vVO}, {WS}, s{sTMP} offen sc1"); a("s_mov_b64 exec, -1")
        a("L_noamp:")
    stamp()
    C("gather 4 heads x 4 d-values from the 32 splits, multiply with the wo tile (16 rows x 128 columns per wave)")
    O0, O1 = vW, vW+4
    a("L_apoll:")
    a(f"buffer_load_dwordx4 {vr(O0,4)}, v{vGO}, {WS}, s{sGO0} offen sc1")
    a(f"buffer_load_dwordx4 {vr(O1,4)}, v{vGO}, {WS}, s{sGO1} offen sc1")
    a("s_waitcnt vmcnt(1)")
    for i in range(4): a(f"v_xor_b32 v{O0+i}, s{sTB+i}, v{O0+i}")
    a(f"v_or3_b32 v{vT}, v{O0}, v{O0+1}, v{O0+2}")
    a("s_waitcnt vmcnt(0)")
    for i in range(4): a(f"v_xor_b32 v{O1+i}, s{sTB+i}, v{O1+i}")
    a(f"v_or3_b32 v{vT}, v{vT}, v{O0+3}, v{O1}"); a(f"v_or3_b32 v{vT2}, v{O1+1}, v{O1+2}, v{O1+3}")
    a(f"v_or_b32 v{vT}, v{vT}, v{vT2}"); a(f"v_and_b32 v{vT}, v{vFF}, v{vT}")
    a(f"v_cmp_ne_u32 vcc, 0, v{vT}"); a("s_cbranch_vccz L_aok")
    a("s_mov_b64 exec, vcc")
    timeout("L_apoll")
    a("L_aok:")
    a("s_mov_b64 exec, -1")
    stamp()
    add4(O0, O0, O1); fold4(O0); rowreduce("v_add_f32", (O0,), (8, 4))
    a(f"v_cvt_pk_bf16_f32 v{O0}, v{O0}, v{O0}")
    for r in range(5):
        if r < 4:
            for t in range(4): a(f"v_and_b32_dpp v{vQ+4*r+t}, v{O0}, v{vMK+t} quad_perm:[{r},{r},{r},{r}] {DP}")
        if r > 0: a(f"v_mfma_f32_16x16x32_bf16 {vr(vA0,4)}, {vr(vQ+4*(r-1),4)}, {vr(vWO+4*(r-1),4)}, {'0' if r == 1 else vr(vA0,4)}")
    a("s_mov_b32 exec_hi, 0")
    a(f"ds_write_b128 v{vSRW}, {vr(vA0,4)} offset:{L_SR}")
    def epilogue(v, g):
        rbf(v); a(f"v_mul_f32 v{v}, v{v}, v{g}"); rbf(v); a(f"v_add_f32 v{v}, v{v}, v{vXO}"); a(f"v_cvt_pk_bf16_f32 v{v}, v{v}, v{v}")
    def epoch():
        C("every workgroup has read the epoch word by now (all of them fed this sum): advance it")
        a("s_mov_b64 exec, 1")
        a(f"v_mov_b32 v{vT}, s{sT}"); a(f"buffer_store_dword v{vT}, v{vVO}, {WS}, 0 offen {est}")
    if atom:
        C("even lanes add this workgroup's s partial, odd lanes add 1 to the pair's counter; whoever completes the 64 adds holds the full sum")
        a("s_mov_b32 exec_hi, -1")
        a("s_waitcnt lgkmcnt(0)"); a("s_barrier")
        a(f"ds_read2st64_b32 {vr(vSS,2)}, v{vSRR} offset0:0 offset1:2"); a(f"ds_read2st64_b32 {vr(vSS+2,2)}, v{vSRR} offset0:4 offset1:6")
        a("s_waitcnt lgkmcnt(0)")
        a(f"v_pk_add_f32 {vr(vSS,2)}, {vr(vSS,2)}, {vr(vSS+2,2)}"); a(f"v_add_f32 v{vSS}, v{vSS}, v{vSS+1}")
        a(f"v_cndmask_b32 v{vSS}, v{vSS}, 1.0, {sr(sMO,2)}")
        a(f"v_cvt_f64_f32 {vr(vTT,2)}, v{vSS}")
        a(f"buffer_atomic_add_f64 {vr(vTT,2)}, v{vAA}, {WS}, s{sPS} offen {aflags}")
        stamp()
        a(f"v_cvt_f64_f32 {vr(vTT+2,2)}, v{vSS}")
        if gpos is None: gcheck()
        a("s_waitcnt vmcnt(0)")
        a(f"v_add_f64 {vr(vTT,2)}, {vr(vTT,2)}, {vr(vTT+2,2)}")
        a(f"v_cvt_f32_f64 v{vSS}, {vr(vTT,2)}")
        a(f"v_cmp_eq_f32 vcc, s{sA}, v{vSS}")
        C("out = bf16(x + bf16(bf16(s) * g))")
        epilogue(vSS, vGV)
        a(f"s_and_b64 vcc, vcc, {sr(sMO,2)}"); a("s_lshr_b64 exec, vcc, 1"); a("s_cbranch_execz L_fin")
        a(f"global_store_short v{vXO+1}, v{vSS}, {sr(sOUT,2)} {ost}")
        a(f"s_cmp_lg_u32 s{sPS}, {S_OFF}"); a("s_cbranch_scc1 L_fin")
        a("s_bitcmp0_b32 exec_lo, 0"); a("s_cbranch_scc1 L_fin")
        epoch()
    else:
        C("the wave whose LDS ticket is the last one sums and publishes the s partial")
        a(f"ds_add_rtn_u32 v{vT2}, v{vTA}, v{vTB} offset:{L_CNT+256}")
        for w in range(4): a(f"ds_read_b128 {vr(vQ+4*w,4)}, v{vVO} offset:{L_SR+512*w}")
        a("s_waitcnt lgkmcnt(4)")
        a(f"v_cmp_eq_u32 vcc, 3, v{vT2}"); a("s_cbranch_vccz L_nopub")
        for w in range(1, 4): a(f"s_waitcnt lgkmcnt({3-w})"); add4(vQ, vQ, vQ+4*w)
        for r in range(4): a(f"v_bfi_b32 v{vQ+r}, v{vFF}, s{sTB+r}, v{vQ+r}")
        a(f"s_not_b32 exec_lo, s{sLOC}")
        a(f"buffer_store_dwordx4 {vr(vQ,4)}, v{vVO}, {WS}, s{sPS} offen sc1")
        a(f"s_cmp_eq_u32 s{sLOC}, 0"); a("s_cbranch_scc1 L_nopub")
        a(f"s_mov_b32 exec_lo, s{sLOC}")
        a(f"buffer_store_dwordx4 {vr(vQ,4)}, v{vVO}, {WS}, s{sPS} offen")
        a("L_nopub:")
        stamp()
        a("s_mov_b64 exec, -1")
        a(f"s_cmp_ge_u32 s{sF}, 128"); a("s_cbranch_scc1 L_fin")
        C("gate owner: s = sum of 64 partials, out = bf16(x + bf16(bf16(s) * g))")
        a("L_bpoll:")
        a(f"buffer_load_dwordx4 {vr(vSS,4)}, v{vL2K}, {WS}, s{sRG} offen sc1")
        a("s_waitcnt vmcnt(0)")
        untag4(vSS); a("s_cbranch_vccz L_bok")
        a("s_mov_b64 exec, vcc")
        timeout("L_bpoll")
        a("L_bok:")
        a("s_mov_b64 exec, -1")
        fold4(vSS); rowreduce("v_add_f32", (vSS,))
        epilogue(vSS, vGS)
        a("s_mov_b32 exec_lo, 0x00010001"); a("s_mov_b32 exec_hi, 0x00010001")
        a(f"global_store_short v{vXO+1}, v{vSS}, {sr(sOUT,2)} {ost}")
        a(f"s_cmp_lg_u32 s{sF}, 0"); a("s_cbranch_scc1 L_fin")
        epoch()
    if amp:
        a("s_memrealtime s[98:99]"); a("s_mov_b64 exec, -1")
        a(f"s_mov_b32 s{sTMP}, {ST_OFF}"); a(f"v_lshlrev_b32 v{vT}, 5, v{vL}")
        a(f"buffer_load_dwordx4 {vr(vW,4)}, v{vT}, {WS}, s{sTMP} offen sc1"); a(f"buffer_load_dwordx4 {vr(vW+4,4)}, v{vT}, {WS}, s{sTMP} offen offset:16 sc1")
        a("s_waitcnt vmcnt(0) lgkmcnt(0)")
        for i in range(8): a(f"v_subrev_u32 v{vW+i}, s96, v{vW+i}")
        a(f"v_min_i32 v{vSS}, v{vW}, v{vW+2}"); a(f"v_min3_i32 v{vSS}, v{vSS}, v{vW+4}, v{vW+6}"); rowreduce("v_min_i32", (vSS,)); allreduce_rows("v_min_i32", vSS, vT)
        a(f"v_readfirstlane_b32 s90, v{vSS}"); a("s_nop 3"); a("s_max_i32 s90, s90, -300")
        a("s_sub_u32 s88, s98, s96"); a("s_sub_u32 s88, s88, s90")
        a(f"s_mul_i32 s88, s88, {amp}"); a("s_min_u32 s88, s88, 200000"); a("s_add_u32 s88, s88, s90"); a("s_add_u32 s88, s88, 6000")
        a("L_spin:")
        a("s_memrealtime s[98:99]"); a("s_waitcnt lgkmcnt(0)"); a("s_sub_u32 s98, s98, s96"); a("s_cmp_lt_i32 s98, s88"); a("s_cbranch_scc1 L_spin")
    a("L_fin:")
    if stamps:
        a("s_memrealtime s[100:101]"); a("s_mov_b64 exec, -1"); a("s_waitcnt lgkmcnt(0)")
        for i in range(nst[0]): a(f"v_writelane_b32 v{vTS}, s{sST+2*i}, {i}")
        a(f"v_writelane_b32 v{vTS}, s100, {nst[0]}")
        a(f"v_writelane_b32 v{vTS}, s{sTMO}, 15"); a(f"v_writelane_b32 v{vTS}, s{sFAST}, 14")
        a(f"s_lshl_b32 s{sTMP}, s2, 2"); a(f"s_add_u32 s{sTMP}, s{sTMP}, s{sW}"); a(f"s_lshl_b32 s{sTMP}, s{sTMP}, 8"); a(f"s_add_u32 s{sTMP}, s{sTMP}, {ST_OFF}")
        a(f"v_lshlrev_b32 v{vTT}, 2, v{vL}")
        a(f"buffer_store_dword v{vTS}, v{vTT}, {WS}, s{sTMP} offen")
    a("L_done:")
    a("s_endpgm")
    C("out of line: write-through stores, re-polls, half-line V loads")
    for lbl, body, back in ool:
        a(f"{lbl}:"); body(); a(f"s_branch {back}")
    txt = HEADER + f"; @launch grid=(256,1,1) block=(256,1,1) lds={lds}\n" + DOC
    txt += f'.amdgcn_target "amdgcn-amd-amdhsa--gfx950"\n.text\n.globl {NAME}_kernel\n.p2align 8\n.type {NAME}_kernel,@function\n'
    txt += a.finish() + "L_codeend:\n"
    txt += f'''.section .rodata,"a"
.p2align 6
.amdhsa_kernel {NAME}_kernel
  .amdhsa_next_free_vgpr {NV + 16*NS}
  .amdhsa_next_free_sgpr 102
  .amdhsa_accum_offset {NV}
  .amdhsa_group_segment_fixed_size 0
  .amdhsa_kernarg_size 96
  .amdhsa_user_sgpr_count 2
  .amdhsa_user_sgpr_kernarg_segment_ptr 1
  .amdhsa_system_sgpr_workgroup_id_x 1
  .amdhsa_float_denorm_mode_32 3
.end_amdhsa_kernel
'''
    return txt

if __name__ == "__main__":
    kw = {}
    for x in sys.argv[2:]:
        k, v = x.split("=", 1)
        try: v = eval(v)
        except Exception: pass
        kw[k] = v
    open(sys.argv[1], "w").write(gen(**kw))
```

```python
import sys, struct
from asmlib import Asm
NAME = "recurrent_scan__gqa_block_cached__glu_gated_glu__decode"
def f2u(x): return struct.unpack("<I", struct.pack("<f", x))[0]
HEADER = open("cdna_kernels/%s.s.ref" % NAME).read().split("; Override launch")[0]
L2E = 1.4426950408889634

DOC = """;
;  tail     o summed over the 32 splits -> times a wo tile -> f64 atomic adds into accumulators zeroed earlier in this launch;
"""

def gen(NS=16, RD=5, RV=7, first=1, pre=4, qpos=11, mpos=11, kskip=3, vskip=2, yt=4, xget=18, yget=18, wot=27,
        kseq="h"*6+"rh"*13, vseq="sc"*5+"a"*10+"sc"*2+"b"*6+"cc", ctrl=((6, (3, 11, 21, 27, 29, 30, 31), 3), (20, (3, 13, 24, 29, 30), 1)),
        final="atom", gpos=None, gt=3, lds=20480, tmo=1<<20, abits=4,
        stamps=False, tstamps=False, force=None, amp=None, notail=False, est="", ost="", otouch=False, aflags="sc0 sc1", wb=(15, 13), sb=(12, 16, 14, 17, 18), gx=((4, 18),), ib=(10, 11), bar=(), xr=None, compact=True, pfpos=0, xo=False, cfl="sc1", xfl="sc1", fst=""):
    NT = 32; kvf = wf = "nt"; atom = final == "atom"
    a = Asm()
    def C(text): a("; " + text)
    E_OFF, A1_OFF, Y_OFF, ML_OFF, X_OFF, G_OFF, S_OFF, P_OFF, ST_OFF = 0, 0x1000, 0x10000, 0x20000, 0x30000, 0x38000, 0x40000, 0x80000, 0x100000
    L_S1, L_Y, L_CF, L_ML, L_OA, L_SR, L_Q, L_CNT = 0, 2048, 4096, 4224, 4608, 12800, 14848, 18944
    assert L_CNT + 512 <= lds
    C_OFF = 0x50000; CST = 1280; sXR = 72
    GST = 1280; HALF = 7680*4; AM = (1 << abits) - 1
    sX, sWQ, sWO, sG, sU, sDN, sOUT, sWS = 4, 10, 12, 16, 18, 20, 22, 26
    rK, rV, rW1, rWS, rDN = 28, 32, 36, 40, 44
    sW, sKVH, sJ, sOF, sOF0, sCB, sSTR, sT, sTMP, sTMP2, sFAST, sXV = range(48, 60)
    sA, sB, sSC, sL2E, sTB = 60, 61, 62, 63, 64
    sHI, sLOC, sTMO, sCOL, sRG, sF, sPP, sPM, sPS, sPC = 68, 69, 70, 72, 73, 74, 75, 76, 77, 78
    sM1, sM2, sM3, sMO = 16, 18, 10, 6
    sGO0, sGO1, sGM, sNF, sGG = 24, 25, 3, 14, 15
    sTN = (8, 9, 71, 79); sST = 80; sOFX = (0, 1, 69)
    vL, vKO, vVO, vM0, vM1, vNM, vLS, vT = range(8)
    vA0, vA1, vSS, vTT, vXX, vQ = 8, 12, 16, 20, 24, 32
    vSL, vE, vBK, vN, vFF, vOAW, vOAR, vMLW, vMLR, vGO, vGM, vSRW, vL2K, vWOO, vDGA, vT2 = range(48, 64)
    vW, vD, vCF, vGV, vGA, vAA, vWO, vMK, vGS, vXO, vF = 64, 96, 104, 105, 106, 107, 108, 124, 128, 132, 136
    vTS, vVW, vKH, vXG, vQH, vS, vOAW1, vTA, vTB, vSRR = 144, 145, 146, 147, 148, 156, 188, 189, 190, 191
    NV = 192; vGU = vF
    def vr(b, n): return f"v[{b}:{b+n-1}]"
    def ar(b, n): return f"a[{b}:{b+n-1}]"
    def sr(b, n): return f"s[{b}:{b+n-1}]"
    WS = sr(rWS, 4)
    nst = [0]
    def stamp():
        if stamps: a(f"s_memrealtime s[{sST+2*nst[0]}:{sST+2*nst[0]+1}]"); nst[0] += 1
    Q = []; done = [0]
    def vm(tag, text): a(text); Q.append(tag)
    def wait(tag):
        idx = max(i for i, t in enumerate(Q) if t == tag)
        if idx < done[0]: return
        n = min(len(Q) - 1 - idx, 63)
        a(f"s_waitcnt vmcnt({n})"); done[0] = len(Q) - n
    DP = "row_mask:0xf bank_mask:0xf"
    def allreduce_rows(op, v, t):
        for sw in (16, 32): a(f"v_mov_b32 v{t}, v{v}"); a(f"v_permlane{sw}_swap_b32 v{v}, v{t}"); a(f"{op} v{v}, v{v}, v{t}")
    def allreduce_quad(op, v):
        for qp in ("[1,0,3,2]", "[2,3,0,1]"): a(f"{op}_dpp v{v}, v{v}, v{v} quad_perm:{qp} {DP}")
    def rowreduce(op, vs, steps=(8, 4, 2, 1)):
        for st in steps:
            for v in vs: a(f"{op}_dpp v{v}, v{v}, v{v} row_ror:{st} {DP}")
    def fold4(b):
        a(f"v_permlane32_swap_b32 v{b}, v{b+1}"); a(f"v_permlane32_swap_b32 v{b+2}, v{b+3}")
        a(f"v_add_f32 v{b}, v{b}, v{b+1}"); a(f"v_add_f32 v{b+2}, v{b+2}, v{b+3}")
        a(f"v_permlane16_swap_b32 v{b}, v{b+2}"); a(f"v_add_f32 v{b}, v{b}, v{b+2}")
    def unpack(dst, src, n):
        for i in range(n): a(f"v_lshlrev_b32 v{dst+2*i}, 16, v{src+i}"); a(f"v_and_b32 v{dst+2*i+1}, s{sHI}, v{src+i}")
    def rbf(v): a(f"v_cvt_pk_bf16_f32 v{v}, v{v}, v{v}"); a(f"v_and_b32 v{v}, s{sHI}, v{v}")
    def sel4(dst, x0, x1, x2, x3):
        a(f"v_cndmask_b32 v{dst}, v{x0}, v{x1}, {sr(sM1,2)}"); a(f"v_cndmask_b32 v{dst}, v{dst}, v{x2}, {sr(sM2,2)}"); a(f"v_cndmask_b32 v{dst}, v{dst}, v{x3}, {sr(sM3,2)}")
    def add4(d, x, y):
        for r in (0, 2): a(f"v_pk_add_f32 {vr(d+r,2)}, {vr(x+r,2)}, {vr(y+r,2)}")
    def untag4(b):
        for r in range(4): a(f"v_xor_b32 v{b+r}, s{sTB+r}, v{b+r}")
        a(f"v_or3_b32 v{vT}, v{b}, v{b+1}, v{b+2}"); a(f"v_or_b32 v{vT}, v{vT}, v{b+3}"); a(f"v_and_b32 v{vT}, v{vFF}, v{vT}")
        a(f"v_cmp_ne_u32 vcc, 0, v{vT}")
    def timeout(lbl):
        a(f"s_sub_u32 s{sTMO}, s{sTMO}, 1"); a(f"s_cmp_gt_i32 s{sTMO}, 0"); a(f"s_cbranch_scc1 {lbl}")
    def only(w, lbl): a(f"s_cmp_lg_u32 s{sW}, {w}"); a(f"s_cbranch_scc1 {lbl}")
    def gemv_store(base):
        a("s_mov_b32 exec_lo, 0x00ff00ff"); a("s_mov_b32 exec_hi, 0xff00ff00")
        a(f"ds_write_b128 v{vDGA}, {vr(vA0,4)} offset:{base}"); a("s_mov_b64 exec, -1")
    def gemv_reduce(base, tmp):
        for p in range(8): a(f"ds_read_b128 {vr(tmp+4*p,4)}, v{vVO} offset:{base+256*p}")
        a("s_waitcnt lgkmcnt(0)")
        for step in (16, 8, 4):
            for r in range(0, step, 4): add4(tmp+r, tmp+r, tmp+step+r)
    ool = []
    def store_group(lbl, text):
        a(f"s_cbranch_scc1 L_{lbl}slow"); a(text); a(f"L_{lbl}done:")
        ool.append((f"L_{lbl}slow", lambda: a(text + " sc1"), f"L_{lbl}done"))
    def retry(lbl, loads):
        def body():
            a(f"s_sub_u32 s{sTMO}, s{sTMO}, 1"); a(f"s_cmp_le_i32 s{sTMO}, 0"); a(f"s_cbranch_scc1 L_{lbl}ok")
            loads(); a("s_waitcnt vmcnt(0)")
        a(f"s_cbranch_vccnz L_{lbl}retry"); a(f"L_{lbl}ok:")
        ool.append((f"L_{lbl}retry", body, f"L_{lbl}chk"))
    free = list(range(NS)); slot = {}; nxt = [0]; na = [0, 0, 0]
    def issue():
        h = nxt[0]; nxt[0] += 1
        s = slot[h] = free.pop(0); b = 16*s
        pat = (kseq + vseq)[h]
        if h in bar: a("s_barrier")
        if xr and h == NT + ctrl[0][0] - xr[0]:
            C("wave 1 draws its arrival rank among the 8 workgroups (one per group) with the same j; the group's mean rank measures its lag")
            only(1, "L_nodraw")
            a(f"s_mul_i32 s{sTMP}, s{sJ}, {CST}"); a(f"s_add_u32 s{sTMP}, s{sTMP}, {C_OFF}")
            a(f"s_mov_b32 s{sXR}, 1"); a(f"s_atomic_add s{sXR}, {sr(sWS,2)}, s{sTMP} glc")
            a("L_nodraw:")
        for ci, (cpos, _, _) in enumerate(ctrl):
            if h != NT + cpos: continue
            C("progress flag: the more members of the group passed this point earlier, the more whole-line V loads this wave uses below")
            a(f"s_lshl_b32 s{sTMP}, s{sKVH}, 9"); a(f"s_add_u32 s{sTMP}, s{sTMP}, {X_OFF+128*(ci+1)}")
            only((1, 3, 2)[ci], f"L_noflag{ci}")
            a(f"s_lshl_b32 s{sTMP2}, s{sJ}, 2"); a(f"s_add_u32 s{sTMP2}, s{sTMP2}, s{sTMP}")
            if xr and ci == 0: a("s_waitcnt lgkmcnt(0)"); a(f"s_and_b32 s{sXR}, s{sXR}, 7"); a(f"s_andn2_b32 s{sA}, s{sT}, 7"); a(f"s_or_b32 s{sXR}, s{sXR}, s{sA}"); a(f"v_mov_b32 v{vT}, s{sXR}")
            else: a(f"v_mov_b32 v{vT}, s{sT}")
            a("s_mov_b64 exec, 1"); a(f"buffer_store_dword v{vT}, v{vVO}, {WS}, s{sTMP2} offen {fst}"); a("s_mov_b64 exec, -1")
            a(f"L_noflag{ci}:")
            if xr and ci == 1:
                a(f"v_xor_b32 v{vT2}, 32, v{vL}"); a(f"v_lshlrev_b32 v{vT2}, 2, v{vT2}"); a(f"s_sub_u32 s{sTMP}, s{sTMP}, 128")
            else: a(f"v_and_b32 v{vT2}, 31, v{vL}"); a(f"v_lshlrev_b32 v{vT2}, 2, v{vT2}")
            vm(("cf", ci), f"buffer_load_dword v{vCF}, v{vT2}, {WS}, s{sTMP} offen {cfl}")
        if atom and gpos is not None and h == NT + gpos:
            vm("gg", f"global_load_ushort v{vXO}, v{vXO+1}, {sr(sX,2)}")
            vm("gg", f"buffer_load_dword v{vGV}, v{vGA}, {WS}, s{sGG} offen")
        made = {0: sOF}
        def so(off, pre=False):
            hi, lo = off & ~4095, off & 4095
            if hi not in made:
                assert pre
                made[hi] = sOFX[len(made)-1]; a(f"s_or_b32 s{made[hi]}, s{sOF}, {hi:#x}")
            return f"s{made[hi]} offen offset:{lo}"
        go = [((i & 1) << ib[0]) + ((i >> 1) << ib[1]) for i in range(4)]
        if h < NT: offs = [go[i & 2] + 128*(i & 1) for i in range(4)]; vo, rs = vKH, rK
        else: offs = go; vo, rs = vVW, rV
        if pat != "r":
            for x in offs: so(x, True)
        def whole(e):
            for i in range(4): e((h, i), f"buffer_load_dwordx4 {ar(b+4*i,4)}, v{vo}, {sr(rs,4)}, {so(offs[i])} {kvf}")
        def split(e):
            for i in range(4):
                for k in range(2): e((h, i), f"buffer_load_dwordx2 {ar(b+4*i+2*k,2)}, v{vo}, {sr(rs,4)}, {so(offs[i]+8*k)} {kvf}")
        if pat == "r":
            for i in range(4): vm((h, i), f"buffer_load_dwordx4 {ar(b+4*i,4)}, v{vKO}, {sr(rK,4)}, s{sOF} offen offset:{64*i} {kvf}")
        elif pat in "hc": whole(vm)
        elif pat in "zs": split(vm)
        else:
            ci = "abd".index(pat); _, cthr, cbase = ctrl[ci]
            if na[ci] == 0:
                wait(("cf", ci))
                if xr: a(f"v_xor_b32 v{vT}, s{sT}, v{vCF}"); a(f"v_cmp_gt_u32 vcc, 8, v{vT}")
                else: a(f"v_cmp_eq_u32 vcc, s{sT}, v{vCF}")
                a(f"s_bcnt1_i32_b32 s{sTMP}, vcc_lo"); a(f"s_mov_b32 s{sNF}, {cbase}")
                if xr and ci == 1:
                    a(f"s_cmp_lg_u32 vcc_hi, -1"); a("s_cbranch_scc1 L_noxr")
                    a(f"s_mov_b32 s{sXR}, 0")
                    for bit in (2, 1, 0):
                        a(f"v_and_b32 v{vT}, {1<<bit}, v{vCF}"); a(f"v_cmp_ne_u32 vcc, 0, v{vT}"); a(f"s_bcnt1_i32_b32 s{sTMP2}, vcc_hi"); a(f"s_lshl1_add_u32 s{sXR}, s{sXR}, s{sTMP2}")
                    if stamps: a(f"v_writelane_b32 v{vTS}, s{sXR}, 11")
                    a(f"s_sub_u32 s{sXR}, s{sXR}, 112"); a(f"s_mul_i32 s{sXR}, s{sXR}, {xr[1]}")
                    a(f"s_add_u32 s{sTMP2}, s{sJ}, s{sW}"); a(f"s_and_b32 s{sTMP2}, s{sTMP2}, 3"); a(f"s_lshl_b32 s{sTMP2}, s{sTMP2}, 8"); a(f"s_add_u32 s{sXR}, s{sXR}, s{sTMP2}"); a(f"s_add_u32 s{sXR}, s{sXR}, 128")
                    a(f"s_ashr_i32 s{sXR}, s{sXR}, 10"); a(f"s_add_u32 s{sNF}, s{sNF}, s{sXR}")
                    a("L_noxr:")
                if stamps: a(f"v_writelane_b32 v{vTS}, s{sTMP}, {13-ci}")
                for th in cthr: a(f"s_cmp_gt_u32 s{sTMP}, {th}"); a(f"s_addc_u32 s{sNF}, s{sNF}, 0")
            k_ = na[ci]; na[ci] += 1
            a(f"s_cmp_le_i32 s{sNF}, {k_//2 if k_ % 2 else (kseq+vseq).count(pat)-1-k_//2}"); a(f"s_cbranch_scc1 L_vs{h}")
            whole(vm); a(f"L_vj{h}:")
            ool.append((f"L_vs{h}", lambda: split(lambda tag, text: a(text)), f"L_vj{h}"))
        if h < 2*NT-1: a(f"s_xor_b32 s{sOF}, s{sOF0}, {sum(((((h+1) % NT) >> k) & 1) << sb[k] for k in range(5)):#x}")
        if tstamps and h % 2 == 1:
            a("s_memrealtime s[100:101]"); a("s_waitcnt lgkmcnt(0)"); a(f"v_writelane_b32 v{vTS}, s100, {16+h//2}")

    a(f"{NAME}_kernel:")
    if amp: a("s_memrealtime s[96:97]")
    stamp()
    a(f"s_load_dwordx2 {sr(rK,2)}, s[0:1], 8"); a(f"s_load_dwordx2 {sr(rV,2)}, s[0:1], 16")
    a("s_load_dwordx16 s[4:19], s[0:1], 0"); a("s_load_dwordx8 s[20:27], s[0:1], 64")
    a("s_cmpk_ge_u32 s2, 256"); a("s_cbranch_scc1 L_done")
    a(f"s_and_b32 s{sKVH}, s2, 7"); a(f"s_lshr_b32 s{sJ}, s2, 3")
    def pfcode():
        C("pull this kernel's code into L2 (each workgroup touches 8 lines)")
        a(f"s_getpc_b64 {sr(sPC,2)}")
        a("L_pc:")
        a(f"v_and_b32 v{vA0}, 7, v0"); a(f"v_lshl_add_u32 v{vA0}, s{sJ}, 3, v{vA0}"); a(f"v_lshlrev_b32 v{vA0}, 7, v{vA0}")
        a(f"v_min_u32 v{vA0}, L_codeend-L_pc-4, v{vA0}")
        vm("pf", f"global_load_dword v{vA0+1}, v{vA0}, {sr(sPC,2)}")
    if pfpos == 0: pfcode()
    C(f"16-key tiles = four 1-KiB key groups at address bits {ib}; bits {wb} = wave, bits {sb} = step: data sharing DRAM rows is fetched close in time")
    assert sorted(ib + wb + sb) == list(range(10, 19))
    a(f"s_lshl_b32 s{sOF}, s{sKVH}, 24"); a(f"s_lshl_b32 s{sTMP}, s{sJ}, 19"); a(f"s_or_b32 s{sOF}, s{sOF}, s{sTMP}")
    sh = {}
    for jb, ab in gx: assert ab in sb; sh[ab-jb] = sh.get(ab-jb, 0) | (1 << jb)
    for d, m in sh.items(): a(f"s_and_b32 s{sTMP}, s{sJ}, {m}"); a(f"s_lshl_b32 s{sTMP}, s{sTMP}, {d}"); a(f"s_xor_b32 s{sOF}, s{sOF}, s{sTMP}")
    a(f"s_mov_b32 s{sOF0}, s{sOF}")
    def lanes():
        a(f"v_lshrrev_b32 v{vT2}, 6, v0"); a(f"v_and_b32 v{vL}, 63, v0")
        a(f"v_lshrrev_b32 v{vSL}, 4, v{vL}"); a(f"v_bfe_u32 v{vBK}, v{vL}, 2, 2")
        a(f"v_lshrrev_b32 v{vVW}, 1, v{vT2}"); a(f"v_lshlrev_b32 v{vVW}, {wb[1]}, v{vVW}"); a(f"v_and_b32 v{vT}, 1, v{vT2}"); a(f"v_lshl_add_u32 v{vVW}, v{vT}, {wb[0]}, v{vVW}")
        a(f"v_lshl_add_u32 v{vT}, v{vSL}, 4, v{vVW}"); a(f"v_lshl_add_u32 v{vT}, v{vBK}, 8, v{vT}"); a(f"v_and_b32 v{vE}, 2, v{vL}")
    if compact:
        C("K lane offset (128-byte rows): thread-id bits 0..7 -> address bits 6, key-group bit, 8, 9, 4, 5, wave bits")
        grp = {}
        for tb, ab in enumerate((6, ib[0], 8, 9, 4, 5, wb[0], wb[1])): grp[ab-tb] = grp.get(ab-tb, 0) | (1 << tb)
        a(f"v_and_b32 v{vKH}, {grp.pop(0):#x}, v0")
        for d, m in grp.items(): a(f"v_and_b32 v{vT}, {m:#x}, v0"); a(f"v_lshl_or_b32 v{vKH}, v{vT}, {d}, v{vKH}")
    else:
        lanes()
        a(f"v_and_b32 v{vKH}, 1, v{vL}"); a(f"v_lshl_add_u32 v{vKH}, v{vKH}, 6, v{vT}"); a(f"v_lshl_add_u32 v{vKH}, v{vE}, {ib[0]-1}, v{vKH}")
    a(f"s_lshl_b32 s{rK+2}, 1, 27"); a(f"s_mov_b32 s{rK+3}, 0x20000")
    if pfpos == 1: pfcode()
    a("s_waitcnt lgkmcnt(0)"); stamp()
    assert kseq[:first] == "h"*first
    for _ in range(first): issue()
    if pfpos == 2: pfcode()
    if compact: lanes()
    a(f"v_readfirstlane_b32 s{sW}, v{vT2}")
    a(f"s_lshl_b32 s{rV+2}, 1, 27"); a(f"s_mov_b32 s{rV+3}, 0x20000")
    a(f"v_lshl_add_u32 v{vKO}, v{vE}, {ib[1]-1}, v{vT}"); a(f"v_and_b32 v{vN}, 1, v{vL}"); a(f"v_lshl_add_u32 v{vKO}, v{vN}, {ib[0]}, v{vKO}")
    a(f"v_and_b32 v{vE}, 3, v{vL}"); a(f"v_and_b32 v{vN}, 15, v{vL}")
    a(f"v_lshlrev_b32 v{vVO}, 4, v{vL}"); a(f"v_add_u32 v{vVW}, v{vVW}, v{vVO}")
    C("stage 1: 120 blocks of 64 columns x 2 row halves; cb = (wg&7)*30 + j for j < 30, block cb>>1, half cb&1")
    a(f"s_mul_i32 s{sCB}, s{sKVH}, 30"); a(f"s_add_u32 s{sCB}, s{sCB}, s{sJ}")
    a(f"s_movk_i32 s{sCOL}, 184"); a(f"s_cmp_lt_u32 s{sCB}, s{sCOL}"); a(f"s_cselect_b32 s{sCOL}, 128, s{sCOL}")
    a(f"s_cselect_b64 {sr(rW1,2)}, {sr(sG,2)}, {sr(sU,2)}")
    a(f"s_cmp_lt_u32 s{sCB}, 128"); a(f"s_cselect_b32 s{sCOL}, 0, s{sCOL}")
    a(f"s_cselect_b64 {sr(rW1,2)}, {sr(sWQ,2)}, {sr(rW1,2)}")
    a(f"s_movk_i32 s{sSTR}, 3584"); a(f"s_cselect_b32 s{sSTR}, 8192, s{sSTR}")
    a(f"s_sub_u32 s{sCOL}, s{sCB}, s{sCOL}"); a(f"s_lshr_b32 s{sCOL}, s{sCOL}, 1"); a(f"s_lshl_b32 s{sCOL}, s{sCOL}, 7")
    a(f"s_and_b32 s{sTMP2}, s{sCB}, 1"); a(f"s_lshl_b32 s{sTMP2}, s{sTMP2}, 2"); a(f"s_add_u32 s{sTMP2}, s{sTMP2}, s{sW}"); a(f"s_lshl_b32 s{sTMP2}, s{sTMP2}, 6")
    a(f"s_mul_i32 s{sTMP}, s{sTMP2}, s{sSTR}"); a(f"s_add_u32 s{sCOL}, s{sCOL}, s{sTMP}")
    a(f"v_lshrrev_b32 v{vT2}, 3, v{vL}")
    a(f"s_lshl_b32 s{sTMP2}, s{sTMP2}, 1"); a(f"v_lshl_add_u32 v{vGO}, v{vT2}, 4, s{sTMP2}")
    a(f"s_lshl_b32 s{sTMP}, s{sSTR}, 3")
    a(f"v_mul_u32_u24 v{vGM}, s{sTMP}, v{vT2}"); a(f"v_and_b32 v{vT}, 7, v{vL}"); a(f"v_lshl_add_u32 v{vGM}, v{vT}, 4, v{vGM}")
    a(f"v_mov_b32 v{vNM}, {E_OFF}")
    a(f"s_mov_b32 s{rW1+3}, 0x20000")
    a(f"s_lshl_b32 s{rW1+2}, s{sSTR}, 9"); a(f"s_cmp_lt_u32 s{sJ}, 30"); a(f"s_cselect_b32 s{rW1+2}, s{rW1+2}, 0")
    vm("x", f"global_load_dword v{vNM}, v{vNM}, {sr(sWS,2)} sc1")
    vm("x", f"global_load_dwordx4 {vr(vSS,4)}, v{vVO}, {sr(sX,2)}")
    vm("x", f"global_load_dwordx4 {vr(vTT,4)}, v{vGO}, {sr(sX,2)}")
    if atom:
        C("wave 0 of the producers of gate blocks 0-3 (half 0) zeroes the output accumulators of column group 0-3; the stores are older than")
        C("its weight loads, hence complete before it publishes g, and every atomic add below is ordered after that hand-off")
        a(f"s_and_b32 s{sTMP}, s{sCB}, 0xf9"); a(f"s_lshl_b32 s{sTMP2}, s{sW}, 8"); a(f"s_or_b32 s{sTMP}, s{sTMP}, s{sTMP2}"); a(f"s_cmpk_lg_u32 s{sTMP}, 128"); a("s_cbranch_scc1 L_noinit")
        a(f"s_lshl_b32 s{sTMP}, s{sCB}, 12"); a(f"s_add_u32 s{sTMP}, s{sTMP}, {(S_OFF - (128 << 12)) & 0xffffffff:#x}")
        a(f"v_lshrrev_b32 v{vA1}, 2, v{vL}"); a(f"v_lshlrev_b32 v{vA1}, 8, v{vA1}"); a(f"v_lshl_add_u32 v{vA1}, v{vE}, 4, v{vA1}"); a(f"v_add_u32 v{vA1}, s{sTMP}, v{vA1}")
        a(f"v_add_u32 v{vA1+1}, 0x1000, v{vA1}")
        for r in range(4): a(f"v_mov_b32 v{vXX+r}, 0")
        a(f"global_store_dwordx4 v{vA1}, {vr(vXX,4)}, {sr(sWS,2)} sc1"); a(f"global_store_dwordx4 v{vA1+1}, {vr(vXX,4)}, {sr(sWS,2)} sc1")
        a("L_noinit:")
    if xr:
        C("wave 0 of the producer of gate block k (half 0) zeroes arrival counter k (block 27: counters 27-31), ordered like the accumulators")
        a(f"s_sub_u32 s{sTMP}, s{sCB}, 128"); a(f"s_and_b32 s{sTMP2}, s{sTMP}, 1"); a(f"s_or_b32 s{sTMP2}, s{sTMP2}, s{sW}"); a(f"s_cmp_lg_u32 s{sTMP2}, 0"); a("s_cbranch_scc1 L_noinit2")
        a(f"s_cmp_ge_u32 s{sTMP}, 56"); a("s_cbranch_scc1 L_noinit2")
        a(f"s_cmp_ge_u32 s{sJ}, 30"); a("s_cbranch_scc1 L_noinit2")
        a(f"s_cmp_eq_u32 s{sTMP}, 54"); a("s_cselect_b64 exec, 31, 1")
        a(f"s_mul_i32 s{sTMP}, s{sTMP}, {CST//2}"); a(f"s_add_u32 s{sTMP}, s{sTMP}, {C_OFF}")
        a(f"v_mul_u32_u24 v{vA1+2}, {CST}, v{vL}"); a(f"v_add_u32 v{vA1+2}, s{sTMP}, v{vA1+2}"); a(f"v_mov_b32 v{vA1+3}, 0")
        a(f"global_store_dword v{vA1+2}, v{vA1+3}, {sr(sWS,2)} sc1"); a("s_mov_b64 exec, -1")
        a("L_noinit2:")
    for i in range(8):
        vm(("w1", i), f"buffer_load_dwordx4 {vr(vW+4*i,4)}, v{vGM}, {sr(rW1,4)}, s{sCOL} offen {wf}")
        if i < 7: a(f"s_add_u32 s{sCOL}, s{sCOL}, s{sSTR}")
    C("w_down tile: rows j*64 + 16w + 2*(l>>3) + i, columns (wg&7)*64 + 8*(l&7); j >= 28 lies outside the buffer and reads 0")
    a(f"s_mov_b64 {sr(rDN,2)}, {sr(sDN,2)}"); a(f"s_mov_b32 s{rDN+2}, {1792*1024}"); a(f"s_mov_b32 s{rDN+3}, 0x20000")
    a(f"s_lshl_b32 s{sSTR}, s{sJ}, 2"); a(f"s_add_u32 s{sSTR}, s{sSTR}, s{sW}")
    a(f"s_lshl_b32 s{sTMP}, s{sSTR}, 14"); a(f"s_lshl_b32 s{sTMP2}, s{sKVH}, 7"); a(f"s_add_u32 s{sTMP}, s{sTMP}, s{sTMP2}")
    a(f"v_lshlrev_b32 v{vT}, 4, v{vT}"); a(f"v_lshl_add_u32 v{vT}, v{vT2}, 11, v{vT}")
    for i in range(2): vm(("dn", i), f"buffer_load_dwordx4 {vr(vD+4*i,4)}, v{vT}, {sr(rDN,4)}, s{sTMP} offen offset:{1024*i} {wf}")
    issue()
    for k, m in ((sM1, 0x22222222), (sM2, 0x44444444), (sM3, 0x88888888), (sMO, 0xaaaaaaaa)):
        a(f"s_mov_b32 s{k}, {m:#x}"); a(f"s_mov_b32 s{k+1}, s{k}")
    a(f"s_mov_b32 s{sHI}, 0xffff0000"); a(f"s_mov_b32 s{sSC}, {f2u(128**-0.5):#x}"); a(f"s_mov_b32 s{sL2E}, {f2u(L2E):#x}")
    a(f"s_mov_b32 s{sTMO}, {tmo}")
    a(f"s_mov_b64 {sr(rWS,2)}, {sr(sWS,2)}"); a(f"s_mov_b32 s{rWS+2}, 0x20000000"); a(f"s_mov_b32 s{rWS+3}, 0x20000")
    C("masks that place one bf16 at element l&3 (K=16 MFMA) / l&7 (K=32 MFMA) of an A operand")
    a(f"v_and_b32 v{vT}, 1, v{vL}"); a(f"v_lshlrev_b32 v{vT}, 4, v{vT}"); a(f"v_mov_b32 v{vM1}, 0xffff")
    a(f"v_lshlrev_b32 v{vT2}, v{vT}, v{vM1}")
    a(f"v_cmp_gt_u32 vcc, 2, v{vE}"); a(f"v_cndmask_b32 v{vM0}, 0, v{vT2}, vcc"); a(f"v_xor_b32 v{vM1}, v{vT2}, v{vM0}")
    a(f"v_bfe_u32 v{vT}, v{vL}, 1, 2")
    for t in range(4):
        a(f"v_cmp_eq_u32 vcc, {t}, v{vT}"); a(f"v_cndmask_b32 v{vMK+t}, 0, v{vT2}, vcc")
    wait("x")
    a(f"v_readfirstlane_b32 s{sT}, v{vNM}")
    C("LayerNorm (bf16 rounding after every step, as the reference does)")
    F = vF
    unpack(F, vSS, 4)
    a(f"v_add_f32 v{vA0}, v{F}, v{F+1}")
    for i in range(2, 8): a(f"v_add_f32 v{vA0}, v{vA0}, v{F+i}")
    rowreduce("v_add_f32", (vA0,)); allreduce_rows("v_add_f32", vA0, vT)
    a(f"v_mul_f32 v{vA0}, {f2u(1/512):#x}, v{vA0}")
    for i in range(8): a(f"v_sub_f32 v{F+i}, v{F+i}, v{vA0}")
    a(f"v_mul_f32 v{vA1}, v{F}, v{F}")
    for i in range(1, 8): a(f"v_fmac_f32 v{vA1}, v{F+i}, v{F+i}")
    rowreduce("v_add_f32", (vA1,)); allreduce_rows("v_add_f32", vA1, vT)
    a(f"v_mul_f32 v{vA1}, {f2u(1/512):#x}, v{vA1}")
    a(f"v_cvt_pk_bf16_f32 v{vA0}, v{vA0}, v{vA1}")
    a(f"v_and_b32 v{vA1}, s{sHI}, v{vA0}"); a(f"v_lshlrev_b32 v{vA0}, 16, v{vA0}")
    a(f"v_add_f32 v{vA1}, {f2u(1e-5):#x}, v{vA1}"); rbf(vA1)
    a(f"v_sqrt_f32 v{vA1}, v{vA1}"); rbf(vA1)
    a(f"v_rcp_f32 v{vA1}, v{vA1}")
    unpack(F, vTT, 4)
    for i in range(8): a(f"v_sub_f32 v{F+i}, v{F+i}, v{vA0}")
    for i in range(4): a(f"v_cvt_pk_bf16_f32 v{vTT+i}, v{F+2*i}, v{F+2*i+1}")
    unpack(F, vTT, 4)
    for i in range(8): a(f"v_mul_f32 v{F+i}, v{F+i}, v{vA1}")
    for i in range(8): a(f"v_cvt_pk_bf16_f32 v{F+i}, v{F+i}, v{F+i}")
    for i in range(8):
        for t in range(4): a(f"v_and_b32 v{vS+4*i+t}, v{F+i}, v{vMK+t}")
    while nxt[0] < pre: issue()
    C("stage-1 GEMV: 64 rows x 64 columns per wave")
    for i in range(8):
        wait(("w1", i))
        a(f"v_mfma_f32_16x16x32_bf16 {vr(vA0,4)}, {vr(vS+4*i,4)}, {vr(vW+4*i,4)}, {'0' if i == 0 else vr(vA0,4)}")
    C("tag of this launch = epoch word + 0x01010101 (every byte differs from the previous launch's tag)")
    a(f"s_add_u32 s{sT}, s{sT}, 0x01010101")
    for k in range(4): a(f"s_bfe_u32 s{sTB+k}, s{sT}, {(8<<16)|(8*k):#x}")
    for k in range(4): a(f"s_and_b32 s{sTN[k]}, s{sTB+k}, {AM}")
    a(f"v_mov_b32 v{vFF}, 0xff")
    C("lanes with (l>>5) == ((l>>3)&1) hold columns 8*(l&7) + 4*((l>>4)&1) + r of row group l>>5")
    a(f"s_lshl_b32 s{sTMP}, s{sW}, 9")
    a(f"v_and_b32 v{vT}, 7, v{vL}"); a(f"v_lshl_add_u32 v{vT}, v{vT}, 5, s{sTMP}"); a(f"v_and_b32 v{vT2}, 16, v{vL}"); a(f"v_add_u32 v{vT}, v{vT}, v{vT2}")
    a(f"v_and_b32 v{vT2}, 32, v{vL}"); a(f"v_lshl_add_u32 v{vDGA}, v{vT2}, 3, v{vT}")
    gemv_store(L_S1)
    a("s_waitcnt lgkmcnt(0)"); a("s_barrier")
    only(0, "L_pub1_done")
    a(f"s_cmp_eq_u32 s{rW1+2}, 0"); a("s_cbranch_scc1 L_pub1_done")
    a("s_mov_b64 exec, 0xffff")
    a(f"s_lshr_b32 s{sTMP}, s{sCB}, 1"); a(f"s_lshl_b32 s{sTMP}, s{sTMP}, 8"); a(f"s_and_b32 s{sTMP2}, s{sCB}, 1"); a(f"s_mul_i32 s{sTMP2}, s{sTMP2}, {HALF}")
    a(f"s_add_u32 s{sTMP}, s{sTMP}, s{sTMP2}"); a(f"s_add_u32 s{sTMP}, s{sTMP}, {A1_OFF}")
    gemv_reduce(L_S1, vW)
    a(f"v_mov_b32 v{vT}, {AM}")
    for r in range(4): a(f"v_add_u32 v{vW+r}, {(AM+1)//2}, v{vW+r}")
    for r in range(4): a(f"v_bfi_b32 v{vA0+r}, v{vT}, s{sTB+r}, v{vW+r}")
    a(f"buffer_store_dwordx4 {vr(vA0,4)}, v{vVO}, {WS}, s{sTMP} offen sc1")
    a("s_mov_b64 exec, -1")
    a("L_pub1_done:")
    C("wave 1 posts {tag, XCD id}; a workgroup that later reads its own value from all 32 members of its group")
    C("knows that they share one L2 and may hand data over with plain stores; otherwise it writes through (sc1)")
    only(1, "L_nox")
    a(f"s_getreg_b32 s{sTMP}, hwreg(HW_REG_XCC_ID, 0, 4)"); a(f"s_lshl_b32 s{sXV}, s{sT}, 4"); a(f"s_or_b32 s{sXV}, s{sXV}, s{sTMP}")
    a(f"s_lshl_b32 s{sTMP}, s{sKVH}, 9"); a(f"s_lshl_b32 s{sTMP2}, s{sJ}, 2"); a(f"s_add_u32 s{sTMP}, s{sTMP}, s{sTMP2}"); a(f"s_add_u32 s{sTMP}, s{sTMP}, {X_OFF}")
    a(f"v_mov_b32 v{vT}, s{sXV}")
    a("s_mov_b64 exec, 1"); a(f"buffer_store_dword v{vT}, v{vVO}, {WS}, s{sTMP} offen"); a("s_mov_b64 exec, -1")
    a("L_nox:")
    a("s_barrier")
    stamp()
    issue(); issue()
    C("addresses used by the later hand-offs")
    a(f"v_and_b32 v{vT}, 7, v{vL}"); a(f"v_xor_b32 v{vT}, v{vT}, v{vSL}"); a(f"v_lshlrev_b32 v{vT}, 4, v{vT}")
    a(f"v_lshl_add_u32 v{vOAW}, v{vN}, 7, v{vT}"); a(f"s_lshl_b32 s{sTMP}, s{sW}, 11"); a(f"v_add_u32 v{vOAW}, s{sTMP}, v{vOAW}"); a(f"v_xor_b32 v{vOAW1}, 64, v{vOAW}")
    a(f"v_lshrrev_b32 v{vT2}, 3, v{vL}"); a(f"v_xor_b32 v{vOAR}, v{vT2}, v{vL}"); a(f"v_and_b32 v{vOAR}, 7, v{vOAR}"); a(f"v_lshlrev_b32 v{vOAR}, 4, v{vOAR}")
    a(f"v_lshl_add_u32 v{vOAR}, v{vT2}, 7, v{vOAR}")
    a(f"s_lshl_b32 s{sPM}, s{sKVH}, 5"); a(f"s_add_u32 s{sPM}, s{sPM}, s{sJ}")
    a(f"s_lshl_b32 s{sPP}, s{sPM}, 11"); a(f"s_add_u32 s{sPP}, s{sPP}, {P_OFF}")
    if atom:
        if xo:
            C("output columns of this wave (lanes 0-31): 64*(j&7) + 16w + (l>>1); accumulator pair {sum, count} at 64-byte blocks spread over the channels")
            a(f"s_and_b32 s{sTMP}, s{sSTR}, 31")
            a(f"s_lshl_b32 s{sPS}, s{sTMP}, 10"); a(f"s_add_u32 s{sPS}, s{sPS}, {S_OFF}")
            a(f"s_lshr_b32 s{sGG}, s{sTMP}, 1"); a(f"s_mul_i32 s{sGG}, s{sGG}, {GST}"); a(f"s_and_b32 s{sTMP2}, s{sW}, 1"); a(f"s_lshl_b32 s{sTMP2}, s{sTMP2}, 6"); a(f"s_add_u32 s{sGG}, s{sGG}, s{sTMP2}"); a(f"s_add_u32 s{sGG}, s{sGG}, {G_OFF}")
            a(f"v_and_b32 v{vAA}, 7, v{vL}"); a(f"v_lshlrev_b32 v{vAA}, 3, v{vAA}"); a(f"v_lshl_add_u32 v{vAA}, v{vT2}, 8, v{vAA}")
            a(f"v_and_b32 v{vT}, 30, v{vL}"); a(f"v_lshlrev_b32 v{vGA}, 1, v{vT}")
            a(f"s_lshl_b32 s{sTMP}, s{sTMP}, 5"); a(f"v_add_u32 v{vXO+1}, s{sTMP}, v{vT}")
            C("LDS read address: odd lanes take partials 4-7")
            a(f"s_lshl_b32 s{sTMP}, s{sW}, 6"); a(f"s_add_u32 s{sTMP}, s{sTMP}, {L_SR}"); a(f"v_add_u32 v{vSRR}, s{sTMP}, v{vGA}")
            a(f"v_and_b32 v{vT}, 1, v{vL}"); a(f"v_lshl_add_u32 v{vSRR}, v{vT}, 10, v{vSRR}")
        else:
            C("output columns of this wave: 128*(j&3) + 32w + (l>>1); accumulator pair {sum, count} at 64-byte blocks spread over the channels")
            a(f"s_and_b32 s{sTMP}, s{sSTR}, 15")
            a(f"s_lshl_b32 s{sPS}, s{sTMP}, 11"); a(f"s_add_u32 s{sPS}, s{sPS}, {S_OFF}")
            a(f"s_mul_i32 s{sGG}, s{sTMP}, {GST}"); a(f"s_add_u32 s{sGG}, s{sGG}, {G_OFF}")
            a(f"v_and_b32 v{vAA}, 7, v{vL}"); a(f"v_lshlrev_b32 v{vAA}, 3, v{vAA}"); a(f"v_lshl_add_u32 v{vAA}, v{vT2}, 8, v{vAA}")
            a(f"v_and_b32 v{vT}, 62, v{vL}"); a(f"v_lshlrev_b32 v{vGA}, 1, v{vT}")
            a(f"s_lshl_b32 s{sTMP}, s{sTMP}, 6"); a(f"v_add_u32 v{vXO+1}, s{sTMP}, v{vT}")
            a(f"s_lshl_b32 s{sTMP}, s{sW}, 7"); a(f"s_add_u32 s{sTMP}, s{sTMP}, {L_SR}"); a(f"v_add_u32 v{vSRR}, s{sTMP}, v{vGA}")
    else:
        a(f"s_lshl_b32 s{sPS}, s{sPM}, 9"); a(f"s_add_u32 s{sPS}, s{sPS}, {S_OFF}")
    a(f"s_lshl_b32 s{sPM}, s{sPM}, 6"); a(f"s_add_u32 s{sPM}, s{sPM}, {ML_OFF}")
    a(f"s_lshl_b32 s{sTMP}, s{sW}, 2"); a(f"s_add_u32 s{sTMP}, s{sTMP}, {L_ML}"); a(f"v_lshl_add_u32 v{vMLW}, v{vBK}, 4, s{sTMP}"); a(f"v_lshlrev_b32 v{vMLR}, 4, v{vE}")
    a(f"v_lshl_add_u32 v{vSRW}, v{vN}, 1, v{vSL}"); a(f"v_lshlrev_b32 v{vSRW}, 4, v{vSRW}"); a(f"s_lshl_b32 s{sTMP}, s{sW}, 9"); a(f"v_add_u32 v{vSRW}, s{sTMP}, v{vSRW}")
    a(f"v_lshlrev_b32 v{vL2K}, 11, v{vL}")
    if xo:
        C("wo tile: instruction i = head i, rows d = 4*((l>>3)&1) + (0,2,1,3)[l>>4], columns 8*(l&7)")
        a(f"v_lshrrev_b32 v{vT}, 5, v{vL}"); a(f"v_and_b32 v{vWOO}, 16, v{vL}"); a(f"v_lshlrev_b32 v{vWOO}, 7, v{vWOO}"); a(f"v_lshl_add_u32 v{vWOO}, v{vT}, 10, v{vWOO}")
        a(f"v_and_b32 v{vT}, 8, v{vL}"); a(f"v_lshl_add_u32 v{vWOO}, v{vT}, 9, v{vWOO}"); a(f"v_and_b32 v{vT}, 7, v{vL}"); a(f"v_lshl_add_u32 v{vWOO}, v{vT}, 4, v{vWOO}")
    else:
        C("wo tile: instruction i = head i, lane row (l>>4) = d offset (0,2,1,3)")
        a(f"v_lshrrev_b32 v{vT}, 5, v{vL}"); a(f"v_and_b32 v{vWOO}, 16, v{vL}"); a(f"v_lshlrev_b32 v{vWOO}, 7, v{vWOO}"); a(f"v_lshl_add_u32 v{vWOO}, v{vT}, 10, v{vWOO}"); a(f"v_lshl_add_u32 v{vWOO}, v{vN}, 4, v{vWOO}")
    if atom:
        C("wave 2 of workgroups 30 and 31 of the group owns 32 columns of the GLU gate: line f = (wg&7)*2 + (j&1)")
        a(f"s_lshl_b32 s{sF}, s{sKVH}, 1"); a(f"s_and_b32 s{sTMP}, s{sJ}, 1"); a(f"s_add_u32 s{sF}, s{sF}, s{sTMP}")
        a(f"s_lshl_b32 s{sRG}, s{sF}, 7"); a(f"s_add_u32 s{sRG}, s{sRG}, {Y_OFF}")
        a(f"v_and_b32 v{vT}, 7, v{vL}"); a(f"v_lshlrev_b32 v{vT}, 4, v{vT}"); a(f"v_lshl_add_u32 v{vL2K}, v{vT2}, 11, v{vT}")
        a(f"s_cmp_ge_u32 s{sJ}, 30"); a(f"s_cselect_b32 s{sF}, s{sF}, 999")
        a(f"s_cmp_eq_u32 s{sW}, 2"); a(f"s_cselect_b32 s{sF}, s{sF}, 999")
    else:
        C("wave 2 of workgroups with j >= 16 owns columns 4f..4f+3 of the GLU gate, f = (wg&7)*16 + (j&15)")
        a(f"s_lshl_b32 s{sF}, s{sKVH}, 4"); a(f"s_and_b32 s{sTMP}, s{sJ}, 15"); a(f"s_add_u32 s{sF}, s{sF}, s{sTMP}")
        if not atom:
            a(f"v_and_b32 v{vXO+1}, 1, v{vSL}"); a(f"v_lshl_add_u32 v{vT}, v{vXO+1}, 1, v{vT}"); a(f"s_lshl_b32 s{sTMP}, s{sF}, 2"); a(f"v_add_lshl_u32 v{vXO+1}, v{vT}, s{sTMP}, 1")
        a(f"s_lshl_b32 s{sRG}, s{sF}, 4"); a(f"s_add_u32 s{sRG}, s{sRG}, {Y_OFF}")
        a(f"s_cmp_ge_u32 s{sJ}, 16"); a(f"s_cselect_b32 s{sF}, s{sF}, 999")
        a(f"s_cmp_eq_u32 s{sW}, 2"); a(f"s_cselect_b32 s{sF}, s{sF}, 999")
    while nxt[0] < qpos: issue()
    C("gather: wave w sums, rounds and shares dims 32w..32w+31 of q (MFMA B layout, head = (l>>2)&3); plus this wave's g / u rows")
    a(f"v_lshlrev_b32 v{vGO}, 9, v{vBK}"); a(f"v_lshl_add_u32 v{vGO}, v{vSL}, 5, v{vGO}")
    a(f"s_lshl_b32 s{sCB}, s{sKVH}, 11"); a(f"s_lshl_b32 s{sTMP}, s{sW}, 7"); a(f"s_add_u32 s{sCB}, s{sCB}, s{sTMP}"); a(f"s_add_u32 s{sCB}, s{sCB}, {A1_OFF}"); a(f"s_add_u32 s{sGM}, s{sCB}, {HALF}")
    a(f"v_lshlrev_b32 v{vGM}, 3, v{vT2}")
    a(f"s_min_u32 s{sTMP}, s{sSTR}, 111")
    a(f"s_lshl_b32 s{sGO0}, s{sTMP}, 6"); a(f"s_add_u32 s{sGO0}, s{sGO0}, {A1_OFF + 4096*4}"); a(f"s_add_u32 s{sGO1}, s{sGO0}, {1792*4}")
    a(f"s_add_u32 s{sA}, s{sGO0}, {HALF}"); a(f"s_add_u32 s{sB}, s{sGO1}, {HALF}")
    def qloads(fl, e):
        for half, so in enumerate((sCB, sGM)):
            for h in range(2): e("q", f"buffer_load_dwordx4 {vr(vW+8*half+4*h,4)}, v{vGO}, {WS}, s{so} offen offset:{16*h} {fl}")
        for k, so in enumerate((sGO0, sGO1, sA, sB)): e("q", f"buffer_load_dwordx2 {vr(vGU+2*k,2)}, v{vGM}, {WS}, s{so} offen {fl}")
    raw = lambda tag, text: a(text)
    qloads("", vm)
    while nxt[0] < NS: issue()
    a(f"v_and_b32 v{vT}, 8, v{vL}"); a(f"v_lshlrev_b32 v{vT}, 1, v{vT}"); a(f"v_lshrrev_b32 v{vT}, v{vT}, s{sT}")
    a(f"v_and_b32 v{vTA}, {AM}, v{vT}"); a(f"v_bfe_u32 v{vTB}, v{vT}, 8, {abits}")
    a(f"s_lshl_b32 s{sTMP}, s{sW}, 10"); a(f"v_add_u32 v{vXG}, s{sTMP}, v{vVO}")
    wait("q")
    a("L_qchk:")
    for i in range(16): a(f"v_xor_b32 v{vW+i}, s{sTN[i&3]}, v{vW+i}")
    for i in range(8): a(f"v_xor_b32 v{vGU+i}, v{vTB if i&1 else vTA}, v{vGU+i}")
    a(f"v_or_b32 v{vT}, v{vW}, v{vW+1}")
    for i in range(2, 16, 2): a(f"v_or3_b32 v{vT}, v{vT}, v{vW+i}, v{vW+i+1}")
    for i in range(0, 8, 2): a(f"v_or3_b32 v{vT}, v{vT}, v{vGU+i}, v{vGU+i+1}")
    a(f"v_and_b32 v{vT}, {AM}, v{vT}")
    a(f"v_cmp_ne_u32 vcc, 0, v{vT}")
    retry("q", lambda: qloads("sc1", raw))
    add4(vW, vW, vW+8); add4(vW+4, vW+4, vW+12)
    for i in range(4): a(f"v_cvt_pk_bf16_f32 v{vW+i}, v{vW+2*i}, v{vW+2*i+1}")
    a(f"ds_write_b128 v{vXG}, {vr(vW,4)} offset:{L_Q}")
    add4(vGU, vGU, vGU+4)
    for i in range(4): a(f"v_cvt_pk_bf16_f32 v{vGU+i}, v{vGU+i}, v{vGU+i}")
    a("s_waitcnt lgkmcnt(0)"); a("s_barrier")
    for jj in range(4): a(f"ds_read_b128 {vr(vQ+4*jj,4)}, v{vVO} offset:{L_Q+1024*jj}")
    a("s_waitcnt lgkmcnt(0)")
    for b in range(2):
        for t in range(4): a(f"v_cndmask_b32 v{vQH+4*b+t}, v{vQ+8*b+t}, v{vQ+8*b+4+t}, {sr(sMO,2)}")
    stamp()
    C("pass 1: scores.  lane l keeps s[key 4*(l&3) + (l>>4) of the tile][head (l>>2)&3], one register per tile")
    for t in range(NT):
        b = 16*slot[t]
        wait((t, 3))
        if kseq[t] == "r":
            for i in range(4): a(f"v_mfma_f32_16x16x32_bf16 {vr(vSS,4)}, {ar(b+4*i,4)}, {vr(vQ+4*i,4)}, {'0' if i == 0 else vr(vSS,4)}")
        else:
            for i in (0, 2, 1, 3): a(f"v_mfma_f32_16x16x32_bf16 {vr(vSS+4*(i>>1),4)}, {ar(b+4*i,4)}, {vr(vQH+4*(i&1),4)}, {'0' if i&1 == 0 else vr(vSS+4*(i>>1),4)}")
        free.append(slot[t])
        if nxt[0] - (t+1) < RD or t % (kskip+1) == 0: issue()
        x = vS + t
        if kseq[t] == "r": sel4(x, vSS, vSS+1, vSS+2, vSS+3)
        else:
            sel4(vT, vSS+2, vSS+1, vSS+6, vSS+5); sel4(x, vSS, vSS+3, vSS+4, vSS+7)
            a(f"v_add_f32_dpp v{x}, v{vT}, v{x} quad_perm:[1,0,3,2] {DP}")
        rbf(x); a(f"v_mul_f32 v{x}, s{sSC}, v{x}"); rbf(x)
        if t == 1: a(f"v_max_f32 v{vNM}, v{x-1}, v{x}")
        elif t % 2 == 1: a(f"v_max3_f32 v{vNM}, v{vNM}, v{x-1}, v{x}")
        if t == yt:
            C("GLU: h = bf16(bf16(sigmoid(g)) * u), partial y = h @ w_down tile")
            for i in range(4): a(f"v_and_b32 v{vGU+i}, s{sHI}, v{vGU+i}")
            for op in (f"v_mul_f32 v{{0}}, {f2u(-L2E):#x}, v{{0}}", "v_exp_f32 v{0}, v{0}", "v_add_f32 v{0}, 1.0, v{0}", "v_rcp_f32 v{0}, v{0}",
                       "v_cvt_pk_bf16_f32 v{0}, v{0}, v{0}", f"v_and_b32 v{{0}}, s{sHI}, v{{0}}", "v_mul_f32 v{0}, v{0}, v{1}", "v_cvt_pk_bf16_f32 v{0}, v{0}, v{0}"):
                for i in range(2): a(op.format(vGU+i, vGU+2+i))
            for i in range(2):
                for k in range(4): a(f"v_and_b32 v{vXX+4*i+k}, v{vGU+i}, v{vMK+k}")
            for i in range(2):
                wait(("dn", i)); a(f"v_mfma_f32_16x16x32_bf16 {vr(vA0,4)}, {vr(vXX+4*i,4)}, {vr(vD+4*i,4)}, {'0' if i == 0 else vr(vA0,4)}")
            C("gather addresses: (m,l) lane = (producer 4*(l>>4)+(l&3), head (l>>2)&3); o lane = (producer l>>2, head l&3)")
            if xo: a(f"v_lshrrev_b32 v{vGO}, 3, v{vL}"); a(f"v_lshlrev_b32 v{vGO}, 11, v{vGO}"); a(f"v_and_b32 v{vGM}, 7, v{vL}"); a(f"v_lshl_add_u32 v{vGO}, v{vGM}, 4, v{vGO}")
            else:
                a(f"v_lshrrev_b32 v{vGO}, 2, v{vL}"); a(f"v_lshlrev_b32 v{vGO}, 11, v{vGO}"); a(f"v_lshl_add_u32 v{vGO}, v{vE}, 4, v{vGO}")
            a(f"v_lshlrev_b32 v{vGM}, 4, v{vBK}"); a(f"v_lshl_add_u32 v{vGM}, v{vE}, 6, v{vGM}"); a(f"v_lshl_add_u32 v{vGM}, v{vSL}, 8, v{vGM}")
            if xo: a(f"s_and_b32 s{sTMP}, s{sJ}, 24"); a(f"s_lshl1_add_u32 s{sA}, s{sW}, s{sTMP}")
            else: a(f"s_and_b32 s{sTMP}, s{sJ}, 28"); a(f"s_add_u32 s{sA}, s{sTMP}, s{sW}")
            a(f"s_lshl_b32 s{sTMP}, s{sKVH}, 16"); a(f"s_lshl_b32 s{sTMP2}, s{sA}, 6"); a(f"s_add_u32 s{sGO0}, s{sTMP}, s{sTMP2}")
            a(f"s_add_u32 s{sGO0}, s{sGO0}, {P_OFF}"); a(f"s_add_u32 s{sGO1}, s{sGO0}, 0x8000")
            a(f"s_lshl_b32 s{sGM}, s{sKVH}, 11"); a(f"s_add_u32 s{sGM}, s{sGM}, {ML_OFF}")
            a(f"s_lshl_b32 s{sTMP}, s{sKVH}, 19"); a(f"s_lshl_b32 s{sTMP2}, s{sA}, 12"); a(f"s_add_u32 s{sCB}, s{sTMP}, s{sTMP2}")
            a(f"s_and_b32 s{sTMP}, s{sJ}, {7 if xo else 3}"); a(f"s_lshl_b32 s{sTMP}, s{sTMP}, {7 if xo else 8}"); a(f"s_add_u32 s{sCB}, s{sCB}, s{sTMP}")
            if xo: a(f"s_add_u32 s{sTN[0]}, s{sGO0}, 0x4000"); a(f"s_add_u32 s{sTN[1]}, s{sGO1}, 0x4000")
            a(f"s_mov_b64 {sr(rDN,2)}, {sr(sWO,2)}"); a(f"s_mov_b32 s{rDN+2}, {4096*1024}")
            gemv_store(L_Y)
        if t == xget:
            C("wave 1: lanes 0-31 read the group's XCD words, lanes 32-63 pull the progress-flag line into L2")
            only(1, "L_noxg")
            a(f"s_lshl_b32 s{sTMP}, s{sKVH}, 9"); a(f"s_add_u32 s{sTMP}, s{sTMP}, {X_OFF}"); a(f"v_lshlrev_b32 v{vT}, 2, v{vL}")
            if len(ctrl) > 1:
                a(f"v_min_u32 v{vT2}, {len(ctrl)}, v{vE}"); a(f"v_lshlrev_b32 v{vT2}, 7, v{vT2}"); a(f"v_cmp_gt_u32 vcc, 32, v{vL}"); a(f"v_cndmask_b32 v{vT}, v{vT2}, v{vT}, vcc")
            a(f"buffer_load_dword v{vXG}, v{vT}, {WS}, s{sTMP} offen {xfl}")
            a("L_noxg:"); xmark = len(Q)
        if t > xget and xmark is not None and done[0] > xmark:
            xmark = None
            only(1, "L_noxg2")
            a(f"v_cmp_ne_u32 vcc, s{sXV}, v{vXG}"); a("s_cmp_eq_u32 vcc_lo, 0"); a(f"s_cselect_b32 s{sTMP}, 1, 0")
            if force is not None: a(f"s_mov_b32 s{sTMP}, {force}")
            a(f"v_mov_b32 v{vT}, 0"); a(f"v_mov_b32 v{vT2}, s{sTMP}"); a(f"ds_write_b32 v{vT}, v{vT2} offset:{L_CF}")
            a("L_noxg2:")
    C("wave max per head, e = exp(s - max), wave sum")
    allreduce_quad("v_max_f32", vNM); allreduce_rows("v_max_f32", vNM, vT)
    a(f"v_mul_f32 v{vNM}, {f2u(-L2E):#x}, v{vNM}")
    for t0 in range(0, NT, 4):
        for t in range(t0, t0+4): a(f"v_fma_f32 v{vS+t}, v{vS+t}, s{sL2E}, v{vNM}")
        for t in range(t0, t0+4): a(f"v_exp_f32 v{vS+t}, v{vS+t}")
        if t0 == 0: a(f"v_add_f32 v{vLS}, v{vS}, v{vS+1}"); a(f"v_add_f32 v{vT2}, v{vS+2}, v{vS+3}")
        else:
            for t in range(t0, t0+4): a(f"v_add_f32 v{vLS if t&1 else vT2}, v{vLS if t&1 else vT2}, v{vS+t}")
    a(f"v_add_f32 v{vLS}, v{vLS}, v{vT2}")
    allreduce_quad("v_add_f32", vLS); allreduce_rows("v_add_f32", vLS, vT)
    C("wave 0 merges and publishes the four (-max, sum) pairs, wave 3 the y partial; the others hold their loads until the stores are out")
    a(f"ds_write2_b32 v{vMLW}, v{vNM}, v{vLS} offset0:0 offset1:16")
    a(f"v_lshlrev_b32 v{vTA}, 2, v{vL}"); a(f"v_mov_b32 v{vTB}, 1"); a(f"v_mov_b32 v{vT}, 0")
    a(f"ds_write_b32 v{vTA}, v{vT} offset:{L_CNT}")
    if not atom: a(f"ds_write_b32 v{vTA}, v{vT} offset:{L_CNT+256}")
    a("s_waitcnt lgkmcnt(0)"); a("s_barrier")
    a(f"ds_read_b32 v{vT2}, v{vT} offset:{L_CF}"); a("s_waitcnt lgkmcnt(0)"); a(f"v_readfirstlane_b32 s{sFAST}, v{vT2}")
    only(3, "L_noypub")
    a(f"s_cmp_ge_u32 s{sJ}, 28"); a("s_cbranch_scc1 L_noypub")
    a("s_mov_b64 exec, 0xffff")
    a(f"s_lshl_b32 s{sTMP}, s{sJ}, 11"); a(f"s_lshl_b32 s{sTMP2}, s{sKVH}, 8"); a(f"s_add_u32 s{sTMP}, s{sTMP}, s{sTMP2}"); a(f"s_add_u32 s{sTMP}, s{sTMP}, {Y_OFF}")
    gemv_reduce(L_Y, vW)
    for r in range(4): a(f"v_add_u32 v{vW+r}, 0x80, v{vW+r}")
    for r in range(4): a(f"v_bfi_b32 v{vW+r}, v{vFF}, s{sTB+r}, v{vW+r}")
    a(f"s_cmp_eq_u32 s{sFAST}, 0")
    store_group("y", f"buffer_store_dwordx4 {vr(vW,4)}, v{vVO}, {WS}, s{sTMP} offen")
    a("s_mov_b64 exec, -1")
    a("L_noypub:")
    only(0, "L_nomlpub")
    a(f"ds_read_b128 {vr(vSS,4)}, v{vMLR} offset:{L_ML}"); a(f"ds_read_b128 {vr(vTT,4)}, v{vMLR} offset:{L_ML+64}")
    a("s_waitcnt lgkmcnt(0)")
    a(f"v_min3_f32 v{vA1}, v{vSS}, v{vSS+1}, v{vSS+2}"); a(f"v_min_f32 v{vA1}, v{vA1}, v{vSS+3}")
    for w in range(4): a(f"v_sub_f32 v{vSS+w}, v{vA1}, v{vSS+w}")
    for w in range(4): a(f"v_exp_f32 v{vSS+w}, v{vSS+w}")
    a(f"v_mov_b32 v{vA1+2}, s{sT}"); a(f"v_mov_b32 v{vA1+3}, s{sT}")
    a(f"v_mul_f32 v{vA1+1}, v{vSS}, v{vTT}")
    for w in range(1, 4): a(f"v_fmac_f32 v{vA1+1}, v{vSS+w}, v{vTT+w}")
    a("s_mov_b64 exec, 0xf")
    a(f"s_cmp_eq_u32 s{sFAST}, 0")
    store_group("ml", f"buffer_store_dwordx4 {vr(vA1,4)}, v{vVO}, {WS}, s{sPM} offen")
    a("s_mov_b64 exec, -1")
    a("L_nomlpub:")
    a("s_barrier")
    stamp()
    if not atom:
        C("lanes of the s-partial store whose consumers are members of this (proven local) group")
        a(f"s_and_b32 s{sTMP}, s{sJ}, 3"); a(f"s_lshr_b32 s{sTMP2}, s{sKVH}, 1"); a(f"s_cmp_eq_u32 s{sTMP}, s{sTMP2}"); a(f"s_cselect_b32 s{sLOC}, s{sFAST}, 0")
        a(f"s_mul_i32 s{sLOC}, s{sLOC}, 0xffff"); a(f"s_and_b32 s{sTMP}, s{sKVH}, 1"); a(f"s_lshl_b32 s{sTMP}, s{sTMP}, 4"); a(f"s_lshl_b32 s{sLOC}, s{sLOC}, s{sTMP}")
    yload = f"buffer_load_dwordx4 {vr(vGS,4)}, v{vL2K}, {WS}, s{sRG} offen sc1"
    def yget_block():
        a(f"s_cmp_ge_u32 s{sF}, 128"); a("s_cbranch_scc1 L_noyget")
        if not atom: a(f"global_load_ushort v{vXO}, v{vXO+1}, {sr(sX,2)}")
        for r in range(4): a(f"v_mov_b32 v{vGS+r}, 0")
        a("s_mov_b64 exec, 0xfffffff"); a(yload); a("s_mov_b64 exec, -1")
        a("L_noyget:")
    def gate_block():
        C("gate owner: y = sum of the 28 row-group partials, g = bf16(silu(bf16(y))); rows of 16 lanes hold columns (0,2,1,3)")
        a(f"s_cmp_ge_u32 s{sF}, 128"); a("s_cbranch_scc1 L_nog")
        a("s_mov_b64 exec, 0xfffffff")
        a("L_ychk:")
        untag4(vGS)
        retry("y", lambda: a(yload))
        a("s_mov_b64 exec, -1")
        fold4(vGS); rowreduce("v_add_f32", (vGS,)); rbf(vGS)
        a(f"v_mul_f32 v{vT}, {f2u(-L2E):#x}, v{vGS}"); a(f"v_exp_f32 v{vT}, v{vT}"); a(f"v_add_f32 v{vT}, 1.0, v{vT}"); a(f"v_rcp_f32 v{vT}, v{vT}")
        a(f"v_mul_f32 v{vGS}, v{vGS}, v{vT}"); rbf(vGS)
        if atom:
            a(f"s_and_b32 s{sA}, s{sT}, 0xffff"); a(f"s_lshr_b32 s{sB}, s{sT}, 16")
            for r, ln in ((1, 32), (2, 16), (3, 48), (0, 0)):
                a(f"v_readlane_b32 s{sTMP}, v{vGS}, {ln}"); a(f"s_or_b32 s{sTMP}, s{sTMP}, s{sB if r&1 else sA}"); a(f"v_mov_b32 v{vGS+r}, s{sTMP}")
            a(f"s_add_u32 s{sRG}, s{sRG}, {G_OFF - Y_OFF}")
            a("s_mov_b64 exec, 1"); a(f"buffer_store_dwordx4 {vr(vGS,4)}, v{vVO}, {WS}, s{sRG} offen sc1"); a("s_mov_b64 exec, -1")
        else:
            a(f"v_lshlrev_b32 v{vXO}, 16, v{vXO}"); a(f"s_add_u32 s{sRG}, s{sRG}, {S_OFF - Y_OFF}")
        a("L_nog:")
    if atom:
        vY = vQ
        def yloads():
            for i in range(4):
                if i == 3: a("s_mov_b32 exec_hi, 0")
                a(f"s_add_u32 s{sTMP}, s{sRG}, {16384*i}"); a(f"buffer_load_dwordx4 {vr(vY+4*i,4)}, v{vL2K}, {WS}, s{sTMP} offen sc1")
            a("s_mov_b64 exec, -1")
        def yget_block():
            a(f"s_cmp_ge_u32 s{sF}, 128"); a("s_cbranch_scc1 L_noyget")
            for r in range(4): a(f"v_mov_b32 v{vY+12+r}, 0")
            yloads()
            a("L_noyget:")
        def gate_block():
            C("gate owner: y = sum of the 28 row-group partials, g = bf16(silu(bf16(y))), published as one line of {bf16, tag} words")
            a(f"s_cmp_ge_u32 s{sF}, 128"); a("s_cbranch_scc1 L_nog")
            a("L_ychk:")
            a("s_mov_b32 exec_hi, 0")
            for r in range(4): a(f"v_xor_b32 v{vY+12+r}, s{sTB+r}, v{vY+12+r}")
            a("s_mov_b64 exec, -1")
            for r in range(12): a(f"v_xor_b32 v{vY+r}, s{sTB+(r&3)}, v{vY+r}")
            a(f"v_or_b32 v{vT}, v{vY}, v{vY+1}")
            for r in range(2, 16, 2): a(f"v_or3_b32 v{vT}, v{vT}, v{vY+r}, v{vY+r+1}")
            a(f"v_and_b32 v{vT}, v{vFF}, v{vT}"); a(f"v_cmp_ne_u32 vcc, 0, v{vT}")
            retry("y", yloads)
            add4(vY, vY, vY+4); add4(vY+8, vY+8, vY+12); add4(vY, vY, vY+8)
            rowreduce("v_add_f32", [vY+r for r in range(4)], (8,))
            for sw in (16, 32):
                for r in range(4): a(f"v_mov_b32 v{vY+4+r}, v{vY+r}")
                for r in range(4): a(f"v_permlane{sw}_swap_b32 v{vY+r}, v{vY+4+r}")
                add4(vY, vY, vY+4)
            for op in ("v_cvt_pk_bf16_f32 v{0}, v{0}, v{0}", f"v_and_b32 v{{0}}, s{sHI}, v{{0}}", f"v_mul_f32 v{{1}}, {f2u(-L2E):#x}, v{{0}}", "v_exp_f32 v{1}, v{1}",
                       "v_add_f32 v{1}, 1.0, v{1}", "v_rcp_f32 v{1}, v{1}", "v_mul_f32 v{0}, v{0}, v{1}", "v_cvt_pk_bf16_f32 v{0}, v{0}, v{0}"):
                for r in range(4): a(op.format(vY+r, vY+4+r))
            a(f"s_and_b32 s{sA}, s{sT}, 0xffff"); a(f"s_lshr_b32 s{sB}, s{sT}, 16")
            for r in range(4): a(f"v_lshl_or_b32 v{vY+r}, v{vY+r}, 16, s{sB if r&1 else sA}")
            a(f"s_mul_i32 s{sTMP}, s{sF}, {GST}"); a(f"s_add_u32 s{sTMP}, s{sTMP}, {G_OFF}")
            a("s_mov_b64 exec, 0xff"); a(f"buffer_store_dwordx4 {vr(vY,4)}, v{vVO}, {WS}, s{sTMP} offen sc1"); a("s_mov_b64 exec, -1")
            a("L_nog:")
    while nxt[0] < NT + mpos: issue()
    if atom: yget_block()
    def mloads(fl, e):
        e("m", f"buffer_load_dwordx4 {vr(vW,4)}, v{vGM}, {WS}, s{sGM} offen {fl}")
        e("m", f"buffer_load_dwordx4 {vr(vW+4,4)}, v{vGM}, {WS}, s{sGM} offen offset:1024 {fl}")
    mloads("", vm)
    while nxt[0] < NT + NS: issue()
    wait("m")
    a("L_mchk:")
    a(f"v_xor_b32 v{vT}, s{sT}, v{vW+2}"); a(f"v_xor_b32 v{vT2}, s{sT}, v{vW+6}"); a(f"v_or_b32 v{vT}, v{vT}, v{vT2}")
    a(f"v_cmp_ne_u32 vcc, 0, v{vT}")
    retry("m", lambda: mloads("sc1", raw))
    C("row max M and row sum L over all 65536 keys; p = bf16(e * exp(m_wave - M) / L)")
    a(f"v_min_f32 v{vT2}, v{vW}, v{vW+4}")
    allreduce_quad("v_min_f32", vT2); allreduce_rows("v_min_f32", vT2, vT)
    a(f"v_sub_f32 v{vW}, v{vT2}, v{vW}"); a(f"v_sub_f32 v{vW+4}, v{vT2}, v{vW+4}"); a(f"v_sub_f32 v{vNM}, v{vT2}, v{vNM}")
    a(f"v_exp_f32 v{vW}, v{vW}"); a(f"v_exp_f32 v{vW+4}, v{vW+4}"); a(f"v_exp_f32 v{vNM}, v{vNM}")
    a(f"v_mul_f32 v{vLS}, v{vW}, v{vW+1}"); a(f"v_fmac_f32 v{vLS}, v{vW+4}, v{vW+5}")
    allreduce_quad("v_add_f32", vLS); allreduce_rows("v_add_f32", vLS, vT)
    a(f"v_rcp_f32 v{vLS}, v{vLS}")
    a(f"v_mul_f32 v{vNM}, v{vNM}, v{vLS}")
    stamp()
    C("pass 2: o[head l>>4][d = 8*(l&15) + 4a + r] += p * V  (A operand: p at element l&3 of row 4*head + (l&3))")
    def gcheck():
        C("gate value and x element of this lane's output column")
        a(f"v_and_b32 v{vT2}, 2, v{vL}"); a(f"v_lshlrev_b32 v{vT2}, 3, v{vT2}"); a(f"v_lshrrev_b32 v{vT2}, v{vT2}, s{sT}")
        a("L_gchk:")
        a(f"v_xor_b32 v{vT}, v{vT2}, v{vGV}"); a(f"v_and_b32 v{vT}, 0xffff, v{vT}"); a(f"v_cmp_ne_u32 vcc, 0, v{vT}")
        retry("g", lambda: a(f"buffer_load_dword v{vGV}, v{vGA}, {WS}, s{sGG} offen sc1"))
        a(f"v_and_b32 v{vGV}, s{sHI}, v{vGV}"); a(f"v_lshlrev_b32 v{vXO}, 16, v{vXO}")
        a(f"s_mov_b32 s{sA}, {f2u(32.0 if xo else 64.0):#x}")
    def pprep(t): a(f"v_mul_f32 v{vS+t}, v{vS+t}, v{vNM}"); a(f"v_cvt_pk_bf16_f32 v{vS+t}, v{vS+t}, v{vS+t}")
    pprep(0); ymark = None; gdone = not atom or gpos is None
    for t in range(NT):
        h = NT + t; b = 16*slot[h]
        if t+1 < NT: pprep(t+1)
        for i in range(4):
            for k, m in enumerate((vM0, vM1)): a(f"v_and_b32_dpp v{vXX+2*i+k}, v{vS+t}, v{m} quad_perm:[{i},{i},{i},{i}] {DP}")
        for i in range(4):
            wait((h, i if t == NT-1 else 3))
            for k, acc in enumerate((vA0, vA1)): a(f"v_mfma_f32_16x16x16_bf16 {vr(acc,4)}, {vr(vXX+2*i,2)}, {ar(b+4*i+2*k,2)}, {'0' if t+i == 0 else vr(acc,4)}")
        free.append(slot[h])
        if t == wot:
            assert nxt[0] == 2*NT
            for r in range(4):
                vm("wo", f"buffer_load_dwordx4 {vr(vWO+4*r,4)}, v{vWOO}, {sr(rDN,4)}, s{sCB} offen {wf}")
                if r < 3: a(f"s_add_u32 s{sCB}, s{sCB}, {128*1024}")
        if nxt[0] < 2*NT and (nxt[0] - (h+1) < RV or t % (vskip+1) == 0): issue()
        if atom:
            if t == gt: gate_block()
            if not gdone and "gg" in Q and done[0] > max(i for i, x in enumerate(Q) if x == "gg"):
                gdone = True
                gcheck()
        else:
            if t == yget: yget_block(); ymark = len(Q)
            elif ymark is not None and done[0] > ymark: gate_block(); ymark = None
    assert gdone and ymark is None and nxt[0] == 2*NT
    stamp()
    if notail:
        for k in range(nst[0], nst[0]+3): a(f"s_memrealtime s[{sST+2*k}:{sST+2*k+1}]")
        a("s_branch L_fin")
    if atom and gpos is None:
        a(f"global_load_ushort v{vXO}, v{vXO+1}, {sr(sX,2)}"); a(f"buffer_load_dword v{vGV}, v{vGA}, {WS}, s{sGG} offen")
        if otouch: a(f"global_load_ushort v{vXO+2}, v{vXO+1}, {sr(sOUT,2)}")
    C("the wave whose LDS ticket is the last one sums the four partial o and publishes them (128 granules of 4 d-values)")
    a(f"ds_write_b128 v{vOAW}, {vr(vA0,4)} offset:{L_OA}"); a(f"ds_write_b128 v{vOAW1}, {vr(vA1,4)} offset:{L_OA}")
    a(f"ds_add_rtn_u32 v{vT2}, v{vTA}, v{vTB} offset:{L_CNT}")
    for hf in range(2):
        for w in range(4): a(f"ds_read_b128 {vr(vW+16*hf+4*w,4)}, v{vOAR} offset:{L_OA+2048*w+1024*hf}")
    a(f"s_cmp_eq_u32 s{sFAST}, 0")
    a("s_waitcnt lgkmcnt(8)")
    a(f"v_cmp_eq_u32 vcc, 3, v{vT2}"); a("s_cbranch_vccz L_notlast")
    for hf in range(2):
        b = vW+16*hf
        for w in range(1, 4): a(f"s_waitcnt lgkmcnt({7-4*hf-w})"); add4(b, b, b+4*w)
        for r in range(4): a(f"v_bfi_b32 v{vA0+4*hf+r}, v{vFF}, s{sTB+r}, v{b+r}")
        store_group(f"p{hf}", f"buffer_store_dwordx4 {vr(vA0+4*hf,4)}, v{vVO}, {WS}, s{sPP} offen offset:{1024*hf}")
    a("L_notlast:")
    a("s_waitcnt lgkmcnt(0)")
    if amp:
        only(3, "L_noamp")
        a("s_memrealtime s[98:99]"); a("s_waitcnt lgkmcnt(0)")
        a(f"v_mov_b32 v{vSS}, s96"); a(f"v_mov_b32 v{vSS+1}, s98"); a(f"s_lshl_b32 s{sTMP}, s2, 3"); a(f"s_add_u32 s{sTMP}, s{sTMP}, {ST_OFF}")
        a("s_mov_b64 exec, 1"); a(f"buffer_store_dwordx2 {vr(vSS,2)}, v{vVO}, {WS}, s{sTMP} offen sc1"); a("s_mov_b64 exec, -1")
        a("L_noamp:")
    stamp()
    C("gather 4 heads x 4 d-values from the 32 splits, multiply with the wo tile (16 rows x 128 columns per wave)")
    O0, O1 = vW, vW+4
    if xo:
        a("L_apoll:")
        for k, so_ in enumerate((sGO0, sTN[0], sGO1, sTN[1])): a(f"buffer_load_dwordx4 {vr(vW+4*k,4)}, v{vGO}, {WS}, s{so_} offen sc1")
        for k in range(4):
            b = vW+4*k
            a(f"s_waitcnt vmcnt({3-k})")
            for i in range(4): a(f"v_xor_b32 v{b+i}, s{sTB+i}, v{b+i}")
            if k == 0: a(f"v_or_b32 v{vT}, v{b}, v{b+1}")
            else: a(f"v_or3_b32 v{vT}, v{vT}, v{b}, v{b+1}")
            a(f"v_or3_b32 v{vT}, v{vT}, v{b+2}, v{b+3}")
        a(f"v_and_b32 v{vT}, v{vFF}, v{vT}")
    else:
        a("L_apoll:")
        a(f"buffer_load_dwordx4 {vr(O0,4)}, v{vGO}, {WS}, s{sGO0} offen sc1")
        a(f"buffer_load_dwordx4 {vr(O1,4)}, v{vGO}, {WS}, s{sGO1} offen sc1")
        a("s_waitcnt vmcnt(1)")
        for i in range(4): a(f"v_xor_b32 v{O0+i}, s{sTB+i}, v{O0+i}")
        a(f"v_or3_b32 v{vT}, v{O0}, v{O0+1}, v{O0+2}")
        a("s_waitcnt vmcnt(0)")
        for i in range(4): a(f"v_xor_b32 v{O1+i}, s{sTB+i}, v{O1+i}")
        a(f"v_or3_b32 v{vT}, v{vT}, v{O0+3}, v{O1}"); a(f"v_or3_b32 v{vT2}, v{O1+1}, v{O1+2}, v{O1+3}")
        a(f"v_or_b32 v{vT}, v{vT}, v{vT2}"); a(f"v_and_b32 v{vT}, v{vFF}, v{vT}")
    a(f"v_cmp_ne_u32 vcc, 0, v{vT}"); a("s_cbranch_vccz L_aok")
    a("s_mov_b64 exec, vcc")
    timeout("L_apoll")
    a("L_aok:")
    a("s_mov_b64 exec, -1")
    stamp()
    if xo:
        add4(vW, vW, vW+4); add4(vW+8, vW+8, vW+12); add4(vW, vW, vW+8); fold4(O0); rowreduce("v_add_f32", (O0,), (8,))
        a(f"v_mov_b32_dpp v{O0}, v{O0} row_ror:4 row_mask:0xf bank_mask:0x6")
    else: add4(O0, O0, O1); fold4(O0); rowreduce("v_add_f32", (O0,), (8, 4))
    a(f"v_cvt_pk_bf16_f32 v{O0}, v{O0}, v{O0}")
    for r in range(5):
        if r < 4:
            for t in range(4): a(f"v_and_b32_dpp v{vQ+4*r+t}, v{O0}, v{vMK+t} quad_perm:[{r},{r},{r},{r}] {DP}")
        if r > 0: a(f"v_mfma_f32_16x16x32_bf16 {vr(vA0,4)}, {vr(vQ+4*(r-1),4)}, {vr(vWO+4*(r-1),4)}, {'0' if r == 1 else vr(vA0,4)}")
    if xo:
        a("s_mov_b32 exec_lo, 0x00ff00ff"); a("s_mov_b32 exec_hi, 0xff00ff00")
        a(f"ds_write_b128 v{vDGA}, {vr(vA0,4)} offset:{L_SR}")
    else:
        a("s_mov_b32 exec_hi, 0")
        a(f"ds_write_b128 v{vSRW}, {vr(vA0,4)} offset:{L_SR}")
    def epilogue(v, g):
        rbf(v); a(f"v_mul_f32 v{v}, v{v}, v{g}"); rbf(v); a(f"v_add_f32 v{v}, v{v}, v{vXO}"); a(f"v_cvt_pk_bf16_f32 v{v}, v{v}, v{v}")
    def epoch():
        C("every workgroup has read the epoch word by now (all of them fed this sum): advance it")
        a("s_mov_b64 exec, 1")
        a(f"v_mov_b32 v{vT}, s{sT}"); a(f"buffer_store_dword v{vT}, v{vVO}, {WS}, 0 offen {est}")
    if atom:
        C("even lanes add this workgroup's s partial, odd lanes add 1 to the pair's counter; whoever completes the 64 adds holds the full sum")
        if xo: a("s_mov_b32 exec_lo, -1"); a("s_mov_b32 exec_hi, 0")
        else: a("s_mov_b32 exec_hi, -1")
        a("s_waitcnt lgkmcnt(0)"); a("s_barrier")
        st = 1 if xo else 2
        a(f"ds_read2st64_b32 {vr(vSS,2)}, v{vSRR} offset0:0 offset1:{st}"); a(f"ds_read2st64_b32 {vr(vSS+2,2)}, v{vSRR} offset0:{2*st} offset1:{3*st}")
        a("s_waitcnt lgkmcnt(0)")
        a(f"v_pk_add_f32 {vr(vSS,2)}, {vr(vSS,2)}, {vr(vSS+2,2)}"); a(f"v_add_f32 v{vSS}, v{vSS}, v{vSS+1}")
        if xo: a(f"v_add_f32_dpp v{vSS}, v{vSS}, v{vSS} quad_perm:[1,0,3,2] {DP}")
        a(f"v_cndmask_b32 v{vSS}, v{vSS}, 1.0, {sr(sMO,2)}")
        a(f"v_cvt_f64_f32 {vr(vTT,2)}, v{vSS}")
        a(f"buffer_atomic_add_f64 {vr(vTT,2)}, v{vAA}, {WS}, s{sPS} offen {aflags}")
        stamp()
        a(f"v_cvt_f64_f32 {vr(vTT+2,2)}, v{vSS}")
        if gpos is None: gcheck()
        a("s_waitcnt vmcnt(0)")
        a(f"v_add_f64 {vr(vTT,2)}, {vr(vTT,2)}, {vr(vTT+2,2)}")
        a(f"v_cvt_f32_f64 v{vSS}, {vr(vTT,2)}")
        a(f"v_cmp_eq_f32 vcc, s{sA}, v{vSS}")
        C("out = bf16(x + bf16(bf16(s) * g))")
        epilogue(vSS, vGV)
        a(f"s_and_b64 vcc, vcc, {sr(sMO,2)}"); a("s_lshr_b64 exec, vcc, 1"); a("s_cbranch_execz L_fin")
        a(f"global_store_short v{vXO+1}, v{vSS}, {sr(sOUT,2)} {ost}")
        a(f"s_cmp_lg_u32 s{sPS}, {S_OFF}"); a("s_cbranch_scc1 L_fin")
        a("s_bitcmp0_b32 exec_lo, 0"); a("s_cbranch_scc1 L_fin")
        epoch()
    else:
        C("the wave whose LDS ticket is the last one sums and publishes the s partial")
        a(f"ds_add_rtn_u32 v{vT2}, v{vTA}, v{vTB} offset:{L_CNT+256}")
        for w in range(4): a(f"ds_read_b128 {vr(vQ+4*w,4)}, v{vVO} offset:{L_SR+512*w}")
        a("s_waitcnt lgkmcnt(4)")
        a(f"v_cmp_eq_u32 vcc, 3, v{vT2}"); a("s_cbranch_vccz L_nopub")
        for w in range(1, 4): a(f"s_waitcnt lgkmcnt({3-w})"); add4(vQ, vQ, vQ+4*w)
        for r in range(4): a(f"v_bfi_b32 v{vQ+r}, v{vFF}, s{sTB+r}, v{vQ+r}")
        a(f"s_not_b32 exec_lo, s{sLOC}")
        a(f"buffer_store_dwordx4 {vr(vQ,4)}, v{vVO}, {WS}, s{sPS} offen sc1")
        a(f"s_cmp_eq_u32 s{sLOC}, 0"); a("s_cbranch_scc1 L_nopub")
        a(f"s_mov_b32 exec_lo, s{sLOC}")
        a(f"buffer_store_dwordx4 {vr(vQ,4)}, v{vVO}, {WS}, s{sPS} offen")
        a("L_nopub:")
        stamp()
        a("s_mov_b64 exec, -1")
        a(f"s_cmp_ge_u32 s{sF}, 128"); a("s_cbranch_scc1 L_fin")
        C("gate owner: s = sum of 64 partials, out = bf16(x + bf16(bf16(s) * g))")
        a("L_bpoll:")
        a(f"buffer_load_dwordx4 {vr(vSS,4)}, v{vL2K}, {WS}, s{sRG} offen sc1")
        a("s_waitcnt vmcnt(0)")
        untag4(vSS); a("s_cbranch_vccz L_bok")
        a("s_mov_b64 exec, vcc")
        timeout("L_bpoll")
        a("L_bok:")
        a("s_mov_b64 exec, -1")
        fold4(vSS); rowreduce("v_add_f32", (vSS,))
        epilogue(vSS, vGS)
        a("s_mov_b32 exec_lo, 0x00010001"); a("s_mov_b32 exec_hi, 0x00010001")
        a(f"global_store_short v{vXO+1}, v{vSS}, {sr(sOUT,2)} {ost}")
        a(f"s_cmp_lg_u32 s{sF}, 0"); a("s_cbranch_scc1 L_fin")
        epoch()
    if amp:
        a("s_memrealtime s[98:99]"); a("s_mov_b64 exec, -1")
        a(f"s_mov_b32 s{sTMP}, {ST_OFF}"); a(f"v_lshlrev_b32 v{vT}, 5, v{vL}")
        a(f"buffer_load_dwordx4 {vr(vW,4)}, v{vT}, {WS}, s{sTMP} offen sc1"); a(f"buffer_load_dwordx4 {vr(vW+4,4)}, v{vT}, {WS}, s{sTMP} offen offset:16 sc1")
        a("s_waitcnt vmcnt(0) lgkmcnt(0)")
        for i in range(8): a(f"v_subrev_u32 v{vW+i}, s96, v{vW+i}")
        a(f"v_min_i32 v{vSS}, v{vW}, v{vW+2}"); a(f"v_min3_i32 v{vSS}, v{vSS}, v{vW+4}, v{vW+6}"); rowreduce("v_min_i32", (vSS,)); allreduce_rows("v_min_i32", vSS, vT)
        a(f"v_readfirstlane_b32 s90, v{vSS}"); a("s_nop 3"); a("s_max_i32 s90, s90, -300")
        a("s_sub_u32 s88, s98, s96"); a("s_sub_u32 s88, s88, s90")
        a(f"s_mul_i32 s88, s88, {amp}"); a("s_min_u32 s88, s88, 200000"); a("s_add_u32 s88, s88, s90"); a("s_add_u32 s88, s88, 6000")
        a("L_spin:")
        a("s_memrealtime s[98:99]"); a("s_waitcnt lgkmcnt(0)"); a("s_sub_u32 s98, s98, s96"); a("s_cmp_lt_i32 s98, s88"); a("s_cbranch_scc1 L_spin")
    a("L_fin:")
    if stamps:
        a("s_memrealtime s[100:101]"); a("s_mov_b64 exec, -1"); a("s_waitcnt lgkmcnt(0)")
        for i in range(nst[0]): a(f"v_writelane_b32 v{vTS}, s{sST+2*i}, {i}")
        a(f"v_writelane_b32 v{vTS}, s100, {nst[0]}")
        a(f"v_writelane_b32 v{vTS}, s{sTMO}, 15"); a(f"v_writelane_b32 v{vTS}, s{sFAST}, 14")
        a(f"s_lshl_b32 s{sTMP}, s2, 2"); a(f"s_add_u32 s{sTMP}, s{sTMP}, s{sW}"); a(f"s_lshl_b32 s{sTMP}, s{sTMP}, 8"); a(f"s_add_u32 s{sTMP}, s{sTMP}, {ST_OFF}")
        a(f"v_lshlrev_b32 v{vTT}, 2, v{vL}")
        a(f"buffer_store_dword v{vTS}, v{vTT}, {WS}, s{sTMP} offen")
    a("L_done:")
    a("s_endpgm")
    C("out of line: write-through stores, re-polls, half-line V loads")
    for lbl, body, back in ool:
        a(f"{lbl}:"); body(); a(f"s_branch {back}")
    txt = HEADER + f"; @launch grid=(256,1,1) block=(256,1,1) lds={lds}\n" + DOC
    txt += f'.amdgcn_target "amdgcn-amd-amdhsa--gfx950"\n.text\n.globl {NAME}_kernel\n.p2align 8\n.type {NAME}_kernel,@function\n'
    txt += a.finish() + "L_codeend:\n"
    txt += f'''.section .rodata,"a"
.p2align 6
.amdhsa_kernel {NAME}_kernel
  .amdhsa_next_free_vgpr {NV + 16*NS}
  .amdhsa_next_free_sgpr 102
  .amdhsa_accum_offset {NV}
  .amdhsa_group_segment_fixed_size 0
  .amdhsa_kernarg_size 96
  .amdhsa_user_sgpr_count 2
  .amdhsa_user_sgpr_kernarg_segment_ptr 1
  .amdhsa_system_sgpr_workgroup_id_x 1
  .amdhsa_float_denorm_mode_32 3
.end_amdhsa_kernel
'''
    return txt

if __name__ == "__main__":
    kw = {}
    for x in sys.argv[2:]:
        k, v = x.split("=", 1)
        try: v = eval(v)
        except Exception: pass
        kw[k] = v
    open(sys.argv[1], "w").write(gen(**kw))
```

```python
import sys, struct
from asmlib import Asm
NAME = "recurrent_scan__gqa_block_cached__glu_gated_glu__decode"
def f2u(x): return struct.unpack("<I", struct.pack("<f", x))[0]
HEADER = open("cdna_kernels/%s.s.ref" % NAME).read().split("; Override launch")[0]
L2E = 1.4426950408889634

DOC = """;
;  tail     o summed over the 32 splits -> times a wo tile -> f64 atomic adds into accumulators zeroed earlier in this launch;
"""

def gen(NS=16, RD=5, RV=7, first=1, pre=4, qpos=11, mpos=11, kskip=3, vskip=2, yt=4, xget=18, yget=18, wot=30,
        kseq="h"*10+"rh"*11, vseq="sc"*5+"a"*10+"sc"*2+"b"*6+"cc", ctrl=((6, (3, 11, 21, 27, 29, 30, 31), 3), (20, (3, 13, 24, 29, 30), 1)),
        final="atom", gpos=None, gt=3, lds=20480, tmo=1<<20, abits=4,
        stamps=False, tstamps=False, force=None, amp=None, notail=False, est="", ost="", otouch=False, aflags="sc0 sc1", wb=(15, 13), sb=(12, 16, 14, 17, 18), gx=((4, 18),), ib=(10, 11), bar=(), xr=None, compact=True, pfpos=0, xo=False, cfl="sc1", xfl="sc1", fst="", amap="15 13 | 12^20 23 22 17 18 | 17^19 20 21 14 16", tmap=False):
    NT = 32; kvf = wf = "nt"; atom = final == "atom"
    def PM(t): return 0 if t == "-" else sum(1 << int(b) for b in t.split("^"))
    if amap is None:
        smask = [1 << b for b in sb]; jmask = [(1 << (19+k)) ^ sum(1 << ab for jb, ab in gx if jb == k) for k in range(5)]; hmask = [0, 0, 0]
    else:
        m_, _, h_ = amap.partition("||"); m_ = [PM(t) for t in m_.replace("|", " ").split()]
        wb = tuple(x.bit_length()-1 for x in m_[:2]); smask = m_[2:7]; jmask = m_[7:12]; hmask = [PM(t) for t in h_.split()] if h_ else [0, 0, 0]
    wmask = m_[:2] if amap else [1 << b for b in wb]
    swave = tmap or any(x & (x-1) for x in wmask) or any(x & (wmask[0] | wmask[1]) for x in smask + jmask + hmask)
    assert not any(x & sum(1 << b for b in ib) for x in smask + jmask + hmask + wmask)
    basis = []
    for v in smask + jmask + wmask + [1 << b for b in ib]:
        for b in basis: v = min(v, v ^ b)
        assert v and 1024 <= v < 1 << 24; basis.append(v)
    def xor_of(n, masks):
        r = 0
        for k, x in enumerate(masks):
            if n >> k & 1: r ^= x
        return r
    a = Asm()
    def C(text): a("; " + text)
    E_OFF, A1_OFF, Y_OFF, ML_OFF, X_OFF, G_OFF, S_OFF, P_OFF, ST_OFF = 0, 0x1000, 0x10000, 0x20000, 0x30000, 0x38000, 0x40000, 0x80000, 0x100000
    L_S1, L_Y, L_CF, L_ML, L_OA, L_SR, L_Q, L_CNT = 0, 2048, 4096, 4224, 4608, 12800, 14848, 18944
    assert L_CNT + 512 <= lds
    C_OFF = 0x50000; CST = 1280; sXR = 72
    GST = 1280; HALF = 7680*4; AM = (1 << abits) - 1
    sX, sWQ, sWO, sG, sU, sDN, sOUT, sWS = 4, 10, 12, 16, 18, 20, 22, 26
    rK, rV, rW1, rWS, rDN = 28, 32, 36, 40, 44
    sW, sKVH, sJ, sOF, sOF0, sCB, sSTR, sT, sTMP, sTMP2, sFAST, sXV = range(48, 60)
    sA, sB, sSC, sL2E, sTB = 60, 61, 62, 63, 64
    sHI, sLOC, sTMO, sCOL, sRG, sF, sPP, sPM, sPS, sPC = 68, 69, 70, 72, 73, 74, 75, 76, 77, 78
    sM1, sM2, sM3, sMO = 16, 18, 10, 6
    sGO0, sGO1, sGM, sNF, sGG = 24, 25, 3, 14, 15
    sTN = (8, 9, 71, 79); sST = 80; sOFX = (0, 1, 69)
    vL, vKO, vVO, vM0, vM1, vNM, vLS, vT = range(8)
    vA0, vA1, vSS, vTT, vXX, vQ = 8, 12, 16, 20, 24, 32
    vSL, vE, vBK, vN, vFF, vOAW, vOAR, vMLW, vMLR, vGO, vGM, vSRW, vL2K, vWOO, vDGA, vT2 = range(48, 64)
    vW, vD, vCF, vGV, vGA, vAA, vWO, vMK, vGS, vXO, vF = 64, 96, 104, 105, 106, 107, 108, 124, 128, 132, 136
    vTS, vVW, vKH, vXG, vQH, vS, vOAW1, vTA, vTB, vSRR = 144, 145, 146, 147, 148, 156, 188, 189, 190, 191
    NV = 192; vGU = vF
    def vr(b, n): return f"v[{b}:{b+n-1}]"
    def ar(b, n): return f"a[{b}:{b+n-1}]"
    def sr(b, n): return f"s[{b}:{b+n-1}]"
    WS = sr(rWS, 4)
    nst = [0]
    def stamp():
        if stamps: a(f"s_memrealtime s[{sST+2*nst[0]}:{sST+2*nst[0]+1}]"); nst[0] += 1
    Q = []; done = [0]
    def vm(tag, text): a(text); Q.append(tag)
    def wait(tag):
        idx = max(i for i, t in enumerate(Q) if t == tag)
        if idx < done[0]: return
        n = min(len(Q) - 1 - idx, 63)
        a(f"s_waitcnt vmcnt({n})"); done[0] = len(Q) - n
    DP = "row_mask:0xf bank_mask:0xf"
    def allreduce_rows(op, v, t):
        for sw in (16, 32): a(f"v_mov_b32 v{t}, v{v}"); a(f"v_permlane{sw}_swap_b32 v{v}, v{t}"); a(f"{op} v{v}, v{v}, v{t}")
    def allreduce_quad(op, v):
        for qp in ("[1,0,3,2]", "[2,3,0,1]"): a(f"{op}_dpp v{v}, v{v}, v{v} quad_perm:{qp} {DP}")
    def rowreduce(op, vs, steps=(8, 4, 2, 1)):
        for st in steps:
            for v in vs: a(f"{op}_dpp v{v}, v{v}, v{v} row_ror:{st} {DP}")
    def fold4(b):
        a(f"v_permlane32_swap_b32 v{b}, v{b+1}"); a(f"v_permlane32_swap_b32 v{b+2}, v{b+3}")
        a(f"v_add_f32 v{b}, v{b}, v{b+1}"); a(f"v_add_f32 v{b+2}, v{b+2}, v{b+3}")
        a(f"v_permlane16_swap_b32 v{b}, v{b+2}"); a(f"v_add_f32 v{b}, v{b}, v{b+2}")
    def unpack(dst, src, n):
        for i in range(n): a(f"v_lshlrev_b32 v{dst+2*i}, 16, v{src+i}"); a(f"v_and_b32 v{dst+2*i+1}, s{sHI}, v{src+i}")
    def rbf(v): a(f"v_cvt_pk_bf16_f32 v{v}, v{v}, v{v}"); a(f"v_and_b32 v{v}, s{sHI}, v{v}")
    def sel4(dst, x0, x1, x2, x3):
        a(f"v_cndmask_b32 v{dst}, v{x0}, v{x1}, {sr(sM1,2)}"); a(f"v_cndmask_b32 v{dst}, v{dst}, v{x2}, {sr(sM2,2)}"); a(f"v_cndmask_b32 v{dst}, v{dst}, v{x3}, {sr(sM3,2)}")
    def add4(d, x, y):
        for r in (0, 2): a(f"v_pk_add_f32 {vr(d+r,2)}, {vr(x+r,2)}, {vr(y+r,2)}")
    def untag4(b):
        for r in range(4): a(f"v_xor_b32 v{b+r}, s{sTB+r}, v{b+r}")
        a(f"v_or3_b32 v{vT}, v{b}, v{b+1}, v{b+2}"); a(f"v_or_b32 v{vT}, v{vT}, v{b+3}"); a(f"v_and_b32 v{vT}, v{vFF}, v{vT}")
        a(f"v_cmp_ne_u32 vcc, 0, v{vT}")
    def timeout(lbl):
        a(f"s_sub_u32 s{sTMO}, s{sTMO}, 1"); a(f"s_cmp_gt_i32 s{sTMO}, 0"); a(f"s_cbranch_scc1 {lbl}")
    def only(w, lbl): a(f"s_cmp_lg_u32 s{sW}, {w}"); a(f"s_cbranch_scc1 {lbl}")
    def gemv_store(base):
        a("s_mov_b32 exec_lo, 0x00ff00ff"); a("s_mov_b32 exec_hi, 0xff00ff00")
        a(f"ds_write_b128 v{vDGA}, {vr(vA0,4)} offset:{base}"); a("s_mov_b64 exec, -1")
    def gemv_reduce(base, tmp):
        for p in range(8): a(f"ds_read_b128 {vr(tmp+4*p,4)}, v{vVO} offset:{base+256*p}")
        a("s_waitcnt lgkmcnt(0)")
        for step in (16, 8, 4):
            for r in range(0, step, 4): add4(tmp+r, tmp+r, tmp+step+r)
    ool = []
    def store_group(lbl, text):
        a(f"s_cbranch_scc1 L_{lbl}slow"); a(text); a(f"L_{lbl}done:")
        ool.append((f"L_{lbl}slow", lambda: a(text + " sc1"), f"L_{lbl}done"))
    def retry(lbl, loads):
        def body():
            a(f"s_sub_u32 s{sTMO}, s{sTMO}, 1"); a(f"s_cmp_le_i32 s{sTMO}, 0"); a(f"s_cbranch_scc1 L_{lbl}ok")
            loads(); a("s_waitcnt vmcnt(0)")
        a(f"s_cbranch_vccnz L_{lbl}retry"); a(f"L_{lbl}ok:")
        ool.append((f"L_{lbl}retry", body, f"L_{lbl}chk"))
    free = list(range(NS)); slot = {}; nxt = [0]; na = [0, 0, 0]
    def issue():
        h = nxt[0]; nxt[0] += 1
        s = slot[h] = free.pop(0); b = 16*s
        pat = (kseq + vseq)[h]
        if h in bar: a("s_barrier")
        if xr and h == NT + ctrl[0][0] - xr[0]:
            C("wave 1 draws its arrival rank among the 8 workgroups (one per group) with the same j; the group's mean rank measures its lag")
            only(1, "L_nodraw")
            a(f"s_mul_i32 s{sTMP}, s{sJ}, {CST}"); a(f"s_add_u32 s{sTMP}, s{sTMP}, {C_OFF}")
            a(f"s_mov_b32 s{sXR}, 1"); a(f"s_atomic_add s{sXR}, {sr(sWS,2)}, s{sTMP} glc")
            a("L_nodraw:")
        for ci, (cpos, _, _) in enumerate(ctrl):
            if h != NT + cpos: continue
            C("progress flag: the more members of the group passed this point earlier, the more whole-line V loads this wave uses below")
            a(f"s_lshl_b32 s{sTMP}, s{sKVH}, 9"); a(f"s_add_u32 s{sTMP}, s{sTMP}, {X_OFF+128*(ci+1)}")
            only((1, 3, 2)[ci], f"L_noflag{ci}")
            a(f"s_lshl_b32 s{sTMP2}, s{sJ}, 2"); a(f"s_add_u32 s{sTMP2}, s{sTMP2}, s{sTMP}")
            if xr and ci == 0: a("s_waitcnt lgkmcnt(0)"); a(f"s_and_b32 s{sXR}, s{sXR}, 7"); a(f"s_andn2_b32 s{sA}, s{sT}, 7"); a(f"s_or_b32 s{sXR}, s{sXR}, s{sA}"); a(f"v_mov_b32 v{vT}, s{sXR}")
            else: a(f"v_mov_b32 v{vT}, s{sT}")
            a("s_mov_b64 exec, 1"); a(f"buffer_store_dword v{vT}, v{vVO}, {WS}, s{sTMP2} offen {fst}"); a("s_mov_b64 exec, -1")
            a(f"L_noflag{ci}:")
            if xr and ci == 1:
                a(f"v_xor_b32 v{vT2}, 32, v{vL}"); a(f"v_lshlrev_b32 v{vT2}, 2, v{vT2}"); a(f"s_sub_u32 s{sTMP}, s{sTMP}, 128")
            else: a(f"v_and_b32 v{vT2}, 31, v{vL}"); a(f"v_lshlrev_b32 v{vT2}, 2, v{vT2}")
            vm(("cf", ci), f"buffer_load_dword v{vCF}, v{vT2}, {WS}, s{sTMP} offen {cfl}")
        if atom and gpos is not None and h == NT + gpos:
            vm("gg", f"global_load_ushort v{vXO}, v{vXO+1}, {sr(sX,2)}")
            vm("gg", f"buffer_load_dword v{vGV}, v{vGA}, {WS}, s{sGG} offen")
        made = {0: sOF}
        def so(off, pre=False):
            hi, lo = off & ~4095, off & 4095
            if hi not in made:
                assert pre
                made[hi] = sOFX[len(made)-1]; a(f"s_or_b32 s{made[hi]}, s{sOF}, {hi:#x}")
            return f"s{made[hi]} offen offset:{lo}"
        go = [((i & 1) << ib[0]) + ((i >> 1) << ib[1]) for i in range(4)]
        if h < NT: offs = [go[i & 2] + 128*(i & 1) for i in range(4)]; vo, rs = vKH, rK
        else: offs = go; vo, rs = vVW, rV
        if pat != "r":
            for x in offs: so(x, True)
        def whole(e):
            for i in range(4): e((h, i), f"buffer_load_dwordx4 {ar(b+4*i,4)}, v{vo}, {sr(rs,4)}, {so(offs[i])} {kvf}")
        def split(e):
            for i in range(4):
                for k in range(2): e((h, i), f"buffer_load_dwordx2 {ar(b+4*i+2*k,2)}, v{vo}, {sr(rs,4)}, {so(offs[i]+8*k)} {kvf}")
        if pat == "r":
            for i in range(4): vm((h, i), f"buffer_load_dwordx4 {ar(b+4*i,4)}, v{vKO}, {sr(rK,4)}, s{sOF} offen offset:{64*i} {kvf}")
        elif pat in "hc": whole(vm)
        elif pat in "zs": split(vm)
        else:
            ci = "abd".index(pat); _, cthr, cbase = ctrl[ci]
            if na[ci] == 0:
                wait(("cf", ci))
                if xr: a(f"v_xor_b32 v{vT}, s{sT}, v{vCF}"); a(f"v_cmp_gt_u32 vcc, 8, v{vT}")
                else: a(f"v_cmp_eq_u32 vcc, s{sT}, v{vCF}")
                a(f"s_bcnt1_i32_b32 s{sTMP}, vcc_lo"); a(f"s_mov_b32 s{sNF}, {cbase}")
                if xr and ci == 1:
                    a(f"s_cmp_lg_u32 vcc_hi, -1"); a("s_cbranch_scc1 L_noxr")
                    a(f"s_mov_b32 s{sXR}, 0")
                    for bit in (2, 1, 0):
                        a(f"v_and_b32 v{vT}, {1<<bit}, v{vCF}"); a(f"v_cmp_ne_u32 vcc, 0, v{vT}"); a(f"s_bcnt1_i32_b32 s{sTMP2}, vcc_hi"); a(f"s_lshl1_add_u32 s{sXR}, s{sXR}, s{sTMP2}")
                    if stamps: a(f"v_writelane_b32 v{vTS}, s{sXR}, 11")
                    a(f"s_sub_u32 s{sXR}, s{sXR}, 112"); a(f"s_mul_i32 s{sXR}, s{sXR}, {xr[1]}")
                    a(f"s_add_u32 s{sTMP2}, s{sJ}, s{sW}"); a(f"s_and_b32 s{sTMP2}, s{sTMP2}, 3"); a(f"s_lshl_b32 s{sTMP2}, s{sTMP2}, 8"); a(f"s_add_u32 s{sXR}, s{sXR}, s{sTMP2}"); a(f"s_add_u32 s{sXR}, s{sXR}, 128")
                    a(f"s_ashr_i32 s{sXR}, s{sXR}, 10"); a(f"s_add_u32 s{sNF}, s{sNF}, s{sXR}")
                    a("L_noxr:")
                if stamps: a(f"v_writelane_b32 v{vTS}, s{sTMP}, {13-ci}")
                for th in cthr: a(f"s_cmp_gt_u32 s{sTMP}, {th}"); a(f"s_addc_u32 s{sNF}, s{sNF}, 0")
            k_ = na[ci]; na[ci] += 1
            a(f"s_cmp_le_i32 s{sNF}, {k_//2 if k_ % 2 else (kseq+vseq).count(pat)-1-k_//2}"); a(f"s_cbranch_scc1 L_vs{h}")
            whole(vm); a(f"L_vj{h}:")
            ool.append((f"L_vs{h}", lambda: split(lambda tag, text: a(text)), f"L_vj{h}"))
        if tmap:
            n_ = (h+1) % NT
            if h < 2*NT-1: a(f"s_xor_b32 s{sOF}, s{sOF}, s{88 + (((n_ & -n_).bit_length()-1) if n_ else 4)}")
        elif h < 2*NT-1: a(f"s_xor_b32 s{sOF}, s{sOF0}, {xor_of((h+1) % NT, smask):#x}")
        if tstamps and h % 2 == 1:
            a("s_memrealtime s[100:101]"); a("s_waitcnt lgkmcnt(0)"); a(f"v_writelane_b32 v{vTS}, s100, {16+h//2}")

    a(f"{NAME}_kernel:")
    if amp: a("s_memrealtime s[96:97]")
    stamp()
    a(f"s_load_dwordx2 {sr(rK,2)}, s[0:1], 8"); a(f"s_load_dwordx2 {sr(rV,2)}, s[0:1], 16")
    a("s_load_dwordx16 s[4:19], s[0:1], 0"); a("s_load_dwordx8 s[20:27], s[0:1], 64")
    a("s_cmpk_ge_u32 s2, 256"); a("s_cbranch_scc1 L_done")
    a(f"s_and_b32 s{sKVH}, s2, 7"); a(f"s_lshr_b32 s{sJ}, s2, 3")
    def pfcode():
        C("pull this kernel's code into L2 (each workgroup touches 8 lines)")
        a(f"s_getpc_b64 {sr(sPC,2)}")
        a("L_pc:")
        a(f"v_and_b32 v{vA0}, 7, v0"); a(f"v_lshl_add_u32 v{vA0}, s{sJ}, 3, v{vA0}"); a(f"v_lshlrev_b32 v{vA0}, 7, v{vA0}")
        a(f"v_min_u32 v{vA0}, L_codeend-L_pc-4, v{vA0}")
        vm("pf", f"global_load_dword v{vA0+1}, v{vA0}, {sr(sPC,2)}")
    if pfpos == 0: pfcode()
    C("16-key tiles (4 KiB): which tiles of the head a wave takes, and in which order, is a GF(2)-linear map of (wave, step, split, head)")
    C("chosen so that the load on HBM stacks / channels / banks stays even and DRAM rows are reused")
    sh = {}
    for k, x in enumerate([hmask[i] ^ (1 << (24+i)) for i in range(3)] + jmask):
        for ab in range(27):
            if x >> ab & 1: sh[ab-k] = sh.get(ab-k, 0) | (1 << k)
    if len(sh) <= 8:
        for n_, (d, m) in enumerate(sorted(sh.items())):
            a(f"s_and_b32 s{sTMP}, s2, {m}"); a(f"s_lshl_b32 s{sTMP if n_ else sOF}, s{sTMP}, {d}")
            if n_: a(f"s_xor_b32 s{sOF}, s{sOF}, s{sTMP}")
    else:
        for k, x in enumerate([hmask[i] ^ (1 << (24+i)) for i in range(3)] + jmask):
            a(f"s_bitcmp1_b32 s2, {k}"); a(f"s_cselect_b32 s{sTMP if k else sOF}, {x:#x}, 0")
            if k: a(f"s_xor_b32 s{sOF}, s{sOF}, s{sTMP}")
    if swave:
        a(f"v_readfirstlane_b32 s{sW}, v0")
        if not tmap:
            for k in range(2): a(f"s_bitcmp1_b32 s{sW}, {6+k}"); a(f"s_cselect_b32 s{sTMP}, {wmask[k]:#x}, 0"); a(f"s_xor_b32 s{sOF}, s{sOF}, s{sTMP}")
    a(f"s_mov_b32 s{sOF0}, s{sOF}")
    def lanes():
        a(f"v_lshrrev_b32 v{vT2}, 6, v0"); a(f"v_and_b32 v{vL}, 63, v0")
        a(f"v_lshrrev_b32 v{vSL}, 4, v{vL}"); a(f"v_bfe_u32 v{vBK}, v{vL}, 2, 2")
        if swave: a(f"v_mov_b32 v{vVW}, 0")
        else: a(f"v_lshrrev_b32 v{vVW}, 1, v{vT2}"); a(f"v_lshlrev_b32 v{vVW}, {wb[1]}, v{vVW}"); a(f"v_and_b32 v{vT}, 1, v{vT2}"); a(f"v_lshl_add_u32 v{vVW}, v{vT}, {wb[0]}, v{vVW}")
        a(f"v_lshl_add_u32 v{vT}, v{vSL}, 4, v{vVW}"); a(f"v_lshl_add_u32 v{vT}, v{vBK}, 8, v{vT}"); a(f"v_and_b32 v{vE}, 2, v{vL}")
    if compact:
        C("K lane offset (128-byte rows): thread-id bits 0..7 -> address bits 6, key-group bit, 8, 9, 4, 5, wave bits")
        grp = {}
        for tb, ab in enumerate((6, ib[0], 8, 9, 4, 5) + (() if swave else wb)): grp[ab-tb] = grp.get(ab-tb, 0) | (1 << tb)
        a(f"v_and_b32 v{vKH}, {grp.pop(0):#x}, v0")
        for d, m in grp.items(): a(f"v_and_b32 v{vT}, {m:#x}, v0"); a(f"v_lshl_or_b32 v{vKH}, v{vT}, {d}, v{vKH}")
    else:
        lanes()
        a(f"v_and_b32 v{vKH}, 1, v{vL}"); a(f"v_lshl_add_u32 v{vKH}, v{vKH}, 6, v{vT}"); a(f"v_lshl_add_u32 v{vKH}, v{vE}, {ib[0]-1}, v{vKH}")
    a(f"s_lshl_b32 s{rK+2}, 1, 27"); a(f"s_mov_b32 s{rK+3}, 0x20000")
    if pfpos == 1: pfcode()
    a("s_waitcnt lgkmcnt(0)"); stamp()
    if tmap:
        a("s_load_dwordx16 s[80:95], s[14:15], 0"); a("s_waitcnt lgkmcnt(0)")
        for k in range(8):
            a(f"s_bitcmp1_b32 s2, {k}"); a(f"s_cselect_b32 s{sTMP if k else sOF}, s{80+k}, 0")
            if k: a(f"s_xor_b32 s{sOF}, s{sOF}, s{sTMP}")
        for k in range(2): a(f"s_bitcmp1_b32 s{sW}, {6+k}"); a(f"s_cselect_b32 s{sTMP}, s{93+k}, 0"); a(f"s_xor_b32 s{sOF}, s{sOF}, s{sTMP}")
    assert kseq[:first] == "h"*first
    for _ in range(first): issue()
    if pfpos == 2: pfcode()
    if compact: lanes()
    a(f"v_readfirstlane_b32 s{sW}, v{vT2}")
    a(f"s_lshl_b32 s{rV+2}, 1, 27"); a(f"s_mov_b32 s{rV+3}, 0x20000")
    a(f"v_lshl_add_u32 v{vKO}, v{vE}, {ib[1]-1}, v{vT}"); a(f"v_and_b32 v{vN}, 1, v{vL}"); a(f"v_lshl_add_u32 v{vKO}, v{vN}, {ib[0]}, v{vKO}")
    a(f"v_and_b32 v{vE}, 3, v{vL}"); a(f"v_and_b32 v{vN}, 15, v{vL}")
    a(f"v_lshlrev_b32 v{vVO}, 4, v{vL}"); a(f"v_add_u32 v{vVW}, v{vVW}, v{vVO}")
    C("stage 1: 120 blocks of 64 columns x 2 row halves; cb = (wg&7)*30 + j for j < 30, block cb>>1, half cb&1")
    a(f"s_mul_i32 s{sCB}, s{sKVH}, 30"); a(f"s_add_u32 s{sCB}, s{sCB}, s{sJ}")
    a(f"s_movk_i32 s{sCOL}, 184"); a(f"s_cmp_lt_u32 s{sCB}, s{sCOL}"); a(f"s_cselect_b32 s{sCOL}, 128, s{sCOL}")
    a(f"s_cselect_b64 {sr(rW1,2)}, {sr(sG,2)}, {sr(sU,2)}")
    a(f"s_cmp_lt_u32 s{sCB}, 128"); a(f"s_cselect_b32 s{sCOL}, 0, s{sCOL}")
    a(f"s_cselect_b64 {sr(rW1,2)}, {sr(sWQ,2)}, {sr(rW1,2)}")
    a(f"s_movk_i32 s{sSTR}, 3584"); a(f"s_cselect_b32 s{sSTR}, 8192, s{sSTR}")
    a(f"s_sub_u32 s{sCOL}, s{sCB}, s{sCOL}"); a(f"s_lshr_b32 s{sCOL}, s{sCOL}, 1"); a(f"s_lshl_b32 s{sCOL}, s{sCOL}, 7")
    a(f"s_and_b32 s{sTMP2}, s{sCB}, 1"); a(f"s_lshl_b32 s{sTMP2}, s{sTMP2}, 2"); a(f"s_add_u32 s{sTMP2}, s{sTMP2}, s{sW}"); a(f"s_lshl_b32 s{sTMP2}, s{sTMP2}, 6")
    a(f"s_mul_i32 s{sTMP}, s{sTMP2}, s{sSTR}"); a(f"s_add_u32 s{sCOL}, s{sCOL}, s{sTMP}")
    a(f"v_lshrrev_b32 v{vT2}, 3, v{vL}")
    a(f"s_lshl_b32 s{sTMP2}, s{sTMP2}, 1"); a(f"v_lshl_add_u32 v{vGO}, v{vT2}, 4, s{sTMP2}")
    a(f"s_lshl_b32 s{sTMP}, s{sSTR}, 3")
    a(f"v_mul_u32_u24 v{vGM}, s{sTMP}, v{vT2}"); a(f"v_and_b32 v{vT}, 7, v{vL}"); a(f"v_lshl_add_u32 v{vGM}, v{vT}, 4, v{vGM}")
    a(f"v_mov_b32 v{vNM}, {E_OFF}")
    a(f"s_mov_b32 s{rW1+3}, 0x20000")
    a(f"s_lshl_b32 s{rW1+2}, s{sSTR}, 9"); a(f"s_cmp_lt_u32 s{sJ}, 30"); a(f"s_cselect_b32 s{rW1+2}, s{rW1+2}, 0")
    vm("x", f"global_load_dword v{vNM}, v{vNM}, {sr(sWS,2)} sc1")
    vm("x", f"global_load_dwordx4 {vr(vSS,4)}, v{vVO}, {sr(sX,2)}")
    vm("x", f"global_load_dwordx4 {vr(vTT,4)}, v{vGO}, {sr(sX,2)}")
    if atom:
        C("wave 0 of the producers of gate blocks 0-3 (half 0) zeroes the output accumulators of column group 0-3; the stores are older than")
        C("its weight loads, hence complete before it publishes g, and every atomic add below is ordered after that hand-off")
        a(f"s_and_b32 s{sTMP}, s{sCB}, 0xf9"); a(f"s_lshl_b32 s{sTMP2}, s{sW}, 8"); a(f"s_or_b32 s{sTMP}, s{sTMP}, s{sTMP2}"); a(f"s_cmpk_lg_u32 s{sTMP}, 128"); a("s_cbranch_scc1 L_noinit")
        a(f"s_lshl_b32 s{sTMP}, s{sCB}, 12"); a(f"s_add_u32 s{sTMP}, s{sTMP}, {(S_OFF - (128 << 12)) & 0xffffffff:#x}")
        a(f"v_lshrrev_b32 v{vA1}, 2, v{vL}"); a(f"v_lshlrev_b32 v{vA1}, 8, v{vA1}"); a(f"v_lshl_add_u32 v{vA1}, v{vE}, 4, v{vA1}"); a(f"v_add_u32 v{vA1}, s{sTMP}, v{vA1}")
        a(f"v_add_u32 v{vA1+1}, 0x1000, v{vA1}")
        for r in range(4): a(f"v_mov_b32 v{vXX+r}, 0")
        a(f"global_store_dwordx4 v{vA1}, {vr(vXX,4)}, {sr(sWS,2)} sc1"); a(f"global_store_dwordx4 v{vA1+1}, {vr(vXX,4)}, {sr(sWS,2)} sc1")
        a("L_noinit:")
    if xr:
        C("wave 0 of the producer of gate block k (half 0) zeroes arrival counter k (block 27: counters 27-31), ordered like the accumulators")
        a(f"s_sub_u32 s{sTMP}, s{sCB}, 128"); a(f"s_and_b32 s{sTMP2}, s{sTMP}, 1"); a(f"s_or_b32 s{sTMP2}, s{sTMP2}, s{sW}"); a(f"s_cmp_lg_u32 s{sTMP2}, 0"); a("s_cbranch_scc1 L_noinit2")
        a(f"s_cmp_ge_u32 s{sTMP}, 56"); a("s_cbranch_scc1 L_noinit2")
        a(f"s_cmp_ge_u32 s{sJ}, 30"); a("s_cbranch_scc1 L_noinit2")
        a(f"s_cmp_eq_u32 s{sTMP}, 54"); a("s_cselect_b64 exec, 31, 1")
        a(f"s_mul_i32 s{sTMP}, s{sTMP}, {CST//2}"); a(f"s_add_u32 s{sTMP}, s{sTMP}, {C_OFF}")
        a(f"v_mul_u32_u24 v{vA1+2}, {CST}, v{vL}"); a(f"v_add_u32 v{vA1+2}, s{sTMP}, v{vA1+2}"); a(f"v_mov_b32 v{vA1+3}, 0")
        a(f"global_store_dword v{vA1+2}, v{vA1+3}, {sr(sWS,2)} sc1"); a("s_mov_b64 exec, -1")
        a("L_noinit2:")
    for i in range(8):
        vm(("w1", i), f"buffer_load_dwordx4 {vr(vW+4*i,4)}, v{vGM}, {sr(rW1,4)}, s{sCOL} offen {wf}")
        if i < 7: a(f"s_add_u32 s{sCOL}, s{sCOL}, s{sSTR}")
    C("w_down tile: rows j*64 + 16w + 2*(l>>3) + i, columns (wg&7)*64 + 8*(l&7); j >= 28 lies outside the buffer and reads 0")
    a(f"s_mov_b64 {sr(rDN,2)}, {sr(sDN,2)}"); a(f"s_mov_b32 s{rDN+2}, {1792*1024}"); a(f"s_mov_b32 s{rDN+3}, 0x20000")
    a(f"s_lshl_b32 s{sSTR}, s{sJ}, 2"); a(f"s_add_u32 s{sSTR}, s{sSTR}, s{sW}")
    a(f"s_lshl_b32 s{sTMP}, s{sSTR}, 14"); a(f"s_lshl_b32 s{sTMP2}, s{sKVH}, 7"); a(f"s_add_u32 s{sTMP}, s{sTMP}, s{sTMP2}")
    a(f"v_lshlrev_b32 v{vT}, 4, v{vT}"); a(f"v_lshl_add_u32 v{vT}, v{vT2}, 11, v{vT}")
    for i in range(2): vm(("dn", i), f"buffer_load_dwordx4 {vr(vD+4*i,4)}, v{vT}, {sr(rDN,4)}, s{sTMP} offen offset:{1024*i} {wf}")
    issue()
    for k, m in ((sM1, 0x22222222), (sM2, 0x44444444), (sM3, 0x88888888), (sMO, 0xaaaaaaaa)):
        a(f"s_mov_b32 s{k}, {m:#x}"); a(f"s_mov_b32 s{k+1}, s{k}")
    a(f"s_mov_b32 s{sHI}, 0xffff0000"); a(f"s_mov_b32 s{sSC}, {f2u(128**-0.5):#x}"); a(f"s_mov_b32 s{sL2E}, {f2u(L2E):#x}")
    a(f"s_mov_b32 s{sTMO}, {tmo}")
    a(f"s_mov_b64 {sr(rWS,2)}, {sr(sWS,2)}"); a(f"s_mov_b32 s{rWS+2}, 0x20000000"); a(f"s_mov_b32 s{rWS+3}, 0x20000")
    C("masks that place one bf16 at element l&3 (K=16 MFMA) / l&7 (K=32 MFMA) of an A operand")
    a(f"v_and_b32 v{vT}, 1, v{vL}"); a(f"v_lshlrev_b32 v{vT}, 4, v{vT}"); a(f"v_mov_b32 v{vM1}, 0xffff")
    a(f"v_lshlrev_b32 v{vT2}, v{vT}, v{vM1}")
    a(f"v_cmp_gt_u32 vcc, 2, v{vE}"); a(f"v_cndmask_b32 v{vM0}, 0, v{vT2}, vcc"); a(f"v_xor_b32 v{vM1}, v{vT2}, v{vM0}")
    a(f"v_bfe_u32 v{vT}, v{vL}, 1, 2")
    for t in range(4):
        a(f"v_cmp_eq_u32 vcc, {t}, v{vT}"); a(f"v_cndmask_b32 v{vMK+t}, 0, v{vT2}, vcc")
    wait("x")
    a(f"v_readfirstlane_b32 s{sT}, v{vNM}")
    C("LayerNorm (bf16 rounding after every step, as the reference does)")
    F = vF
    unpack(F, vSS, 4)
    a(f"v_add_f32 v{vA0}, v{F}, v{F+1}")
    for i in range(2, 8): a(f"v_add_f32 v{vA0}, v{vA0}, v{F+i}")
    rowreduce("v_add_f32", (vA0,)); allreduce_rows("v_add_f32", vA0, vT)
    a(f"v_mul_f32 v{vA0}, {f2u(1/512):#x}, v{vA0}")
    for i in range(8): a(f"v_sub_f32 v{F+i}, v{F+i}, v{vA0}")
    a(f"v_mul_f32 v{vA1}, v{F}, v{F}")
    for i in range(1, 8): a(f"v_fmac_f32 v{vA1}, v{F+i}, v{F+i}")
    rowreduce("v_add_f32", (vA1,)); allreduce_rows("v_add_f32", vA1, vT)
    a(f"v_mul_f32 v{vA1}, {f2u(1/512):#x}, v{vA1}")
    a(f"v_cvt_pk_bf16_f32 v{vA0}, v{vA0}, v{vA1}")
    a(f"v_and_b32 v{vA1}, s{sHI}, v{vA0}"); a(f"v_lshlrev_b32 v{vA0}, 16, v{vA0}")
    a(f"v_add_f32 v{vA1}, {f2u(1e-5):#x}, v{vA1}"); rbf(vA1)
    a(f"v_sqrt_f32 v{vA1}, v{vA1}"); rbf(vA1)
    a(f"v_rcp_f32 v{vA1}, v{vA1}")
    unpack(F, vTT, 4)
    for i in range(8): a(f"v_sub_f32 v{F+i}, v{F+i}, v{vA0}")
    for i in range(4): a(f"v_cvt_pk_bf16_f32 v{vTT+i}, v{F+2*i}, v{F+2*i+1}")
    unpack(F, vTT, 4)
    for i in range(8): a(f"v_mul_f32 v{F+i}, v{F+i}, v{vA1}")
    for i in range(8): a(f"v_cvt_pk_bf16_f32 v{F+i}, v{F+i}, v{F+i}")
    for i in range(8):
        for t in range(4): a(f"v_and_b32 v{vS+4*i+t}, v{F+i}, v{vMK+t}")
    while nxt[0] < pre: issue()
    C("stage-1 GEMV: 64 rows x 64 columns per wave")
    for i in range(8):
        wait(("w1", i))
        a(f"v_mfma_f32_16x16x32_bf16 {vr(vA0,4)}, {vr(vS+4*i,4)}, {vr(vW+4*i,4)}, {'0' if i == 0 else vr(vA0,4)}")
    C("tag of this launch = epoch word + 0x01010101 (every byte differs from the previous launch's tag)")
    a(f"s_add_u32 s{sT}, s{sT}, 0x01010101")
    for k in range(4): a(f"s_bfe_u32 s{sTB+k}, s{sT}, {(8<<16)|(8*k):#x}")
    for k in range(4): a(f"s_and_b32 s{sTN[k]}, s{sTB+k}, {AM}")
    a(f"v_mov_b32 v{vFF}, 0xff")
    C("lanes with (l>>5) == ((l>>3)&1) hold columns 8*(l&7) + 4*((l>>4)&1) + r of row group l>>5")
    a(f"s_lshl_b32 s{sTMP}, s{sW}, 9")
    a(f"v_and_b32 v{vT}, 7, v{vL}"); a(f"v_lshl_add_u32 v{vT}, v{vT}, 5, s{sTMP}"); a(f"v_and_b32 v{vT2}, 16, v{vL}"); a(f"v_add_u32 v{vT}, v{vT}, v{vT2}")
    a(f"v_and_b32 v{vT2}, 32, v{vL}"); a(f"v_lshl_add_u32 v{vDGA}, v{vT2}, 3, v{vT}")
    gemv_store(L_S1)
    a("s_waitcnt lgkmcnt(0)"); a("s_barrier")
    only(0, "L_pub1_done")
    a(f"s_cmp_eq_u32 s{rW1+2}, 0"); a("s_cbranch_scc1 L_pub1_done")
    a("s_mov_b64 exec, 0xffff")
    a(f"s_lshr_b32 s{sTMP}, s{sCB}, 1"); a(f"s_lshl_b32 s{sTMP}, s{sTMP}, 8"); a(f"s_and_b32 s{sTMP2}, s{sCB}, 1"); a(f"s_mul_i32 s{sTMP2}, s{sTMP2}, {HALF}")
    a(f"s_add_u32 s{sTMP}, s{sTMP}, s{sTMP2}"); a(f"s_add_u32 s{sTMP}, s{sTMP}, {A1_OFF}")
    gemv_reduce(L_S1, vW)
    a(f"v_mov_b32 v{vT}, {AM}")
    for r in range(4): a(f"v_add_u32 v{vW+r}, {(AM+1)//2}, v{vW+r}")
    for r in range(4): a(f"v_bfi_b32 v{vA0+r}, v{vT}, s{sTB+r}, v{vW+r}")
    a(f"buffer_store_dwordx4 {vr(vA0,4)}, v{vVO}, {WS}, s{sTMP} offen sc1")
    a("s_mov_b64 exec, -1")
    a("L_pub1_done:")
    C("wave 1 posts {tag, XCD id}; a workgroup that later reads its own value from all 32 members of its group")
    C("knows that they share one L2 and may hand data over with plain stores; otherwise it writes through (sc1)")
    only(1, "L_nox")
    a(f"s_getreg_b32 s{sTMP}, hwreg(HW_REG_XCC_ID, 0, 4)"); a(f"s_lshl_b32 s{sXV}, s{sT}, 4"); a(f"s_or_b32 s{sXV}, s{sXV}, s{sTMP}")
    a(f"s_lshl_b32 s{sTMP}, s{sKVH}, 9"); a(f"s_lshl_b32 s{sTMP2}, s{sJ}, 2"); a(f"s_add_u32 s{sTMP}, s{sTMP}, s{sTMP2}"); a(f"s_add_u32 s{sTMP}, s{sTMP}, {X_OFF}")
    a(f"v_mov_b32 v{vT}, s{sXV}")
    a("s_mov_b64 exec, 1"); a(f"buffer_store_dword v{vT}, v{vVO}, {WS}, s{sTMP} offen"); a("s_mov_b64 exec, -1")
    a("L_nox:")
    a("s_barrier")
    stamp()
    issue(); issue()
    C("addresses used by the later hand-offs")
    a(f"v_and_b32 v{vT}, 7, v{vL}"); a(f"v_xor_b32 v{vT}, v{vT}, v{vSL}"); a(f"v_lshlrev_b32 v{vT}, 4, v{vT}")
    a(f"v_lshl_add_u32 v{vOAW}, v{vN}, 7, v{vT}"); a(f"s_lshl_b32 s{sTMP}, s{sW}, 11"); a(f"v_add_u32 v{vOAW}, s{sTMP}, v{vOAW}"); a(f"v_xor_b32 v{vOAW1}, 64, v{vOAW}")
    a(f"v_lshrrev_b32 v{vT2}, 3, v{vL}"); a(f"v_xor_b32 v{vOAR}, v{vT2}, v{vL}"); a(f"v_and_b32 v{vOAR}, 7, v{vOAR}"); a(f"v_lshlrev_b32 v{vOAR}, 4, v{vOAR}")
    a(f"v_lshl_add_u32 v{vOAR}, v{vT2}, 7, v{vOAR}")
    a(f"s_lshl_b32 s{sPM}, s{sKVH}, 5"); a(f"s_add_u32 s{sPM}, s{sPM}, s{sJ}")
    a(f"s_lshl_b32 s{sPP}, s{sPM}, 11"); a(f"s_add_u32 s{sPP}, s{sPP}, {P_OFF}")
    if atom:
        if xo:
            C("output columns of this wave (lanes 0-31): 64*(j&7) + 16w + (l>>1); accumulator pair {sum, count} at 64-byte blocks spread over the channels")
            a(f"s_and_b32 s{sTMP}, s{sSTR}, 31")
            a(f"s_lshl_b32 s{sPS}, s{sTMP}, 10"); a(f"s_add_u32 s{sPS}, s{sPS}, {S_OFF}")
            a(f"s_lshr_b32 s{sGG}, s{sTMP}, 1"); a(f"s_mul_i32 s{sGG}, s{sGG}, {GST}"); a(f"s_and_b32 s{sTMP2}, s{sW}, 1"); a(f"s_lshl_b32 s{sTMP2}, s{sTMP2}, 6"); a(f"s_add_u32 s{sGG}, s{sGG}, s{sTMP2}"); a(f"s_add_u32 s{sGG}, s{sGG}, {G_OFF}")
            a(f"v_and_b32 v{vAA}, 7, v{vL}"); a(f"v_lshlrev_b32 v{vAA}, 3, v{vAA}"); a(f"v_lshl_add_u32 v{vAA}, v{vT2}, 8, v{vAA}")
            a(f"v_and_b32 v{vT}, 30, v{vL}"); a(f"v_lshlrev_b32 v{vGA}, 1, v{vT}")
            a(f"s_lshl_b32 s{sTMP}, s{sTMP}, 5"); a(f"v_add_u32 v{vXO+1}, s{sTMP}, v{vT}")
            C("LDS read address: odd lanes take partials 4-7")
            a(f"s_lshl_b32 s{sTMP}, s{sW}, 6"); a(f"s_add_u32 s{sTMP}, s{sTMP}, {L_SR}"); a(f"v_add_u32 v{vSRR}, s{sTMP}, v{vGA}")
            a(f"v_and_b32 v{vT}, 1, v{vL}"); a(f"v_lshl_add_u32 v{vSRR}, v{vT}, 10, v{vSRR}")
        else:
            C("output columns of this wave: 128*(j&3) + 32w + (l>>1); accumulator pair {sum, count} at 64-byte blocks spread over the channels")
            a(f"s_and_b32 s{sTMP}, s{sSTR}, 15")
            a(f"s_lshl_b32 s{sPS}, s{sTMP}, 11"); a(f"s_add_u32 s{sPS}, s{sPS}, {S_OFF}")
            a(f"s_mul_i32 s{sGG}, s{sTMP}, {GST}"); a(f"s_add_u32 s{sGG}, s{sGG}, {G_OFF}")
            a(f"v_and_b32 v{vAA}, 7, v{vL}"); a(f"v_lshlrev_b32 v{vAA}, 3, v{vAA}"); a(f"v_lshl_add_u32 v{vAA}, v{vT2}, 8, v{vAA}")
            a(f"v_and_b32 v{vT}, 62, v{vL}"); a(f"v_lshlrev_b32 v{vGA}, 1, v{vT}")
            a(f"s_lshl_b32 s{sTMP}, s{sTMP}, 6"); a(f"v_add_u32 v{vXO+1}, s{sTMP}, v{vT}")
            a(f"s_lshl_b32 s{sTMP}, s{sW}, 7"); a(f"s_add_u32 s{sTMP}, s{sTMP}, {L_SR}"); a(f"v_add_u32 v{vSRR}, s{sTMP}, v{vGA}")
    else:
        a(f"s_lshl_b32 s{sPS}, s{sPM}, 9"); a(f"s_add_u32 s{sPS}, s{sPS}, {S_OFF}")
    a(f"s_lshl_b32 s{sPM}, s{sPM}, 6"); a(f"s_add_u32 s{sPM}, s{sPM}, {ML_OFF}")
    a(f"s_lshl_b32 s{sTMP}, s{sW}, 2"); a(f"s_add_u32 s{sTMP}, s{sTMP}, {L_ML}"); a(f"v_lshl_add_u32 v{vMLW}, v{vBK}, 4, s{sTMP}"); a(f"v_lshlrev_b32 v{vMLR}, 4, v{vE}")
    a(f"v_lshl_add_u32 v{vSRW}, v{vN}, 1, v{vSL}"); a(f"v_lshlrev_b32 v{vSRW}, 4, v{vSRW}"); a(f"s_lshl_b32 s{sTMP}, s{sW}, 9"); a(f"v_add_u32 v{vSRW}, s{sTMP}, v{vSRW}")
    a(f"v_lshlrev_b32 v{vL2K}, 11, v{vL}")
    if xo:
        C("wo tile: instruction i = head i, rows d = 4*((l>>3)&1) + (0,2,1,3)[l>>4], columns 8*(l&7)")
        a(f"v_lshrrev_b32 v{vT}, 5, v{vL}"); a(f"v_and_b32 v{vWOO}, 16, v{vL}"); a(f"v_lshlrev_b32 v{vWOO}, 7, v{vWOO}"); a(f"v_lshl_add_u32 v{vWOO}, v{vT}, 10, v{vWOO}")
        a(f"v_and_b32 v{vT}, 8, v{vL}"); a(f"v_lshl_add_u32 v{vWOO}, v{vT}, 9, v{vWOO}"); a(f"v_and_b32 v{vT}, 7, v{vL}"); a(f"v_lshl_add_u32 v{vWOO}, v{vT}, 4, v{vWOO}")
    else:
        C("wo tile: instruction i = head i, lane row (l>>4) = d offset (0,2,1,3)")
        a(f"v_lshrrev_b32 v{vT}, 5, v{vL}"); a(f"v_and_b32 v{vWOO}, 16, v{vL}"); a(f"v_lshlrev_b32 v{vWOO}, 7, v{vWOO}"); a(f"v_lshl_add_u32 v{vWOO}, v{vT}, 10, v{vWOO}"); a(f"v_lshl_add_u32 v{vWOO}, v{vN}, 4, v{vWOO}")
    if atom:
        C("wave 2 of workgroups 30 and 31 of the group owns 32 columns of the GLU gate: line f = (wg&7)*2 + (j&1)")
        a(f"s_lshl_b32 s{sF}, s{sKVH}, 1"); a(f"s_and_b32 s{sTMP}, s{sJ}, 1"); a(f"s_add_u32 s{sF}, s{sF}, s{sTMP}")
        a(f"s_lshl_b32 s{sRG}, s{sF}, 7"); a(f"s_add_u32 s{sRG}, s{sRG}, {Y_OFF}")
        a(f"v_and_b32 v{vT}, 7, v{vL}"); a(f"v_lshlrev_b32 v{vT}, 4, v{vT}"); a(f"v_lshl_add_u32 v{vL2K}, v{vT2}, 11, v{vT}")
        a(f"s_cmp_ge_u32 s{sJ}, 30"); a(f"s_cselect_b32 s{sF}, s{sF}, 999")
        a(f"s_cmp_eq_u32 s{sW}, 2"); a(f"s_cselect_b32 s{sF}, s{sF}, 999")
    else:
        C("wave 2 of workgroups with j >= 16 owns columns 4f..4f+3 of the GLU gate, f = (wg&7)*16 + (j&15)")
        a(f"s_lshl_b32 s{sF}, s{sKVH}, 4"); a(f"s_and_b32 s{sTMP}, s{sJ}, 15"); a(f"s_add_u32 s{sF}, s{sF}, s{sTMP}")
        if not atom:
            a(f"v_and_b32 v{vXO+1}, 1, v{vSL}"); a(f"v_lshl_add_u32 v{vT}, v{vXO+1}, 1, v{vT}"); a(f"s_lshl_b32 s{sTMP}, s{sF}, 2"); a(f"v_add_lshl_u32 v{vXO+1}, v{vT}, s{sTMP}, 1")
        a(f"s_lshl_b32 s{sRG}, s{sF}, 4"); a(f"s_add_u32 s{sRG}, s{sRG}, {Y_OFF}")
        a(f"s_cmp_ge_u32 s{sJ}, 16"); a(f"s_cselect_b32 s{sF}, s{sF}, 999")
        a(f"s_cmp_eq_u32 s{sW}, 2"); a(f"s_cselect_b32 s{sF}, s{sF}, 999")
    while nxt[0] < qpos: issue()
    C("gather: wave w sums, rounds and shares dims 32w..32w+31 of q (MFMA B layout, head = (l>>2)&3); plus this wave's g / u rows")
    a(f"v_lshlrev_b32 v{vGO}, 9, v{vBK}"); a(f"v_lshl_add_u32 v{vGO}, v{vSL}, 5, v{vGO}")
    a(f"s_lshl_b32 s{sCB}, s{sKVH}, 11"); a(f"s_lshl_b32 s{sTMP}, s{sW}, 7"); a(f"s_add_u32 s{sCB}, s{sCB}, s{sTMP}"); a(f"s_add_u32 s{sCB}, s{sCB}, {A1_OFF}"); a(f"s_add_u32 s{sGM}, s{sCB}, {HALF}")
    a(f"v_lshlrev_b32 v{vGM}, 3, v{vT2}")
    a(f"s_min_u32 s{sTMP}, s{sSTR}, 111")
    a(f"s_lshl_b32 s{sGO0}, s{sTMP}, 6"); a(f"s_add_u32 s{sGO0}, s{sGO0}, {A1_OFF + 4096*4}"); a(f"s_add_u32 s{sGO1}, s{sGO0}, {1792*4}")
    a(f"s_add_u32 s{sA}, s{sGO0}, {HALF}"); a(f"s_add_u32 s{sB}, s{sGO1}, {HALF}")
    def qloads(fl, e):
        for half, so in enumerate((sCB, sGM)):
            for h in range(2): e("q", f"buffer_load_dwordx4 {vr(vW+8*half+4*h,4)}, v{vGO}, {WS}, s{so} offen offset:{16*h} {fl}")
        for k, so in enumerate((sGO0, sGO1, sA, sB)): e("q", f"buffer_load_dwordx2 {vr(vGU+2*k,2)}, v{vGM}, {WS}, s{so} offen {fl}")
    raw = lambda tag, text: a(text)
    qloads("", vm)
    while nxt[0] < NS: issue()
    a(f"v_and_b32 v{vT}, 8, v{vL}"); a(f"v_lshlrev_b32 v{vT}, 1, v{vT}"); a(f"v_lshrrev_b32 v{vT}, v{vT}, s{sT}")
    a(f"v_and_b32 v{vTA}, {AM}, v{vT}"); a(f"v_bfe_u32 v{vTB}, v{vT}, 8, {abits}")
    a(f"s_lshl_b32 s{sTMP}, s{sW}, 10"); a(f"v_add_u32 v{vXG}, s{sTMP}, v{vVO}")
    wait("q")
    a("L_qchk:")
    for i in range(16): a(f"v_xor_b32 v{vW+i}, s{sTN[i&3]}, v{vW+i}")
    for i in range(8): a(f"v_xor_b32 v{vGU+i}, v{vTB if i&1 else vTA}, v{vGU+i}")
    a(f"v_or_b32 v{vT}, v{vW}, v{vW+1}")
    for i in range(2, 16, 2): a(f"v_or3_b32 v{vT}, v{vT}, v{vW+i}, v{vW+i+1}")
    for i in range(0, 8, 2): a(f"v_or3_b32 v{vT}, v{vT}, v{vGU+i}, v{vGU+i+1}")
    a(f"v_and_b32 v{vT}, {AM}, v{vT}")
    a(f"v_cmp_ne_u32 vcc, 0, v{vT}")
    retry("q", lambda: qloads("sc1", raw))
    add4(vW, vW, vW+8); add4(vW+4, vW+4, vW+12)
    for i in range(4): a(f"v_cvt_pk_bf16_f32 v{vW+i}, v{vW+2*i}, v{vW+2*i+1}")
    a(f"ds_write_b128 v{vXG}, {vr(vW,4)} offset:{L_Q}")
    add4(vGU, vGU, vGU+4)
    for i in range(4): a(f"v_cvt_pk_bf16_f32 v{vGU+i}, v{vGU+i}, v{vGU+i}")
    a("s_waitcnt lgkmcnt(0)"); a("s_barrier")
    for jj in range(4): a(f"ds_read_b128 {vr(vQ+4*jj,4)}, v{vVO} offset:{L_Q+1024*jj}")
    a("s_waitcnt lgkmcnt(0)")
    for b in range(2):
        for t in range(4): a(f"v_cndmask_b32 v{vQH+4*b+t}, v{vQ+8*b+t}, v{vQ+8*b+4+t}, {sr(sMO,2)}")
    stamp()
    C("pass 1: scores.  lane l keeps s[key 4*(l&3) + (l>>4) of the tile][head (l>>2)&3], one register per tile")
    for t in range(NT):
        b = 16*slot[t]
        wait((t, 3))
        if kseq[t] == "r":
            for i in range(4): a(f"v_mfma_f32_16x16x32_bf16 {vr(vSS,4)}, {ar(b+4*i,4)}, {vr(vQ+4*i,4)}, {'0' if i == 0 else vr(vSS,4)}")
        else:
            for i in (0, 2, 1, 3): a(f"v_mfma_f32_16x16x32_bf16 {vr(vSS+4*(i>>1),4)}, {ar(b+4*i,4)}, {vr(vQH+4*(i&1),4)}, {'0' if i&1 == 0 else vr(vSS+4*(i>>1),4)}")
        free.append(slot[t])
        if nxt[0] - (t+1) < RD or t % (kskip+1) == 0: issue()
        x = vS + t
        if kseq[t] == "r": sel4(x, vSS, vSS+1, vSS+2, vSS+3)
        else:
            sel4(vT, vSS+2, vSS+1, vSS+6, vSS+5); sel4(x, vSS, vSS+3, vSS+4, vSS+7)
            a(f"v_add_f32_dpp v{x}, v{vT}, v{x} quad_perm:[1,0,3,2] {DP}")
        rbf(x); a(f"v_mul_f32 v{x}, s{sSC}, v{x}"); rbf(x)
        if t == 1: a(f"v_max_f32 v{vNM}, v{x-1}, v{x}")
        elif t % 2 == 1: a(f"v_max3_f32 v{vNM}, v{vNM}, v{x-1}, v{x}")
        if t == yt:
            C("GLU: h = bf16(bf16(sigmoid(g)) * u), partial y = h @ w_down tile")
            for i in range(4): a(f"v_and_b32 v{vGU+i}, s{sHI}, v{vGU+i}")
            for op in (f"v_mul_f32 v{{0}}, {f2u(-L2E):#x}, v{{0}}", "v_exp_f32 v{0}, v{0}", "v_add_f32 v{0}, 1.0, v{0}", "v_rcp_f32 v{0}, v{0}",
                       "v_cvt_pk_bf16_f32 v{0}, v{0}, v{0}", f"v_and_b32 v{{0}}, s{sHI}, v{{0}}", "v_mul_f32 v{0}, v{0}, v{1}", "v_cvt_pk_bf16_f32 v{0}, v{0}, v{0}"):
                for i in range(2): a(op.format(vGU+i, vGU+2+i))
            for i in range(2):
                for k in range(4): a(f"v_and_b32 v{vXX+4*i+k}, v{vGU+i}, v{vMK+k}")
            for i in range(2):
                wait(("dn", i)); a(f"v_mfma_f32_16x16x32_bf16 {vr(vA0,4)}, {vr(vXX+4*i,4)}, {vr(vD+4*i,4)}, {'0' if i == 0 else vr(vA0,4)}")
            C("gather addresses: (m,l) lane = (producer 4*(l>>4)+(l&3), head (l>>2)&3); o lane = (producer l>>2, head l&3)")
            if xo: a(f"v_lshrrev_b32 v{vGO}, 3, v{vL}"); a(f"v_lshlrev_b32 v{vGO}, 11, v{vGO}"); a(f"v_and_b32 v{vGM}, 7, v{vL}"); a(f"v_lshl_add_u32 v{vGO}, v{vGM}, 4, v{vGO}")
            else:
                a(f"v_lshrrev_b32 v{vGO}, 2, v{vL}"); a(f"v_lshlrev_b32 v{vGO}, 11, v{vGO}"); a(f"v_lshl_add_u32 v{vGO}, v{vE}, 4, v{vGO}")
            a(f"v_lshlrev_b32 v{vGM}, 4, v{vBK}"); a(f"v_lshl_add_u32 v{vGM}, v{vE}, 6, v{vGM}"); a(f"v_lshl_add_u32 v{vGM}, v{vSL}, 8, v{vGM}")
            if xo: a(f"s_and_b32 s{sTMP}, s{sJ}, 24"); a(f"s_lshl1_add_u32 s{sA}, s{sW}, s{sTMP}")
            else: a(f"s_and_b32 s{sTMP}, s{sJ}, 28"); a(f"s_add_u32 s{sA}, s{sTMP}, s{sW}")
            a(f"s_lshl_b32 s{sTMP}, s{sKVH}, 16"); a(f"s_lshl_b32 s{sTMP2}, s{sA}, 6"); a(f"s_add_u32 s{sGO0}, s{sTMP}, s{sTMP2}")
            a(f"s_add_u32 s{sGO0}, s{sGO0}, {P_OFF}"); a(f"s_add_u32 s{sGO1}, s{sGO0}, 0x8000")
            a(f"s_lshl_b32 s{sGM}, s{sKVH}, 11"); a(f"s_add_u32 s{sGM}, s{sGM}, {ML_OFF}")
            a(f"s_lshl_b32 s{sTMP}, s{sKVH}, 19"); a(f"s_lshl_b32 s{sTMP2}, s{sA}, 12"); a(f"s_add_u32 s{sCB}, s{sTMP}, s{sTMP2}")
            a(f"s_and_b32 s{sTMP}, s{sJ}, {7 if xo else 3}"); a(f"s_lshl_b32 s{sTMP}, s{sTMP}, {7 if xo else 8}"); a(f"s_add_u32 s{sCB}, s{sCB}, s{sTMP}")
            if xo: a(f"s_add_u32 s{sTN[0]}, s{sGO0}, 0x4000"); a(f"s_add_u32 s{sTN[1]}, s{sGO1}, 0x4000")
            a(f"s_mov_b64 {sr(rDN,2)}, {sr(sWO,2)}"); a(f"s_mov_b32 s{rDN+2}, {4096*1024}")
            gemv_store(L_Y)
        if t == xget:
            C("wave 1: lanes 0-31 read the group's XCD words, lanes 32-63 pull the progress-flag line into L2")
            only(1, "L_noxg")
            a(f"s_lshl_b32 s{sTMP}, s{sKVH}, 9"); a(f"s_add_u32 s{sTMP}, s{sTMP}, {X_OFF}"); a(f"v_lshlrev_b32 v{vT}, 2, v{vL}")
            if len(ctrl) > 1:
                a(f"v_min_u32 v{vT2}, {len(ctrl)}, v{vE}"); a(f"v_lshlrev_b32 v{vT2}, 7, v{vT2}"); a(f"v_cmp_gt_u32 vcc, 32, v{vL}"); a(f"v_cndmask_b32 v{vT}, v{vT2}, v{vT}, vcc")
            a(f"buffer_load_dword v{vXG}, v{vT}, {WS}, s{sTMP} offen {xfl}")
            a("L_noxg:"); xmark = len(Q)
        if t > xget and xmark is not None and done[0] > xmark:
            xmark = None
            only(1, "L_noxg2")
            a(f"v_cmp_ne_u32 vcc, s{sXV}, v{vXG}"); a("s_cmp_eq_u32 vcc_lo, 0"); a(f"s_cselect_b32 s{sTMP}, 1, 0")
            if force is not None: a(f"s_mov_b32 s{sTMP}, {force}")
            a(f"v_mov_b32 v{vT}, 0"); a(f"v_mov_b32 v{vT2}, s{sTMP}"); a(f"ds_write_b32 v{vT}, v{vT2} offset:{L_CF}")
            a("L_noxg2:")
    C("wave max per head, e = exp(s - max), wave sum")
    allreduce_quad("v_max_f32", vNM); allreduce_rows("v_max_f32", vNM, vT)
    a(f"v_mul_f32 v{vNM}, {f2u(-L2E):#x}, v{vNM}")
    for t0 in range(0, NT, 4):
        for t in range(t0, t0+4): a(f"v_fma_f32 v{vS+t}, v{vS+t}, s{sL2E}, v{vNM}")
        for t in range(t0, t0+4): a(f"v_exp_f32 v{vS+t}, v{vS+t}")
        if t0 == 0: a(f"v_add_f32 v{vLS}, v{vS}, v{vS+1}"); a(f"v_add_f32 v{vT2}, v{vS+2}, v{vS+3}")
        else:
            for t in range(t0, t0+4): a(f"v_add_f32 v{vLS if t&1 else vT2}, v{vLS if t&1 else vT2}, v{vS+t}")
    a(f"v_add_f32 v{vLS}, v{vLS}, v{vT2}")
    allreduce_quad("v_add_f32", vLS); allreduce_rows("v_add_f32", vLS, vT)
    C("wave 0 merges and publishes the four (-max, sum) pairs, wave 3 the y partial; the others hold their loads until the stores are out")
    a(f"ds_write2_b32 v{vMLW}, v{vNM}, v{vLS} offset0:0 offset1:16")
    a(f"v_lshlrev_b32 v{vTA}, 2, v{vL}"); a(f"v_mov_b32 v{vTB}, 1"); a(f"v_mov_b32 v{vT}, 0")
    a(f"ds_write_b32 v{vTA}, v{vT} offset:{L_CNT}")
    if not atom: a(f"ds_write_b32 v{vTA}, v{vT} offset:{L_CNT+256}")
    a("s_waitcnt lgkmcnt(0)"); a("s_barrier")
    a(f"ds_read_b32 v{vT2}, v{vT} offset:{L_CF}"); a("s_waitcnt lgkmcnt(0)"); a(f"v_readfirstlane_b32 s{sFAST}, v{vT2}")
    only(3, "L_noypub")
    a(f"s_cmp_ge_u32 s{sJ}, 28"); a("s_cbranch_scc1 L_noypub")
    a("s_mov_b64 exec, 0xffff")
    a(f"s_lshl_b32 s{sTMP}, s{sJ}, 11"); a(f"s_lshl_b32 s{sTMP2}, s{sKVH}, 8"); a(f"s_add_u32 s{sTMP}, s{sTMP}, s{sTMP2}"); a(f"s_add_u32 s{sTMP}, s{sTMP}, {Y_OFF}")
    gemv_reduce(L_Y, vW)
    for r in range(4): a(f"v_add_u32 v{vW+r}, 0x80, v{vW+r}")
    for r in range(4): a(f"v_bfi_b32 v{vW+r}, v{vFF}, s{sTB+r}, v{vW+r}")
    a(f"s_cmp_eq_u32 s{sFAST}, 0")
    store_group("y", f"buffer_store_dwordx4 {vr(vW,4)}, v{vVO}, {WS}, s{sTMP} offen")
    a("s_mov_b64 exec, -1")
    a("L_noypub:")
    only(0, "L_nomlpub")
    a(f"ds_read_b128 {vr(vSS,4)}, v{vMLR} offset:{L_ML}"); a(f"ds_read_b128 {vr(vTT,4)}, v{vMLR} offset:{L_ML+64}")
    a("s_waitcnt lgkmcnt(0)")
    a(f"v_min3_f32 v{vA1}, v{vSS}, v{vSS+1}, v{vSS+2}"); a(f"v_min_f32 v{vA1}, v{vA1}, v{vSS+3}")
    for w in range(4): a(f"v_sub_f32 v{vSS+w}, v{vA1}, v{vSS+w}")
    for w in range(4): a(f"v_exp_f32 v{vSS+w}, v{vSS+w}")
    a(f"v_mov_b32 v{vA1+2}, s{sT}"); a(f"v_mov_b32 v{vA1+3}, s{sT}")
    a(f"v_mul_f32 v{vA1+1}, v{vSS}, v{vTT}")
    for w in range(1, 4): a(f"v_fmac_f32 v{vA1+1}, v{vSS+w}, v{vTT+w}")
    a("s_mov_b64 exec, 0xf")
    a(f"s_cmp_eq_u32 s{sFAST}, 0")
    store_group("ml", f"buffer_store_dwordx4 {vr(vA1,4)}, v{vVO}, {WS}, s{sPM} offen")
    a("s_mov_b64 exec, -1")
    a("L_nomlpub:")
    a("s_barrier")
    stamp()
    if not atom:
        C("lanes of the s-partial store whose consumers are members of this (proven local) group")
        a(f"s_and_b32 s{sTMP}, s{sJ}, 3"); a(f"s_lshr_b32 s{sTMP2}, s{sKVH}, 1"); a(f"s_cmp_eq_u32 s{sTMP}, s{sTMP2}"); a(f"s_cselect_b32 s{sLOC}, s{sFAST}, 0")
        a(f"s_mul_i32 s{sLOC}, s{sLOC}, 0xffff"); a(f"s_and_b32 s{sTMP}, s{sKVH}, 1"); a(f"s_lshl_b32 s{sTMP}, s{sTMP}, 4"); a(f"s_lshl_b32 s{sLOC}, s{sLOC}, s{sTMP}")
    yload = f"buffer_load_dwordx4 {vr(vGS,4)}, v{vL2K}, {WS}, s{sRG} offen sc1"
    def yget_block():
        a(f"s_cmp_ge_u32 s{sF}, 128"); a("s_cbranch_scc1 L_noyget")
        if not atom: a(f"global_load_ushort v{vXO}, v{vXO+1}, {sr(sX,2)}")
        for r in range(4): a(f"v_mov_b32 v{vGS+r}, 0")
        a("s_mov_b64 exec, 0xfffffff"); a(yload); a("s_mov_b64 exec, -1")
        a("L_noyget:")
    def gate_block():
        C("gate owner: y = sum of the 28 row-group partials, g = bf16(silu(bf16(y))); rows of 16 lanes hold columns (0,2,1,3)")
        a(f"s_cmp_ge_u32 s{sF}, 128"); a("s_cbranch_scc1 L_nog")
        a("s_mov_b64 exec, 0xfffffff")
        a("L_ychk:")
        untag4(vGS)
        retry("y", lambda: a(yload))
        a("s_mov_b64 exec, -1")
        fold4(vGS); rowreduce("v_add_f32", (vGS,)); rbf(vGS)
        a(f"v_mul_f32 v{vT}, {f2u(-L2E):#x}, v{vGS}"); a(f"v_exp_f32 v{vT}, v{vT}"); a(f"v_add_f32 v{vT}, 1.0, v{vT}"); a(f"v_rcp_f32 v{vT}, v{vT}")
        a(f"v_mul_f32 v{vGS}, v{vGS}, v{vT}"); rbf(vGS)
        if atom:
            a(f"s_and_b32 s{sA}, s{sT}, 0xffff"); a(f"s_lshr_b32 s{sB}, s{sT}, 16")
            for r, ln in ((1, 32), (2, 16), (3, 48), (0, 0)):
                a(f"v_readlane_b32 s{sTMP}, v{vGS}, {ln}"); a(f"s_or_b32 s{sTMP}, s{sTMP}, s{sB if r&1 else sA}"); a(f"v_mov_b32 v{vGS+r}, s{sTMP}")
            a(f"s_add_u32 s{sRG}, s{sRG}, {G_OFF - Y_OFF}")
            a("s_mov_b64 exec, 1"); a(f"buffer_store_dwordx4 {vr(vGS,4)}, v{vVO}, {WS}, s{sRG} offen sc1"); a("s_mov_b64 exec, -1")
        else:
            a(f"v_lshlrev_b32 v{vXO}, 16, v{vXO}"); a(f"s_add_u32 s{sRG}, s{sRG}, {S_OFF - Y_OFF}")
        a("L_nog:")
    if atom:
        vY = vQ
        def yloads():
            for i in range(4):
                if i == 3: a("s_mov_b32 exec_hi, 0")
                a(f"s_add_u32 s{sTMP}, s{sRG}, {16384*i}"); a(f"buffer_load_dwordx4 {vr(vY+4*i,4)}, v{vL2K}, {WS}, s{sTMP} offen sc1")
            a("s_mov_b64 exec, -1")
        def yget_block():
            a(f"s_cmp_ge_u32 s{sF}, 128"); a("s_cbranch_scc1 L_noyget")
            for r in range(4): a(f"v_mov_b32 v{vY+12+r}, 0")
            yloads()
            a("L_noyget:")
        def gate_block():
            C("gate owner: y = sum of the 28 row-group partials, g = bf16(silu(bf16(y))), published as one line of {bf16, tag} words")
            a(f"s_cmp_ge_u32 s{sF}, 128"); a("s_cbranch_scc1 L_nog")
            a("L_ychk:")
            a("s_mov_b32 exec_hi, 0")
            for r in range(4): a(f"v_xor_b32 v{vY+12+r}, s{sTB+r}, v{vY+12+r}")
            a("s_mov_b64 exec, -1")
            for r in range(12): a(f"v_xor_b32 v{vY+r}, s{sTB+(r&3)}, v{vY+r}")
            a(f"v_or_b32 v{vT}, v{vY}, v{vY+1}")
            for r in range(2, 16, 2): a(f"v_or3_b32 v{vT}, v{vT}, v{vY+r}, v{vY+r+1}")
            a(f"v_and_b32 v{vT}, v{vFF}, v{vT}"); a(f"v_cmp_ne_u32 vcc, 0, v{vT}")
            retry("y", yloads)
            add4(vY, vY, vY+4); add4(vY+8, vY+8, vY+12); add4(vY, vY, vY+8)
            rowreduce("v_add_f32", [vY+r for r in range(4)], (8,))
            for sw in (16, 32):
                for r in range(4): a(f"v_mov_b32 v{vY+4+r}, v{vY+r}")
                for r in range(4): a(f"v_permlane{sw}_swap_b32 v{vY+r}, v{vY+4+r}")
                add4(vY, vY, vY+4)
            for op in ("v_cvt_pk_bf16_f32 v{0}, v{0}, v{0}", f"v_and_b32 v{{0}}, s{sHI}, v{{0}}", f"v_mul_f32 v{{1}}, {f2u(-L2E):#x}, v{{0}}", "v_exp_f32 v{1}, v{1}",
                       "v_add_f32 v{1}, 1.0, v{1}", "v_rcp_f32 v{1}, v{1}", "v_mul_f32 v{0}, v{0}, v{1}", "v_cvt_pk_bf16_f32 v{0}, v{0}, v{0}"):
                for r in range(4): a(op.format(vY+r, vY+4+r))
            a(f"s_and_b32 s{sA}, s{sT}, 0xffff"); a(f"s_lshr_b32 s{sB}, s{sT}, 16")
            for r in range(4): a(f"v_lshl_or_b32 v{vY+r}, v{vY+r}, 16, s{sB if r&1 else sA}")
            a(f"s_mul_i32 s{sTMP}, s{sF}, {GST}"); a(f"s_add_u32 s{sTMP}, s{sTMP}, {G_OFF}")
            a("s_mov_b64 exec, 0xff"); a(f"buffer_store_dwordx4 {vr(vY,4)}, v{vVO}, {WS}, s{sTMP} offen sc1"); a("s_mov_b64 exec, -1")
            a("L_nog:")
    while nxt[0] < NT + mpos: issue()
    if atom: yget_block()
    def mloads(fl, e):
        e("m", f"buffer_load_dwordx4 {vr(vW,4)}, v{vGM}, {WS}, s{sGM} offen {fl}")
        e("m", f"buffer_load_dwordx4 {vr(vW+4,4)}, v{vGM}, {WS}, s{sGM} offen offset:1024 {fl}")
    mloads("", vm)
    while nxt[0] < NT + NS: issue()
    wait("m")
    a("L_mchk:")
    a(f"v_xor_b32 v{vT}, s{sT}, v{vW+2}"); a(f"v_xor_b32 v{vT2}, s{sT}, v{vW+6}"); a(f"v_or_b32 v{vT}, v{vT}, v{vT2}")
    a(f"v_cmp_ne_u32 vcc, 0, v{vT}")
    retry("m", lambda: mloads("sc1", raw))
    C("row max M and row sum L over all 65536 keys; p = bf16(e * exp(m_wave - M) / L)")
    a(f"v_min_f32 v{vT2}, v{vW}, v{vW+4}")
    allreduce_quad("v_min_f32", vT2); allreduce_rows("v_min_f32", vT2, vT)
    a(f"v_sub_f32 v{vW}, v{vT2}, v{vW}"); a(f"v_sub_f32 v{vW+4}, v{vT2}, v{vW+4}"); a(f"v_sub_f32 v{vNM}, v{vT2}, v{vNM}")
    a(f"v_exp_f32 v{vW}, v{vW}"); a(f"v_exp_f32 v{vW+4}, v{vW+4}"); a(f"v_exp_f32 v{vNM}, v{vNM}")
    a(f"v_mul_f32 v{vLS}, v{vW}, v{vW+1}"); a(f"v_fmac_f32 v{vLS}, v{vW+4}, v{vW+5}")
    allreduce_quad("v_add_f32", vLS); allreduce_rows("v_add_f32", vLS, vT)
    a(f"v_rcp_f32 v{vLS}, v{vLS}")
    a(f"v_mul_f32 v{vNM}, v{vNM}, v{vLS}")
    stamp()
    C("pass 2: o[head l>>4][d = 8*(l&15) + 4a + r] += p * V  (A operand: p at element l&3 of row 4*head + (l&3))")
    def gcheck():
        C("gate value and x element of this lane's output column")
        a(f"v_and_b32 v{vT2}, 2, v{vL}"); a(f"v_lshlrev_b32 v{vT2}, 3, v{vT2}"); a(f"v_lshrrev_b32 v{vT2}, v{vT2}, s{sT}")
        a("L_gchk:")
        a(f"v_xor_b32 v{vT}, v{vT2}, v{vGV}"); a(f"v_and_b32 v{vT}, 0xffff, v{vT}"); a(f"v_cmp_ne_u32 vcc, 0, v{vT}")
        retry("g", lambda: a(f"buffer_load_dword v{vGV}, v{vGA}, {WS}, s{sGG} offen sc1"))
        a(f"v_and_b32 v{vGV}, s{sHI}, v{vGV}"); a(f"v_lshlrev_b32 v{vXO}, 16, v{vXO}")
        a(f"s_mov_b32 s{sA}, {f2u(32.0 if xo else 64.0):#x}")
    def pprep(t): a(f"v_mul_f32 v{vS+t}, v{vS+t}, v{vNM}"); a(f"v_cvt_pk_bf16_f32 v{vS+t}, v{vS+t}, v{vS+t}")
    pprep(0); ymark = None; gdone = not atom or gpos is None
    for t in range(NT):
        h = NT + t; b = 16*slot[h]
        if t+1 < NT: pprep(t+1)
        for i in range(4):
            for k, m in enumerate((vM0, vM1)): a(f"v_and_b32_dpp v{vXX+2*i+k}, v{vS+t}, v{m} quad_perm:[{i},{i},{i},{i}] {DP}")
        for i in range(4):
            wait((h, i if t == NT-1 else 3))
            for k, acc in enumerate((vA0, vA1)): a(f"v_mfma_f32_16x16x16_bf16 {vr(acc,4)}, {vr(vXX+2*i,2)}, {ar(b+4*i+2*k,2)}, {'0' if t+i == 0 else vr(acc,4)}")
        free.append(slot[h])
        if t == wot:
            assert nxt[0] == 2*NT
            for r in range(4):
                vm("wo", f"buffer_load_dwordx4 {vr(vWO+4*r,4)}, v{vWOO}, {sr(rDN,4)}, s{sCB} offen {wf}")
                if r < 3: a(f"s_add_u32 s{sCB}, s{sCB}, {128*1024}")
        if nxt[0] < 2*NT and (nxt[0] - (h+1) < RV or t % (vskip+1) == 0): issue()
        if atom:
            if t == gt: gate_block()
            if not gdone and "gg" in Q and done[0] > max(i for i, x in enumerate(Q) if x == "gg"):
                gdone = True
                gcheck()
        else:
            if t == yget: yget_block(); ymark = len(Q)
            elif ymark is not None and done[0] > ymark: gate_block(); ymark = None
    assert gdone and ymark is None and nxt[0] == 2*NT
    stamp()
    if notail:
        for k in range(nst[0], nst[0]+3): a(f"s_memrealtime s[{sST+2*k}:{sST+2*k+1}]")
        a("s_branch L_fin")
    if atom and gpos is None:
        a(f"global_load_ushort v{vXO}, v{vXO+1}, {sr(sX,2)}"); a(f"buffer_load_dword v{vGV}, v{vGA}, {WS}, s{sGG} offen")
        if otouch: a(f"global_load_ushort v{vXO+2}, v{vXO+1}, {sr(sOUT,2)}")
    C("the wave whose LDS ticket is the last one sums the four partial o and publishes them (128 granules of 4 d-values)")
    a(f"ds_write_b128 v{vOAW}, {vr(vA0,4)} offset:{L_OA}"); a(f"ds_write_b128 v{vOAW1}, {vr(vA1,4)} offset:{L_OA}")
    a(f"ds_add_rtn_u32 v{vT2}, v{vTA}, v{vTB} offset:{L_CNT}")
    for hf in range(2):
        for w in range(4): a(f"ds_read_b128 {vr(vW+16*hf+4*w,4)}, v{vOAR} offset:{L_OA+2048*w+1024*hf}")
    a(f"s_cmp_eq_u32 s{sFAST}, 0")
    a("s_waitcnt lgkmcnt(8)")
    a(f"v_cmp_eq_u32 vcc, 3, v{vT2}"); a("s_cbranch_vccz L_notlast")
    for hf in range(2):
        b = vW+16*hf
        for w in range(1, 4): a(f"s_waitcnt lgkmcnt({7-4*hf-w})"); add4(b, b, b+4*w)
        for r in range(4): a(f"v_bfi_b32 v{vA0+4*hf+r}, v{vFF}, s{sTB+r}, v{b+r}")
        store_group(f"p{hf}", f"buffer_store_dwordx4 {vr(vA0+4*hf,4)}, v{vVO}, {WS}, s{sPP} offen offset:{1024*hf}")
    a("L_notlast:")
    a("s_waitcnt lgkmcnt(0)")
    if amp:
        only(3, "L_noamp")
        a("s_memrealtime s[98:99]"); a("s_waitcnt lgkmcnt(0)")
        a(f"v_mov_b32 v{vSS}, s96"); a(f"v_mov_b32 v{vSS+1}, s98"); a(f"s_lshl_b32 s{sTMP}, s2, 3"); a(f"s_add_u32 s{sTMP}, s{sTMP}, {ST_OFF}")
        a("s_mov_b64 exec, 1"); a(f"buffer_store_dwordx2 {vr(vSS,2)}, v{vVO}, {WS}, s{sTMP} offen sc1"); a("s_mov_b64 exec, -1")
        a("L_noamp:")
    stamp()
    C("gather 4 heads x 4 d-values from the 32 splits, multiply with the wo tile (16 rows x 128 columns per wave)")
    O0, O1 = vW, vW+4
    if xo:
        a("L_apoll:")
        for k, so_ in enumerate((sGO0, sTN[0], sGO1, sTN[1])): a(f"buffer_load_dwordx4 {vr(vW+4*k,4)}, v{vGO}, {WS}, s{so_} offen sc1")
        for k in range(4):
            b = vW+4*k
            a(f"s_waitcnt vmcnt({3-k})")
            for i in range(4): a(f"v_xor_b32 v{b+i}, s{sTB+i}, v{b+i}")
            if k == 0: a(f"v_or_b32 v{vT}, v{b}, v{b+1}")
            else: a(f"v_or3_b32 v{vT}, v{vT}, v{b}, v{b+1}")
            a(f"v_or3_b32 v{vT}, v{vT}, v{b+2}, v{b+3}")
        a(f"v_and_b32 v{vT}, v{vFF}, v{vT}")
    else:
        a("L_apoll:")
        a(f"buffer_load_dwordx4 {vr(O0,4)}, v{vGO}, {WS}, s{sGO0} offen sc1")
        a(f"buffer_load_dwordx4 {vr(O1,4)}, v{vGO}, {WS}, s{sGO1} offen sc1")
        a("s_waitcnt vmcnt(1)")
        for i in range(4): a(f"v_xor_b32 v{O0+i}, s{sTB+i}, v{O0+i}")
        a(f"v_or3_b32 v{vT}, v{O0}, v{O0+1}, v{O0+2}")
        a("s_waitcnt vmcnt(0)")
        for i in range(4): a(f"v_xor_b32 v{O1+i}, s{sTB+i}, v{O1+i}")
        a(f"v_or3_b32 v{vT}, v{vT}, v{O0+3}, v{O1}"); a(f"v_or3_b32 v{vT2}, v{O1+1}, v{O1+2}, v{O1+3}")
        a(f"v_or_b32 v{vT}, v{vT}, v{vT2}"); a(f"v_and_b32 v{vT}, v{vFF}, v{vT}")
    a(f"v_cmp_ne_u32 vcc, 0, v{vT}"); a("s_cbranch_vccz L_aok")
    a("s_mov_b64 exec, vcc")
    timeout("L_apoll")
    a("L_aok:")
    a("s_mov_b64 exec, -1")
    stamp()
    if xo:
        add4(vW, vW, vW+4); add4(vW+8, vW+8, vW+12); add4(vW, vW, vW+8); fold4(O0); rowreduce("v_add_f32", (O0,), (8,))
        a(f"v_mov_b32_dpp v{O0}, v{O0} row_ror:4 row_mask:0xf bank_mask:0x6")
    else: add4(O0, O0, O1); fold4(O0); rowreduce("v_add_f32", (O0,), (8, 4))
    a(f"v_cvt_pk_bf16_f32 v{O0}, v{O0}, v{O0}")
    for r in range(5):
        if r < 4:
            for t in range(4): a(f"v_and_b32_dpp v{vQ+4*r+t}, v{O0}, v{vMK+t} quad_perm:[{r},{r},{r},{r}] {DP}")
        if r > 0: a(f"v_mfma_f32_16x16x32_bf16 {vr(vA0,4)}, {vr(vQ+4*(r-1),4)}, {vr(vWO+4*(r-1),4)}, {'0' if r == 1 else vr(vA0,4)}")
    if xo:
        a("s_mov_b32 exec_lo, 0x00ff00ff"); a("s_mov_b32 exec_hi, 0xff00ff00")
        a(f"ds_write_b128 v{vDGA}, {vr(vA0,4)} offset:{L_SR}")
    else:
        a("s_mov_b32 exec_hi, 0")
        a(f"ds_write_b128 v{vSRW}, {vr(vA0,4)} offset:{L_SR}")
    def epilogue(v, g):
        rbf(v); a(f"v_mul_f32 v{v}, v{v}, v{g}"); rbf(v); a(f"v_add_f32 v{v}, v{v}, v{vXO}"); a(f"v_cvt_pk_bf16_f32 v{v}, v{v}, v{v}")
    def epoch():
        C("every workgroup has read the epoch word by now (all of them fed this sum): advance it")
        a("s_mov_b64 exec, 1")
        a(f"v_mov_b32 v{vT}, s{sT}"); a(f"buffer_store_dword v{vT}, v{vVO}, {WS}, 0 offen {est}")
    if atom:
        C("even lanes add this workgroup's s partial, odd lanes add 1 to the pair's counter; whoever completes the 64 adds holds the full sum")
        if xo: a("s_mov_b32 exec_lo, -1"); a("s_mov_b32 exec_hi, 0")
        else: a("s_mov_b32 exec_hi, -1")
        a("s_waitcnt lgkmcnt(0)"); a("s_barrier")
        st = 1 if xo else 2
        a(f"ds_read2st64_b32 {vr(vSS,2)}, v{vSRR} offset0:0 offset1:{st}"); a(f"ds_read2st64_b32 {vr(vSS+2,2)}, v{vSRR} offset0:{2*st} offset1:{3*st}")
        a("s_waitcnt lgkmcnt(0)")
        a(f"v_pk_add_f32 {vr(vSS,2)}, {vr(vSS,2)}, {vr(vSS+2,2)}"); a(f"v_add_f32 v{vSS}, v{vSS}, v{vSS+1}")
        if xo: a(f"v_add_f32_dpp v{vSS}, v{vSS}, v{vSS} quad_perm:[1,0,3,2] {DP}")
        a(f"v_cndmask_b32 v{vSS}, v{vSS}, 1.0, {sr(sMO,2)}")
        a(f"v_cvt_f64_f32 {vr(vTT,2)}, v{vSS}")
        a(f"buffer_atomic_add_f64 {vr(vTT,2)}, v{vAA}, {WS}, s{sPS} offen {aflags}")
        stamp()
        a(f"v_cvt_f64_f32 {vr(vTT+2,2)}, v{vSS}")
        if gpos is None: gcheck()
        a("s_waitcnt vmcnt(0)")
        a(f"v_add_f64 {vr(vTT,2)}, {vr(vTT,2)}, {vr(vTT+2,2)}")
        a(f"v_cvt_f32_f64 v{vSS}, {vr(vTT,2)}")
        a(f"v_cmp_eq_f32 vcc, s{sA}, v{vSS}")
        C("out = bf16(x + bf16(bf16(s) * g))")
        epilogue(vSS, vGV)
        a(f"s_and_b64 vcc, vcc, {sr(sMO,2)}"); a("s_lshr_b64 exec, vcc, 1"); a("s_cbranch_execz L_fin")
        a(f"global_store_short v{vXO+1}, v{vSS}, {sr(sOUT,2)} {ost}")
        a(f"s_cmp_lg_u32 s{sPS}, {S_OFF}"); a("s_cbranch_scc1 L_fin")
        a("s_bitcmp0_b32 exec_lo, 0"); a("s_cbranch_scc1 L_fin")
        epoch()
    else:
        C("the wave whose LDS ticket is the last one sums and publishes the s partial")
        a(f"ds_add_rtn_u32 v{vT2}, v{vTA}, v{vTB} offset:{L_CNT+256}")
        for w in range(4): a(f"ds_read_b128 {vr(vQ+4*w,4)}, v{vVO} offset:{L_SR+512*w}")
        a("s_waitcnt lgkmcnt(4)")
        a(f"v_cmp_eq_u32 vcc, 3, v{vT2}"); a("s_cbranch_vccz L_nopub")
        for w in range(1, 4): a(f"s_waitcnt lgkmcnt({3-w})"); add4(vQ, vQ, vQ+4*w)
        for r in range(4): a(f"v_bfi_b32 v{vQ+r}, v{vFF}, s{sTB+r}, v{vQ+r}")
        a(f"s_not_b32 exec_lo, s{sLOC}")
        a(f"buffer_store_dwordx4 {vr(vQ,4)}, v{vVO}, {WS}, s{sPS} offen sc1")
        a(f"s_cmp_eq_u32 s{sLOC}, 0"); a("s_cbranch_scc1 L_nopub")
        a(f"s_mov_b32 exec_lo, s{sLOC}")
        a(f"buffer_store_dwordx4 {vr(vQ,4)}, v{vVO}, {WS}, s{sPS} offen")
        a("L_nopub:")
        stamp()
        a("s_mov_b64 exec, -1")
        a(f"s_cmp_ge_u32 s{sF}, 128"); a("s_cbranch_scc1 L_fin")
        C("gate owner: s = sum of 64 partials, out = bf16(x + bf16(bf16(s) * g))")
        a("L_bpoll:")
        a(f"buffer_load_dwordx4 {vr(vSS,4)}, v{vL2K}, {WS}, s{sRG} offen sc1")
        a("s_waitcnt vmcnt(0)")
        untag4(vSS); a("s_cbranch_vccz L_bok")
        a("s_mov_b64 exec, vcc")
        timeout("L_bpoll")
        a("L_bok:")
        a("s_mov_b64 exec, -1")
        fold4(vSS); rowreduce("v_add_f32", (vSS,))
        epilogue(vSS, vGS)
        a("s_mov_b32 exec_lo, 0x00010001"); a("s_mov_b32 exec_hi, 0x00010001")
        a(f"global_store_short v{vXO+1}, v{vSS}, {sr(sOUT,2)} {ost}")
        a(f"s_cmp_lg_u32 s{sF}, 0"); a("s_cbranch_scc1 L_fin")
        epoch()
    if amp:
        a("s_memrealtime s[98:99]"); a("s_mov_b64 exec, -1")
        a(f"s_mov_b32 s{sTMP}, {ST_OFF}"); a(f"v_lshlrev_b32 v{vT}, 5, v{vL}")
        a(f"buffer_load_dwordx4 {vr(vW,4)}, v{vT}, {WS}, s{sTMP} offen sc1"); a(f"buffer_load_dwordx4 {vr(vW+4,4)}, v{vT}, {WS}, s{sTMP} offen offset:16 sc1")
        a("s_waitcnt vmcnt(0) lgkmcnt(0)")
        for i in range(8): a(f"v_subrev_u32 v{vW+i}, s96, v{vW+i}")
        a(f"v_min_i32 v{vSS}, v{vW}, v{vW+2}"); a(f"v_min3_i32 v{vSS}, v{vSS}, v{vW+4}, v{vW+6}"); rowreduce("v_min_i32", (vSS,)); allreduce_rows("v_min_i32", vSS, vT)
        a(f"v_readfirstlane_b32 s90, v{vSS}"); a("s_nop 3"); a("s_max_i32 s90, s90, -300")
        a("s_sub_u32 s88, s98, s96"); a("s_sub_u32 s88, s88, s90")
        a(f"s_mul_i32 s88, s88, {amp}"); a("s_min_u32 s88, s88, 200000"); a("s_add_u32 s88, s88, s90"); a("s_add_u32 s88, s88, 6000")
        a("L_spin:")
        a("s_memrealtime s[98:99]"); a("s_waitcnt lgkmcnt(0)"); a("s_sub_u32 s98, s98, s96"); a("s_cmp_lt_i32 s98, s88"); a("s_cbranch_scc1 L_spin")
    a("L_fin:")
    if stamps:
        a("s_memrealtime s[100:101]"); a("s_mov_b64 exec, -1"); a("s_waitcnt lgkmcnt(0)")
        for i in range(nst[0]): a(f"v_writelane_b32 v{vTS}, s{sST+2*i}, {i}")
        a(f"v_writelane_b32 v{vTS}, s100, {nst[0]}")
        a(f"v_writelane_b32 v{vTS}, s{sTMO}, 15"); a(f"v_writelane_b32 v{vTS}, s{sFAST}, 14")
        a(f"s_lshl_b32 s{sTMP}, s2, 2"); a(f"s_add_u32 s{sTMP}, s{sTMP}, s{sW}"); a(f"s_lshl_b32 s{sTMP}, s{sTMP}, 8"); a(f"s_add_u32 s{sTMP}, s{sTMP}, {ST_OFF}")
        a(f"v_lshlrev_b32 v{vTT}, 2, v{vL}")
        a(f"buffer_store_dword v{vTS}, v{vTT}, {WS}, s{sTMP} offen")
    a("L_done:")
    a("s_endpgm")
    C("out of line: write-through stores, re-polls, half-line V loads")
    for lbl, body, back in ool:
        a(f"{lbl}:"); body(); a(f"s_branch {back}")
    txt = HEADER + f"; @launch grid=(256,1,1) block=(256,1,1) lds={lds}\n" + DOC
    txt += f'.amdgcn_target "amdgcn-amd-amdhsa--gfx950"\n.text\n.globl {NAME}_kernel\n.p2align 8\n.type {NAME}_kernel,@function\n'
    txt += a.finish() + "L_codeend:\n"
    txt += f'''.section .rodata,"a"
.p2align 6
.amdhsa_kernel {NAME}_kernel
  .amdhsa_next_free_vgpr {NV + 16*NS}
  .amdhsa_next_free_sgpr 102
  .amdhsa_accum_offset {NV}
  .amdhsa_group_segment_fixed_size 0
  .amdhsa_kernarg_size 96
  .amdhsa_user_sgpr_count 2
  .amdhsa_user_sgpr_kernarg_segment_ptr 1
  .amdhsa_system_sgpr_workgroup_id_x 1
  .amdhsa_float_denorm_mode_32 3
.end_amdhsa_kernel
'''
    return txt

if __name__ == "__main__":
    kw = {}
    for x in sys.argv[2:]:
        k, v = x.split("=", 1)
        try: v = eval(v)
        except Exception: pass
        kw[k] = v
    open(sys.argv[1], "w").write(gen(**kw))
```
